```python
import torch

def _softmax(x, axis=-1):
    return torch.softmax(x, dim=axis)
def _gelu(x):
    return torch.nn.functional.gelu(x, approximate="tanh")
def _silu(x):
    return torch.nn.functional.silu(x)
def _sigmoid(x):
    return torch.sigmoid(x)
def _layernorm(x, axis=-1, eps=1e-5):
    m = x.mean(dim=axis, keepdim=True)
    v = x.var(dim=axis, keepdim=True, unbiased=False)
    return (x - m) / torch.sqrt(v + eps)
def _scatter_add(tgt, idx, src, axis=0):
    return tgt.clone().index_add_(axis, idx, src)
def _segment_sum(src, seg, n):
    out = torch.zeros((n,) + src.shape[1:], dtype=src.dtype)
    return out.index_add_(0, seg, src)
def _pad(x, pw):
    flat = tuple(v for pair in reversed(pw) for v in pair)
    return torch.nn.functional.pad(x, flat)

kernel_name = 'recurrent_scan__gqa_block_cached__dense_activation_relu__decode'

def setup_inputs():

    _w = (lambda a: (lambda t: t.to(torch.bfloat16) if t.is_floating_point() else t)(torch.as_tensor(a)))
    def _A_setup():
        B, Sq, D = 8, 1, 448
        Hq, Hkv, Sk, Dh = 16, 8, 4096, 256
        assert Hq % Hkv == 0, (Hq, Hkv)
        return {
            "x": _w((lambda *s: torch.randn(*s, dtype=torch.bfloat16) * 0.05)(B, Sq, D)),
            "k_cache": _w((lambda *s: torch.randn(*s, dtype=torch.bfloat16) * 0.8)(B, Hkv, Sk, Dh)),
            "v_cache": _w((lambda *s: torch.randn(*s, dtype=torch.bfloat16) * 0.8)(B, Hkv, Sk, Dh)),
            "wq": _w((lambda *s: torch.randn(*s, dtype=torch.bfloat16) * 0.8)(D, Hq * Dh) * (D ** -0.5)),
            "wo": _w((lambda *s: torch.randn(*s, dtype=torch.bfloat16) * 0.8)(Hq * Dh, D) * ((Hq * Dh) ** -0.5)),
        }
    _A_in = _A_setup()

    def _B_setup():
        B, S, D, Dff = 8, 1, 448, 1792
        return {
            "x": _w((lambda *s: torch.randn(*s, dtype=torch.bfloat16) * 0.05)(B, S, D)),
            "w1": _w((lambda *s: torch.randn(*s, dtype=torch.bfloat16) * 0.2)(D, Dff)),
            "w2": _w((lambda *s: torch.randn(*s, dtype=torch.bfloat16) * 0.2)(Dff, D)),
        }
    _B_in = _B_setup()

    return {
        "A_x": _A_in["x"],
        "A_k_cache": _A_in["k_cache"],
        "A_v_cache": _A_in["v_cache"],
        "A_wq": _A_in["wq"],
        "A_wo": _A_in["wo"],
        "B_x": _B_in["x"],
        "B_w1": _B_in["w1"],
        "B_w2": _B_in["w2"],
    }

def reference(A_x, A_k_cache, A_v_cache, A_wq, A_wo, B_x, B_w1, B_w2):
    def _A_ref(x, k_cache, v_cache, wq, wo):
        B, Sq, D = x.shape
        Hq, Dh = 16, 256
        Hkv = k_cache.shape[1]
        rep = Hq // Hkv
        q = (lambda x, *d: x.permute(*d))((x @ wq).reshape(B, Sq, Hq, Dh), 0, 2, 1, 3)
        k = (lambda x, n, axis: torch.repeat_interleave(x, n, dim=axis))(k_cache, rep, axis=1)
        v = (lambda x, n, axis: torch.repeat_interleave(x, n, dim=axis))(v_cache, rep, axis=1)
        scores = torch.einsum("bhqd,bhkd->bhqk", q, k) * (Dh ** -0.5)
        p = _softmax(scores, axis=-1)
        o = torch.einsum("bhqk,bhkd->bhqd", p, v)
        return (lambda x, *d: x.permute(*d))(o, 0, 2, 1, 3).reshape(B, Sq, Hq * Dh) @ wo

    def _B_ref(x, w1, w2):
        h = torch.einsum("bsd,df->bsf", x, w1)
        zero = torch.zeros_like(h)
        h = torch.maximum(h, zero)
        return torch.einsum("bsf,fd->bsd", h, w2)

    x = A_x
    xn = _layernorm(x, axis=-1)
    s = _A_ref(xn, A_k_cache, A_v_cache, A_wq, A_wo)
    g = _silu(_B_ref(xn, B_w1, B_w2))
    return x + s * g
```

```python
import sys, math, struct

NAME = "recurrent_scan__gqa_block_cached__dense_activation_relu__decode_kernel"

def f2u(f): return struct.unpack("<I", struct.pack("<f", f))[0]

class Gen:
    def __init__(self):
        self.L = []
        self.vm = []
    def A(self, s):
        for line in s.split("\n"):
            self.L.append("  " + line.strip() if not line.strip().endswith(":") else line.strip())
    def vmem(self, s, tag=None):
        self.A(s); self.vm.append(tag)
    def wait_tag(self, tag, extra=""):
        idx = max(i for i, t in enumerate(self.vm) if t == tag)
        n = len(self.vm) - 1 - idx
        assert n <= 63, n
        self.A(f"s_waitcnt vmcnt({n}) {extra}".strip())

def build(opts):
    TS = opts.get("ts", False)
    KVF = opts.get("kvflags", "nt")
    WF = opts.get("wflags", "")
    NSLOT = opts.get("nslot", 5)
    SPIN = opts.get("spin", 100000)
    g = Gen(); A = g.A

    WO_LDS = 0
    WQ_LDS = 0
    W1_LDS = 16384
    W2_LDS = W1_LDS + 57344
    XN_LDS = 131072
    XN_STR = 912
    Q_LDS = XN_LDS + 8*XN_STR
    H_LDS = Q_LDS + 1024
    H_STR = 144
    ST_LDS = H_LDS + 2304
    G_LDS = ST_LDS + 128
    RED_LDS = G_LDS + 64
    CB_LDS = RED_LDS + 512
    LDS_TOTAL = CB_LDS + 16384
    assert LDS_TOTAL <= 163840
    WS_Q = 0
    WS_FP = 0x10000
    WS_OP = 0x80000
    OP_STR = 1152
    WS_TS = 0x100000
    WS_SIZE = 0x200000

    CSC = math.log2(math.e) / 16.0

    sWG, sWV, sHKV, sIDX, sB, sSPL = "s2", "s3", "s4", "s5", "s6", "s7"
    K_, V_, X_, WQ_, W1_, W2_, WO_, WS_, DB_, OUT_ = 8, 12, 16, 20, 24, 28, 32, 36, 40, 44
    def srd(n): return f"s[{n}:{n+3}]"
    sP, sHS, sFC, sFV, sCS, sSLOT, sKOFF, sC = "s86", "s87", "s88", "s89", "s90", "s91", "s92", "s93"
    sT0, sT1, sT2, sT3 = "s48", "s49", "s50", "s51"
    sSO = "s52"

    def stamp(i):
        if not TS: return
        A(f"s_memrealtime s[60:61]")
        A("s_waitcnt lgkmcnt(0)")
        A(f"v_writelane_b32 v15, s60, {i}")

    A(f"s_cmp_ge_u32 {sWG}, 256")
    A("s_cbranch_scc1 L_end")
    A("s_setprio 3")
    A("s_load_dwordx16 s[64:79], s[0:1], 0")
    A("s_load_dwordx4 s[80:83], s[0:1], 64")
    A("s_load_dwordx2 s[84:85], s[0:1], 80")
    if TS:
        A("v_mov_b32 v15, 0")
        A("s_memrealtime s[62:63]")
    A("v_lshrrev_b32 v1, 6, v0")
    A("v_and_b32 v0, 63, v0")
    A(f"s_and_b32 {sHKV}, {sWG}, 7")
    A(f"v_readfirstlane_b32 {sWV}, v1")
    A(f"s_lshr_b32 {sIDX}, {sWG}, 3")
    A(f"s_and_b32 {sB}, {sIDX}, 7")
    A(f"s_lshr_b32 {sSPL}, {sIDX}, 3")
    A(f"s_lshl_b32 {sP}, {sHKV}, 5")
    A(f"s_add_u32 {sP}, {sP}, {sIDX}")
    A(f"s_mul_i32 {sT0}, {sIDX}, 37")
    A(f"s_lshr_b32 {sT0}, {sT0}, 8")
    A(f"s_mul_i32 {sT1}, {sT0}, 7")
    A(f"s_sub_u32 {sFC}, {sIDX}, {sT1}")
    A(f"s_lshl_b32 {sHS}, {sT0}, 3")
    A(f"s_add_u32 {sHS}, {sHS}, {sHKV}")
    A(f"s_cmp_lt_u32 {sHS}, 28")
    A(f"s_cselect_b32 {sFV}, 1, 0")
    A(f"s_lshl_b32 {sCS}, {sHKV}, 2")
    A(f"s_add_u32 {sCS}, {sCS}, {sSPL}")
    A(f"s_lshl_b32 {sSLOT}, {sB}, 3")
    A(f"s_add_u32 {sSLOT}, {sSLOT}, {sHKV}")
    A(f"s_lshl_b32 {sSLOT}, {sSLOT}, 2")
    A(f"s_add_u32 {sSLOT}, {sSLOT}, {sSPL}")
    A(f"s_lshl_b32 {sT2}, {sSLOT}, 19")
    A(f"s_lshl_b32 {sKOFF}, {sWV}, 13")
    A(f"s_mov_b32 {sC}, 0x{f2u(CSC):08x}")
    A("v_and_b32 v7, 15, v0")
    A("v_lshrrev_b32 v8, 4, v0")
    A(f"s_mul_i32 {sT3}, {sWV}, 896")
    A(f"v_lshlrev_b32 v9, 4, v0")
    A(f"v_add_u32 v9, {sT3}, v9")
    A("v_mov_b32 v10, 0x7fffff00")
    A("v_cmp_gt_u32 vcc, 56, v0")
    A("v_lshrrev_b32 v11, 1, v0")
    A("v_lshlrev_b32 v11, 13, v11")
    A("v_cndmask_b32 v9, v10, v9, vcc")
    A("v_and_b32 v12, 1, v0")
    A("v_lshl_add_u32 v11, v12, 4, v11")
    A("s_waitcnt lgkmcnt(0)")
    A(f"s_mov_b32 s{X_}, s64\ns_mov_b32 s{X_+1}, s65\ns_mov_b32 s{X_+2}, 7168\ns_mov_b32 s{X_+3}, 0x20000")
    A(f"s_lshl_b32 {sT0}, {sP}, 5")
    A(f"s_add_u32 s{WQ_}, s70, {sT0}\ns_addc_u32 s{WQ_+1}, s71, 0\ns_sub_u32 s{WQ_+2}, 3670016, {sT0}\ns_mov_b32 s{WQ_+3}, 0x20000")
    g.vmem(f"buffer_load_dwordx4 v[16:19], v9, {srd(X_)}, 0 offen", "x")
    for i in range(2):
        A(f"s_add_u32 {sT0}, {sWV}, {8*i}")
        A(f"s_lshl_b32 {sT1}, {sT0}, 10")
        if WQ_LDS: A(f"s_add_u32 {sT1}, {sT1}, {WQ_LDS}")
        A(f"s_mov_b32 m0, {sT1}")
        A(f"s_lshl_b32 {sSO}, {sT0}, 18")
        g.vmem(f"buffer_load_dwordx4 v11, {srd(WQ_)}, {sSO} offen lds {WF}", "wq")
    A("s_setprio 2")
    A(f"s_add_u32 s{K_}, s66, {sT2}\ns_addc_u32 s{K_+1}, s67, 0\ns_mov_b32 s{K_+2}, 0x80000\ns_mov_b32 s{K_+3}, 0x20000")
    A(f"s_add_u32 s{V_}, s68, {sT2}\ns_addc_u32 s{V_+1}, s69, 0\ns_mov_b32 s{V_+2}, 0x80000\ns_mov_b32 s{V_+3}, 0x20000")
    A(f"s_lshl_b32 {sT0}, {sHS}, 7")
    A(f"s_add_u32 s{W1_}, s76, {sT0}\ns_addc_u32 s{W1_+1}, s77, 0\ns_sub_u32 {sT1}, 1605632, {sT0}")
    A(f"s_cmp_eq_u32 {sFV}, 1\ns_cselect_b32 s{W1_+2}, {sT1}, 0\ns_mov_b32 s{W1_+3}, 0x20000")
    A(f"s_mul_i32 {sT0}, {sHS}, 57344\ns_lshl_b32 {sT1}, {sFC}, 7\ns_add_u32 {sT0}, {sT0}, {sT1}")
    A(f"s_add_u32 s{W2_}, s78, {sT0}\ns_addc_u32 s{W2_+1}, s79, 0\ns_sub_u32 {sT1}, 1605632, {sT0}")
    A(f"s_cmp_eq_u32 {sFV}, 1\ns_cselect_b32 s{W2_+2}, {sT1}, 0\ns_mov_b32 s{W2_+3}, 0x20000")
    A(f"s_lshl_b32 {sT0}, {sCS}, 5")
    A(f"s_add_u32 s{WO_}, s72, {sT0}\ns_addc_u32 s{WO_+1}, s73, 0\ns_sub_u32 {sT1}, 3670016, {sT0}")
    A(f"s_cmp_lt_u32 {sHKV}, 7\ns_cselect_b32 s{WO_+2}, {sT1}, 0\ns_mov_b32 s{WO_+3}, 0x20000")
    A(f"s_mov_b32 s{WS_}, s84\ns_mov_b32 s{WS_+1}, s85\ns_mov_b32 s{WS_+2}, {WS_SIZE}\ns_mov_b32 s{WS_+3}, 0x20000")
    A(f"s_mov_b32 s{DB_}, s82\ns_mov_b32 s{DB_+1}, s83\ns_mov_b32 s{DB_+2}, 256\ns_mov_b32 s{DB_+3}, 0x20000")
    A(f"s_mov_b32 s{OUT_}, s80\ns_mov_b32 s{OUT_+1}, s81\ns_mov_b32 s{OUT_+2}, 7168\ns_mov_b32 s{OUT_+3}, 0x20000")
    A("v_lshrrev_b32 v14, 3, v0")
    A("v_and_b32 v13, 7, v0")
    A("v_lshlrev_b32 v13, 4, v13")
    A("v_mul_u32_u24 v12, 3584, v14")
    A("v_add_u32 v12, v12, v13")
    A("v_mul_u32_u24 v14, 896, v14")
    A("v_add_u32 v13, v14, v13")
    A(f"s_mul_i32 {sT0}, {sWV}, 7")
    for i in range(7):
        A(f"s_add_u32 {sT1}, {sT0}, {i}")
        A(f"s_lshl_b32 {sT3}, {sT1}, 10")
        A(f"s_add_u32 {sT3}, {sT3}, {W1_LDS}")
        A(f"s_mov_b32 m0, {sT3}")
        A(f"s_mul_i32 {sSO}, {sT1}, 28672")
        g.vmem(f"buffer_load_dwordx4 v12, {srd(W1_)}, {sSO} offen lds {WF}", "w12")
    A(f"s_lshl_b32 {sT3}, {sWV}, 10")
    A(f"s_add_u32 {sT3}, {sT3}, {W2_LDS}")
    A(f"s_mov_b32 m0, {sT3}")
    A(f"s_mul_i32 {sSO}, {sWV}, 7168")
    g.vmem(f"buffer_load_dwordx4 v13, {srd(W2_)}, {sSO} offen lds {WF}", "w12")
    A("v_lshlrev_b32 v1, 9, v7")
    A("v_lshl_add_u32 v1, v8, 4, v1")
    A("v_lshlrev_b32 v2, 11, v8")
    A("v_lshl_add_u32 v2, v7, 4, v2")
    A("v_and_b32 v9, 1, v0")
    A("v_lshlrev_b32 v9, 4, v9")
    A("v_mov_b32 v10, 0xffff")
    A("v_lshlrev_b32 v9, v9, v10")
    A("v_bfe_u32 v10, v0, 1, 2")
    for i in range(4):
        A(f"v_cmp_eq_u32 vcc, {i}, v10")
        A("s_nop 1")
        A(f"v_cndmask_b32 v{3+i}, 0, v9, vcc")

    RING = 96
    def tile_loads(n):
        slot = n % NSLOT
        base = RING + slot*32
        t = n % 8
        A(f"s_add_u32 {sSO}, {sKOFF}, {t*65536}")
        for i in range(8):
            d = base + i*4
            if n < 8:
                g.vmem(f"buffer_load_dwordx4 v[{d}:{d+3}], v1, {srd(K_)}, {sSO} offen offset:{i*64} {KVF}", f"t{n}")
            else:
                g.vmem(f"buffer_load_dwordx4 v[{d}:{d+3}], v2, {srd(V_)}, {sSO} offen offset:{(i//2)*512+(i%2)*256} {KVF}", f"t{n}")

    prefix = list(g.vm)
    A(f"s_cmp_eq_u32 {sWV}, 0")
    A("s_cbranch_scc1 L_front_noload")
    A(f"s_cmp_eq_u32 {sWV}, 1")
    A("s_cbranch_scc0 L_front_kload")
    A("v_mov_b32 v20, -1\nv_mov_b32 v21, -1\nv_mov_b32 v22, -1\nv_mov_b32 v23, -1")
    A(f"s_mul_i32 {sSO}, {sSLOT}, {OP_STR}")
    A(f"s_add_u32 {sSO}, {sSO}, {WS_OP}")
    A("v_lshlrev_b32 v9, 4, v0")
    A(f"buffer_store_dwordx4 v[20:23], v9, {srd(WS_)}, {sSO} offen sc1")
    A("s_mov_b64 exec, 1")
    A(f"buffer_store_dwordx4 v[20:23], v9, {srd(WS_)}, {sSO} offen offset:1024 sc1")
    A("s_mov_b64 exec, -1")
    A("L_front_kload:")
    A("s_setprio 0")
    for n in range(NSLOT): tile_loads(n)
    nk = NSLOT*8
    A(f"s_waitcnt vmcnt({2+8+nk})")
    A("s_branch L_front_ln")
    A("L_front_noload:")
    A(f"s_waitcnt vmcnt({2+8})")
    A("L_front_ln:")
    stamp(0)
    for i in range(4):
        A(f"v_lshlrev_b32 v{24+2*i}, 16, v{16+i}")
        A(f"v_and_b32 v{25+2*i}, 0xffff0000, v{16+i}")
    A("v_add_f32 v32, v24, v25\nv_add_f32 v33, v26, v27\nv_add_f32 v34, v28, v29\nv_add_f32 v35, v30, v31")
    A("v_add_f32 v32, v32, v33\nv_add_f32 v34, v34, v35\nv_add_f32 v32, v32, v34")
    def allreduce(v, t, op="v_add_f32"):
        for mode in ["quad_perm:[1,0,3,2]", "quad_perm:[2,3,0,1]", "row_half_mirror", "row_mirror"]:
            A("s_nop 1")
            A(f"{op}_dpp v{v}, v{v}, v{v} {mode} row_mask:0xf bank_mask:0xf")
        xreduce(v, t, op)
    def xreduce(v, t, op="v_add_f32"):
        A(f"v_mov_b32 v{t}, v{v}")
        A("s_nop 1")
        A(f"v_permlane16_swap_b32 v{v}, v{t}")
        A("s_nop 1")
        A(f"{op} v{v}, v{v}, v{t}")
        A(f"v_mov_b32 v{t}, v{v}")
        A("s_nop 1")
        A(f"v_permlane32_swap_b32 v{v}, v{t}")
        A("s_nop 1")
        A(f"{op} v{v}, v{v}, v{t}")
    allreduce(32, 33)
    A(f"v_mul_f32 v32, 0x{f2u(1.0/448):08x}, v32")
    for i in range(8):
        A(f"v_sub_f32 v{36+i}, v{24+i}, v32")
    A("v_mul_f32 v34, v36, v36")
    for i in range(1, 8):
        A(f"v_fmac_f32 v34, v{36+i}, v{36+i}")
    A("v_cmp_gt_u32 vcc, 56, v0")
    A("s_nop 1")
    A("v_cndmask_b32 v34, 0, v34, vcc")
    allreduce(34, 33)
    A(f"v_mul_f32 v34, 0x{f2u(1.0/448):08x}, v34")
    A("v_cvt_pk_bf16_f32 v33, v32, v34")
    A("v_lshlrev_b32 v32, 16, v33")
    A("v_and_b32 v34, 0xffff0000, v33")
    A(f"v_add_f32 v34, 0x{f2u(1e-5):08x}, v34")
    A("v_cvt_pk_bf16_f32 v34, v34, v34")
    A("v_lshlrev_b32 v34, 16, v34")
    A("v_sqrt_f32 v34, v34")
    A("s_nop 0")
    A("v_cvt_pk_bf16_f32 v34, v34, v34")
    A("v_lshlrev_b32 v34, 16, v34")
    A("v_rcp_f32 v34, v34")
    for i in range(8):
        A(f"v_sub_f32 v{36+i}, v{24+i}, v32")
    for i in range(4):
        A(f"v_cvt_pk_bf16_f32 v{44+i}, v{36+2*i}, v{37+2*i}")
    for i in range(4):
        A(f"v_lshlrev_b32 v{36+2*i}, 16, v{44+i}")
        A(f"v_and_b32 v{37+2*i}, 0xffff0000, v{44+i}")
    for i in range(8):
        A(f"v_mul_f32 v{36+i}, v{36+i}, v34")
    for i in range(4):
        A(f"v_cvt_pk_bf16_f32 v{44+i}, v{36+2*i}, v{37+2*i}")
    A(f"s_mul_i32 {sT0}, {sWV}, {XN_STR}")
    A(f"s_add_u32 {sT0}, {sT0}, {XN_LDS}")
    A(f"v_lshlrev_b32 v9, 4, v0")
    A(f"v_add_u32 v9, {sT0}, v9")
    A("s_mov_b32 exec_lo, -1\ns_mov_b32 exec_hi, 0x00ffffff")
    A("ds_write_b128 v9, v[44:47]")
    A("s_mov_b64 exec, -1")
    A("v_and_b32 v9, 7, v0")
    A(f"v_mul_u32_u24 v9, {XN_STR}, v9")
    A("v_lshl_add_u32 v9, v8, 4, v9")
    A(f"v_add_u32 v9, {XN_LDS}, v9")
    A("v_lshrrev_b32 v10, 2, v7")
    A("v_lshl_add_u32 v10, v8, 3, v10")
    A("v_and_b32 v12, 3, v7")
    A("v_lshlrev_b32 v12, 3, v12")
    A("v_lshl_add_u32 v11, v10, 7, v12")
    A(f"v_add_u32 v11, {W1_LDS}, v11")
    A("v_lshl_add_u32 v10, v10, 5, v12")
    A(f"s_cmp_eq_u32 {sWV}, 0")
    A("s_cbranch_scc1 L_svc")
    A(f"s_waitcnt vmcnt({8+nk}) lgkmcnt(0)")
    A("s_barrier")
    A(f"s_waitcnt vmcnt({nk})")
    A("s_barrier")
    A(f"s_cmp_eq_u32 {sWV}, 1")
    A("s_cbranch_scc0 L_wait_q")
    A(f"s_cmp_eq_u32 {sFV}, 1")
    A("s_cbranch_scc0 L_ffn_done")
    def ffn_issue(t):
        b = 32 + (t % 3)*20
        A(f"ds_read_b128 v[{b}:{b+3}], v9 offset:{t*64}")
        for ct in range(4):
            A(f"ds_read_b64_tr_b16 v[{b+4+ct*4}:{b+5+ct*4}], v11 offset:{t*4096+ct*32}")
            A(f"ds_read_b64_tr_b16 v[{b+6+ct*4}:{b+7+ct*4}], v11 offset:{t*4096+ct*32+512}")
    ffn_issue(0)
    for t in range(14):
        if t+1 < 14:
            A("s_waitcnt lgkmcnt(4)")
            ffn_issue(t+1)
            A("s_waitcnt lgkmcnt(9)")
        else:
            A("s_waitcnt lgkmcnt(0)")
        b = 32 + (t % 3)*20
        for ct in range(4):
            c = "0" if t == 0 else f"v[{16+ct*4}:{19+ct*4}]"
            A(f"v_mfma_f32_16x16x32_bf16 v[{16+ct*4}:{19+ct*4}], v[{b+4+ct*4}:{b+7+ct*4}], v[{b}:{b+3}], {c}")
    A("s_nop 7")
    A(f"v_mul_u32_u24 v12, {H_STR}, v7")
    A("v_lshl_add_u32 v13, v8, 3, v12")
    A(f"v_add_u32 v13, {H_LDS}, v13")
    A("v_lshl_add_u32 v12, v8, 4, v12")
    A(f"v_add_u32 v12, {H_LDS}, v12")
    for ct in range(4):
        for r in range(4):
            A(f"v_max_f32 v{16+ct*4+r}, 0, v{16+ct*4+r}")
        A(f"v_cvt_pk_bf16_f32 v{16+ct*4}, v{16+ct*4}, v{17+ct*4}")
        A(f"v_cvt_pk_bf16_f32 v{17+ct*4}, v{18+ct*4}, v{19+ct*4}")
        A(f"ds_write_b64 v13, v[{16+ct*4}:{17+ct*4}] offset:{ct*32}")
    A("s_waitcnt lgkmcnt(0)")
    A("ds_read_b128 v[32:35], v12")
    A("ds_read_b128 v[36:39], v12 offset:64")
    D2 = W2_LDS - W1_LDS
    for t in range(2):
        for ct in range(4):
            b = 40 + (t*4+ct)*4
            A(f"ds_read_b64_tr_b16 v[{b}:{b+1}], v11 offset:{D2+t*4096+ct*32}")
            A(f"ds_read_b64_tr_b16 v[{b+2}:{b+3}], v11 offset:{D2+t*4096+ct*32+512}")
        A("s_waitcnt lgkmcnt(0)")
    for t in range(2):
        for ct in range(4):
            b = 40 + (t*4+ct)*4
            c = "0" if t == 0 else f"v[{16+ct*4}:{19+ct*4}]"
            A(f"v_mfma_f32_16x16x32_bf16 v[{16+ct*4}:{19+ct*4}], v[{b}:{b+3}], v[{32+t*4}:{35+t*4}], {c}")
    A("v_mul_u32_u24 v12, 1792, v7")
    A("v_lshl_add_u32 v12, v8, 4, v12")
    A(f"s_mul_i32 {sSO}, {sHS}, {8*1792}")
    A(f"s_lshl_b32 {sT0}, {sFC}, 8")
    A(f"s_add_u32 {sSO}, {sSO}, {sT0}")
    A(f"s_add_u32 {sSO}, {sSO}, {WS_FP}")
    A("s_mov_b32 exec_lo, 0x00ff00ff\ns_mov_b32 exec_hi, 0x00ff00ff")
    A("s_nop 4")
    for ct in range(4):
        A(f"buffer_store_dwordx4 v[{16+ct*4}:{19+ct*4}], v12, {srd(WS_)}, {sSO} offen offset:{ct*64} sc1")
    A("s_mov_b64 exec, -1")
    A("L_ffn_done:")
    A("s_waitcnt vmcnt(0)")
    stamp(1)
    A("s_branch L_wait_q")

    A("L_svc:")
    A("s_setprio 3")
    A(f"s_waitcnt vmcnt(8) lgkmcnt(0)")
    A("s_barrier")
    stamp(1)
    def q_issue(t):
        b = 24 + (t % 5)*8
        A(f"ds_read_b128 v[{b}:{b+3}], v9 offset:{t*64}")
        A(f"ds_read_b64_tr_b16 v[{b+4}:{b+5}], v10 offset:{WQ_LDS+t*1024}")
        A(f"ds_read_b64_tr_b16 v[{b+6}:{b+7}], v10 offset:{WQ_LDS+t*1024+128}")
    for t in range(4): q_issue(t)
    for t in range(14):
        rem = min(13, t+3) - t
        A(f"s_waitcnt lgkmcnt({rem*3})")
        b = 24 + (t % 5)*8
        c = "0" if t == 0 else "v[16:19]"
        A(f"v_mfma_f32_16x16x32_bf16 v[16:19], v[{b+4}:{b+7}], v[{b}:{b+3}], {c}")
        if t+4 < 14: q_issue(t+4)
    A("v_lshlrev_b32 v12, 13, v7")
    A("v_lshl_add_u32 v12, v8, 3, v12")
    A(f"s_lshl_b32 {sSO}, {sP}, 5")
    A("s_nop 4")
    A("v_cvt_pk_bf16_f32 v16, v16, v17")
    A("v_cvt_pk_bf16_f32 v17, v18, v19")
    A("s_mov_b32 exec_lo, 0x00ff00ff\ns_mov_b32 exec_hi, 0x00ff00ff")
    A(f"buffer_store_dwordx2 v[16:17], v12, {srd(WS_)}, {sSO} offen sc1")
    A("s_mov_b64 exec, -1")
    stamp(2)
    A("s_waitcnt vmcnt(1)")
    A("s_barrier")
    A("v_mov_b32 v18, 1")
    A(f"v_mov_b32 v13, {sP}")
    A("s_waitcnt vmcnt(0)")
    stamp(3)
    A("s_mov_b64 exec, 1")
    A(f"buffer_store_byte v18, v13, {srd(DB_)}, 0 offen sc1")
    A("s_mov_b64 exec, 0xff")
    A(f"s_lshl_b32 {sSO}, {sHKV}, 5")
    A("v_lshlrev_b32 v12, 2, v0")
    A("v_mov_b32 v19, 0x01010101")
    A(f"s_mov_b32 {sT1}, 0")
    A("L_qpoll:")
    A(f"buffer_load_dword v18, v12, {srd(DB_)}, {sSO} offen sc1")
    A(f"s_add_u32 {sT1}, {sT1}, 1")
    A(f"s_cmp_gt_u32 {sT1}, {SPIN}")
    A("s_cbranch_scc1 L_qpoll_x")
    A("s_waitcnt vmcnt(0)")
    A("v_and_b32 v18, v19, v18")
    A("v_cmp_ne_u32 vcc, v19, v18")
    A("s_cbranch_vccnz L_qpoll")
    A("L_qpoll_x:")
    A("s_mov_b64 exec, -1")
    stamp(4)
    A(f"s_lshl_b32 {sSO}, {sB}, 13")
    A(f"s_lshl_b32 {sT0}, {sHKV}, 10")
    A(f"s_add_u32 {sSO}, {sSO}, {sT0}")
    A("v_lshlrev_b32 v12, 4, v0")
    A(f"buffer_load_dwordx4 v[16:19], v12, {srd(WS_)}, {sSO} offen sc1")
    A(f"v_add_u32 v12, {Q_LDS}, v12")
    A("s_waitcnt vmcnt(0)")
    A("ds_write_b128 v12, v[16:19]")
    A("s_waitcnt lgkmcnt(0)")
    stamp(5)
    A("s_barrier")
    A("v_mov_b32 v18, 3")
    A("s_mov_b64 exec, 1")
    A(f"buffer_store_byte v18, v13, {srd(DB_)}, 0 offen sc1")
    A("s_mov_b64 exec, -1")
    A("s_setprio 0")
    g.vm = []
    for n in range(NSLOT): tile_loads(n)
    A("s_branch L_main")

    A("L_wait_q:")
    A("s_barrier")
    A("L_main:")
    A("v_lshrrev_b32 v12, 1, v0")
    A("v_mul_u32_u24 v12, 896, v12")
    A("v_and_b32 v13, 1, v0")
    A("v_lshl_add_u32 v12, v13, 4, v12")
    A("v_lshrrev_b32 v13, 3, v7")
    A("v_lshlrev_b32 v13, 9, v13")
    A("v_lshl_add_u32 v13, v8, 4, v13")
    A(f"v_add_u32 v13, {Q_LDS}, v13")
    for i in range(8):
        A(f"ds_read_b128 v[{16+4*i}:{19+4*i}], v13 offset:{i*64}")
    A(f"s_mul_i32 {sT0}, {sWV}, 458752")
    A(f"s_lshl_b32 {sT1}, {sWV}, 14")
    for i in range(16):
        A(f"s_add_u32 {sT3}, {sT1}, {WO_LDS + i*1024}")
        A(f"s_mov_b32 m0, {sT3}")
        A(f"s_add_u32 {sSO}, {sT0}, {i*28672}")
        g.vmem(f"buffer_load_dwordx4 v12, {srd(WO_)}, {sSO} offen lds {WF}", "wo")
    A("s_waitcnt lgkmcnt(0)")
    stamp(6)
    for n in range(8):
        g.wait_tag(f"t{n}")
        base = RING + (n % NSLOT)*32
        for i in range(8):
            c = "0" if i == 0 else f"v[{48+4*n}:{51+4*n}]"
            A(f"v_mfma_f32_16x16x32_bf16 v[{48+4*n}:{51+4*n}], v[{base+4*i}:{base+4*i+3}], v[{16+4*i}:{19+4*i}], {c}")
        if n + NSLOT < 16: tile_loads(n + NSLOT)
    stamp(7)
    A("s_nop 7")
    A("v_max3_f32 v16, v48, v49, v50")
    for i in range(51, 79, 2):
        A(f"v_max3_f32 v16, v16, v{i}, v{i+1}")
    A("v_max_f32 v16, v16, v79")
    xreduce(16, 18, "v_max_f32")
    A(f"v_mul_f32 v16, {sC}, v16")
    A("v_mov_b32 v17, 0")
    for i in range(32):
        A(f"v_fma_f32 v{48+i}, v{48+i}, {sC}, -v16")
    for i in range(32):
        A(f"v_exp_f32 v{48+i}, v{48+i}")
    for i in range(32):
        A(f"v_add_f32 v17, v17, v{48+i}")
        A(f"v_cvt_pk_bf16_f32 v{48+i}, v{48+i}, v{48+i}")
    xreduce(17, 18, "v_add_f32")
    def ands(s, t, r):
        for i in range(4):
            A(f"v_and_b32 v{88+4*s+i}, v{48+4*t+r}, v{3+i}")
    first = True
    for t in range(8):
        n = 8 + t
        base = RING + (n % NSLOT)*32
        ands(0, t, 0); ands(1, t, 1)
        g.wait_tag(f"t{n}")
        def pv(s, r):
            nonlocal first
            for hf in range(2):
                c = "0" if first else f"v[{80+4*hf}:{83+4*hf}]"
                vb = base + (r*2+hf)*4
                A(f"v_mfma_f32_16x16x32_bf16 v[{80+4*hf}:{83+4*hf}], v[{88+4*s}:{91+4*s}], v[{vb}:{vb+3}], {c}")
            first = False
        pv(0, 0); ands(0, t, 2); pv(1, 1); ands(1, t, 3); pv(0, 2); pv(1, 3)
        if n + NSLOT < 16: tile_loads(n + NSLOT)
    stamp(8)
    A("v_lshrrev_b32 v18, 1, v8")
    A("v_lshlrev_b32 v18, 10, v18")
    A("v_lshl_add_u32 v18, v7, 5, v18")
    A("v_and_b32 v19, 1, v8")
    A("v_lshl_add_u32 v18, v19, 4, v18")
    A(f"s_lshl_b32 {sT0}, {sWV}, 11")
    A(f"s_add_u32 {sT0}, {sT0}, {CB_LDS}")
    A(f"v_add_u32 v18, {sT0}, v18")
    A("v_lshrrev_b32 v19, 3, v7")
    A("v_lshlrev_b32 v19, 6, v19")
    A(f"s_lshl_b32 {sT0}, {sWV}, 3")
    A(f"s_add_u32 {sT0}, {sT0}, {ST_LDS}")
    A(f"v_add_u32 v19, {sT0}, v19")
    A("ds_write_b64 v19, v[16:17]")
    A("ds_write_b128 v18, v[80:83]")
    A("ds_write_b128 v18, v[84:87] offset:512")
    A(f"s_cmp_eq_u32 {sWV}, 0")
    A("s_cbranch_scc0 L_b4")
    A(f"s_cmp_lt_u32 {sHKV}, 7")
    A("s_cbranch_scc0 L_b4")
    A("v_lshlrev_b32 v20, 2, v0")
    A("v_mov_b32 v21, 0x03030303")
    A(f"s_mov_b32 {sT1}, 0")
    A("L_epoll:")
    A(f"buffer_load_dword v22, v20, {srd(DB_)}, 0 offen sc1")
    A(f"s_add_u32 {sT1}, {sT1}, 1")
    A(f"s_cmp_gt_u32 {sT1}, {SPIN}")
    A("s_cbranch_scc1 L_epoll_x")
    A("s_waitcnt vmcnt(0)")
    A("v_cmp_ne_u32 vcc, v21, v22")
    A("s_cbranch_vccnz L_epoll")
    A("L_epoll_x:")
    A("s_waitcnt vmcnt(0)")
    A("v_lshrrev_b32 v20, 2, v0")
    A(f"v_mul_u32_u24 v20, {8*1792}, v20")
    A("v_and_b32 v21, 3, v0")
    A("v_lshl_add_u32 v20, v21, 4, v20")
    A(f"v_add_u32 v21, {16*8*1792}, v20")
    A("v_mov_b32 v22, 0x7fffff00")
    A("v_cmp_gt_u32 vcc, 48, v0")
    A(f"s_mul_i32 {sSO}, {sB}, 1792")
    A(f"s_lshl_b32 {sT0}, {sCS}, 6")
    A("v_cndmask_b32 v21, v22, v21, vcc")
    A(f"s_add_u32 {sSO}, {sSO}, {sT0}")
    A(f"s_add_u32 {sSO}, {sSO}, {WS_FP}")
    A(f"buffer_load_dwordx4 v[24:27], v20, {srd(WS_)}, {sSO} offen sc1")
    A(f"buffer_load_dwordx4 v[28:31], v21, {srd(WS_)}, {sSO} offen sc1")
    A(f"s_mul_i32 {sSO}, {sB}, 896")
    A(f"s_lshl_b32 {sT0}, {sCS}, 5")
    A(f"s_add_u32 {sSO}, {sSO}, {sT0}")
    A("v_lshlrev_b32 v22, 1, v7")
    A(f"buffer_load_ushort v14, v22, {srd(X_)}, {sSO} offen")
    A("s_waitcnt vmcnt(0)")
    for r in range(4): A(f"v_add_f32 v{24+r}, v{24+r}, v{28+r}")
    for mode in ["row_ror:8", "row_ror:4"]:
        A("s_nop 1")
        for r in range(4):
            A(f"v_add_f32_dpp v{24+r}, v{24+r}, v{24+r} {mode} row_mask:0xf bank_mask:0xf")
    for r in range(4): xreduce(24+r, 28, "v_add_f32")
    A("v_cvt_pk_bf16_f32 v28, v24, v25")
    A("v_cvt_pk_bf16_f32 v29, v26, v27")
    A("v_lshlrev_b32 v24, 16, v28\nv_and_b32 v25, 0xffff0000, v28\nv_lshlrev_b32 v26, 16, v29\nv_and_b32 v27, 0xffff0000, v29")
    for r in range(4): A(f"v_mul_f32 v{28+r}, 0x{f2u(-math.log2(math.e)):08x}, v{24+r}")
    for r in range(4): A(f"v_exp_f32 v{28+r}, v{28+r}")
    A("s_nop 0")
    for r in range(4): A(f"v_add_f32 v{28+r}, 1.0, v{28+r}")
    for r in range(4): A(f"v_rcp_f32 v{28+r}, v{28+r}")
    A("s_nop 0")
    for r in range(4): A(f"v_mul_f32 v{24+r}, v{24+r}, v{28+r}")
    A("v_cvt_pk_bf16_f32 v28, v24, v25")
    A("v_cvt_pk_bf16_f32 v29, v26, v27")
    A("v_lshlrev_b32 v24, 16, v28\nv_and_b32 v25, 0xffff0000, v28\nv_lshlrev_b32 v26, 16, v29\nv_and_b32 v27, 0xffff0000, v29")
    A("v_and_b32 v20, 3, v0")
    A("v_lshlrev_b32 v20, 4, v20")
    A(f"v_add_u32 v20, {G_LDS}, v20")
    A("ds_write_b128 v20, v[24:27]")
    A("v_lshlrev_b32 v14, 16, v14")
    A("L_b4:")
    A("s_waitcnt lgkmcnt(0)")
    stamp(9)
    A("s_barrier")
    stamp(10)
    A(f"s_cmp_lt_u32 {sWV}, 4")
    A("s_cbranch_scc0 L_consume")
    A(f"s_lshl_b32 {sT0}, {sWV}, 9")
    A(f"s_add_u32 {sT0}, {sT0}, {CB_LDS}")
    A("v_lshlrev_b32 v18, 3, v0")
    A(f"v_add_u32 v18, {sT0}, v18")
    A(f"s_lshr_b32 {sT1}, {sWV}, 1")
    A(f"s_lshl_b32 {sT0}, {sT1}, 6")
    A(f"s_add_u32 {sT0}, {sT0}, {ST_LDS}")
    A(f"v_mov_b32 v19, {sT0}")
    for i in range(4):
        A(f"ds_read_b128 v[{20+4*i}:{23+4*i}], v19 offset:{16*i}")
    for w in range(8):
        A(f"ds_read_b64 v[{36+2*w}:{37+2*w}], v18 offset:{2048*w}")
    A("s_waitcnt lgkmcnt(8)")
    A("v_max3_f32 v16, v20, v22, v24")
    A("v_max3_f32 v16, v16, v26, v28")
    A("v_max3_f32 v16, v16, v30, v32")
    A("v_max_f32 v16, v16, v34")
    for w in range(8): A(f"v_sub_f32 v{20+2*w}, v{20+2*w}, v16")
    for w in range(8): A(f"v_exp_f32 v{20+2*w}, v{20+2*w}")
    A("s_nop 0")
    A("v_mul_f32 v17, v20, v21")
    for w in range(1, 8): A(f"v_fmac_f32 v17, v{20+2*w}, v{21+2*w}")
    A("s_waitcnt lgkmcnt(0)")
    A("v_mul_f32 v52, v20, v36")
    A("v_mul_f32 v53, v20, v37")
    for w in range(1, 8):
        A(f"v_fmac_f32 v52, v{20+2*w}, v{36+2*w}")
        A(f"v_fmac_f32 v53, v{20+2*w}, v{37+2*w}")
    A("v_cvt_pk_bf16_f32 v52, v52, v53")
    A("v_min_u32 v52, 0xfffffffe, v52")
    A("v_min_u32 v16, 0xfffffffe, v16")
    A("v_min_u32 v17, 0xfffffffe, v17")
    A(f"s_mul_i32 {sSO}, {sSLOT}, {OP_STR}")
    A(f"s_add_u32 {sSO}, {sSO}, {WS_OP}")
    A(f"s_lshl_b32 {sT0}, {sWV}, 8")
    A("v_lshlrev_b32 v18, 2, v0")
    A(f"v_add_u32 v18, {sT0}, v18")
    A(f"s_lshl_b32 {sT0}, {sT1}, 3")
    A(f"v_mov_b32 v19, {sT0}")
    A(f"buffer_store_dword v52, v18, {srd(WS_)}, {sSO} offen sc1")
    A("s_mov_b64 exec, 1")
    A(f"buffer_store_dwordx2 v[16:17], v19, {srd(WS_)}, {sSO} offen offset:1024 sc1")
    A("s_mov_b64 exec, -1")
    stamp(11)
    A("L_consume:")
    A(f"s_cmp_lt_u32 {sHKV}, 7")
    A("s_cbranch_scc0 L_fin")
    A("v_and_b32 v18, 3, v0")
    A(f"v_mul_u32_u24 v18, {OP_STR}, v18")
    A("v_bfe_u32 v20, v0, 2, 1")
    A("v_lshl_add_u32 v19, v20, 3, v18")
    A("v_lshl_add_u32 v18, v20, 9, v18")
    A("v_lshl_add_u32 v18, v8, 4, v18")
    A(f"s_lshl_b32 {sT0}, {sB}, 3")
    A(f"s_add_u32 {sT0}, {sT0}, {sWV}")
    A(f"s_mul_i32 {sSO}, {sT0}, {4*OP_STR}")
    A(f"s_add_u32 {sSO}, {sSO}, {WS_OP}")
    OF = 160
    def poll_loads():
        for t in range(8):
            A(f"buffer_load_dwordx4 v[{OF+4*t}:{OF+4*t+3}], v18, {srd(WS_)}, {sSO} offen offset:{t*64} sc1")
        A(f"buffer_load_dwordx2 v[192:193], v19, {srd(WS_)}, {sSO} offen offset:1024 sc1")
    poll_loads()
    A(f"s_lshl_b32 {sT0}, {sWV}, 14")
    A(f"v_add_u32 v21, {sT0}, v10")
    for f in range(16):
        A(f"ds_read_b64_tr_b16 v[{96+4*f}:{97+4*f}], v21 offset:{WO_LDS+f*1024}")
        A(f"ds_read_b64_tr_b16 v[{98+4*f}:{99+4*f}], v21 offset:{WO_LDS+f*1024+128}")
        if f % 4 == 3: A("s_waitcnt lgkmcnt(4)")
    A(f"s_mov_b32 {sT1}, 0")
    A("s_branch L_pcheck")
    A("L_ppoll:")
    poll_loads()
    A(f"s_add_u32 {sT1}, {sT1}, 1")
    A(f"s_cmp_gt_u32 {sT1}, {SPIN}")
    A("s_cbranch_scc1 L_ppoll_x")
    A("L_pcheck:")
    A("s_waitcnt vmcnt(0)")
    A(f"v_max3_u32 v22, v{OF}, v{OF+1}, v{OF+2}")
    for i in range(OF+3, OF+33, 2):
        A(f"v_max3_u32 v22, v22, v{i}, v{i+1}")
    A("v_max_u32 v22, v22, v193")
    A("v_cmp_eq_u32 vcc, -1, v22")
    A("s_and_b64 exec, exec, vcc")
    A("s_cbranch_execnz L_ppoll")
    A("L_ppoll_x:")
    A("s_mov_b64 exec, -1")
    A("s_waitcnt vmcnt(0) lgkmcnt(0)")
    stamp(12)
    for t in range(8):
        for h in range(2):
            c = "0" if t == 0 else f"v[{24+4*h}:{27+4*h}]"
            f = h*8 + t
            A(f"v_mfma_f32_16x16x32_bf16 v[{24+4*h}:{27+4*h}], v[{96+4*f}:{99+4*f}], v[{OF+4*t}:{OF+4*t+3}], {c}")
    A("v_mov_b32 v32, v192")
    for mode in ["quad_perm:[1,0,3,2]", "quad_perm:[2,3,0,1]"]:
        A("s_nop 1")
        A(f"v_max_f32_dpp v32, v32, v32 {mode} row_mask:0xf bank_mask:0xf")
    A("v_sub_f32 v32, v192, v32")
    A("v_exp_f32 v32, v32")
    A("s_nop 0")
    A("v_mul_f32 v33, v32, v193")
    for mode in ["quad_perm:[1,0,3,2]", "quad_perm:[2,3,0,1]"]:
        A("s_nop 1")
        A(f"v_add_f32_dpp v33, v33, v33 {mode} row_mask:0xf bank_mask:0xf")
    A("v_rcp_f32 v33, v33")
    A("v_cmp_eq_u32 vcc, 1, v20")
    A("v_mul_f32 v32, v32, v33")
    A("s_nop 4")
    for r in range(4): A(f"v_cndmask_b32 v{24+r}, v{24+r}, v{28+r}, vcc")
    for r in range(4): A(f"v_mul_f32 v{24+r}, v{24+r}, v32")
    for mode in ["quad_perm:[1,0,3,2]", "quad_perm:[2,3,0,1]", "row_half_mirror"]:
        A("s_nop 1")
        for r in range(4):
            A(f"v_add_f32_dpp v{24+r}, v{24+r}, v{24+r} {mode} row_mask:0xf bank_mask:0xf")
    A(f"s_lshl_b32 {sT0}, {sWV}, 6")
    A(f"s_add_u32 {sT0}, {sT0}, {RED_LDS}")
    A("v_lshlrev_b32 v21, 4, v8")
    A(f"v_add_u32 v21, {sT0}, v21")
    A("s_mov_b32 exec_lo, 0x00010001\ns_mov_b32 exec_hi, 0x00010001")
    A("ds_write_b128 v21, v[24:27]")
    A("s_mov_b64 exec, -1")
    A("s_waitcnt lgkmcnt(0)")
    stamp(13)
    A("s_barrier")
    A(f"s_cmp_eq_u32 {sWV}, 0")
    A("s_cbranch_scc0 L_fin")
    A("v_lshlrev_b32 v21, 7, v8")
    A("v_lshl_add_u32 v21, v7, 2, v21")
    A(f"v_add_u32 v21, {RED_LDS}, v21")
    A(f"ds_read_b32 v24, v21")
    A(f"ds_read_b32 v25, v21 offset:64")
    A("v_lshlrev_b32 v22, 2, v7")
    A(f"v_add_u32 v22, {G_LDS}, v22")
    A(f"ds_read_b32 v26, v22")
    A(f"s_mul_i32 {sSO}, {sB}, 896")
    A(f"s_lshl_b32 {sT0}, {sCS}, 5")
    A(f"s_add_u32 {sSO}, {sSO}, {sT0}")
    A("v_lshlrev_b32 v22, 1, v7")
    A("s_waitcnt lgkmcnt(0)")
    A("v_add_f32 v24, v24, v25")
    xreduce(24, 25, "v_add_f32")
    A("v_cvt_pk_bf16_f32 v24, v24, v24")
    A("v_lshlrev_b32 v24, 16, v24")
    A("v_mul_f32 v24, v24, v26")
    A("v_cvt_pk_bf16_f32 v24, v24, v24")
    A("v_lshlrev_b32 v24, 16, v24")
    A("v_add_f32 v24, v14, v24")
    A("v_cvt_pk_bf16_f32 v24, v24, v24")
    A("s_mov_b64 exec, 0xffff")
    A(f"buffer_store_short v24, v22, {srd(OUT_)}, {sSO} offen")
    A("s_mov_b64 exec, -1")
    A("L_fin:")
    if TS:
        stamp(14)
        A(f"v_writelane_b32 v15, s62, 15")
        A(f"s_lshl_b32 {sT0}, {sWG}, 3")
        A(f"s_add_u32 {sT0}, {sT0}, {sWV}")
        A(f"s_lshl_b32 {sSO}, {sT0}, 6")
        A(f"s_add_u32 {sSO}, {sSO}, {WS_TS}")
        A("v_lshlrev_b32 v21, 2, v0")
        A("s_mov_b64 exec, 0xffff")
        A(f"buffer_store_dword v15, v21, {srd(WS_)}, {sSO} offen")
    A("L_end:")
    A("s_endpgm")

    hdr = open("recurrent_scan__gqa_block_cached__dense_activation_relu__decode.s.ref").read().split("; Override launch geometry")[0]
    out = hdr
    out += f"; @launch grid=(256,1,1) block=(512,1,1) lds={LDS_TOTAL}\n"
    out += '.amdgcn_target "amdgcn-amd-amdhsa--gfx950"\n.text\n'
    out += f".globl {NAME}\n.p2align 8\n.type {NAME},@function\n{NAME}:\n"
    out += "\n".join(g.L) + "\n"
    out += f""".section .rodata,"a"
.p2align 6
.amdhsa_kernel {NAME}
  .amdhsa_next_free_vgpr 256
  .amdhsa_next_free_sgpr 102
  .amdhsa_accum_offset 256
  .amdhsa_group_segment_fixed_size 0
  .amdhsa_kernarg_size 88
  .amdhsa_user_sgpr_count 2
  .amdhsa_user_sgpr_kernarg_segment_ptr 1
  .amdhsa_system_sgpr_workgroup_id_x 1
.end_amdhsa_kernel
"""
    return out, LDS_TOTAL

if __name__ == "__main__":
    opts = {}
    outp = "recurrent_scan__gqa_block_cached__dense_activation_relu__decode.s"
    for a in sys.argv[1:]:
        if a.startswith("-o="): outp = a[3:]
        else:
            k, v = a.split("=")
            opts[k] = int(v) if v.lstrip("-").isdigit() else v
    s, lds = build(opts)
    open(outp, "w").write(s)
    print("wrote", outp, "lds", lds)
```

```python
import sys, math, struct

NAME = "recurrent_scan__gqa_block_cached__dense_activation_relu__decode_kernel"
def f2u(f): return struct.unpack("<I", struct.pack("<f", f))[0]

class Gen:
    def __init__(self):
        self.L = []; self.vm = []; self.uid = 0
    def A(self, s):
        for line in s.split("\n"):
            t = line.strip()
            self.L.append(t if t.endswith(":") else "  " + t)
    def vmem(self, s, tag=None):
        self.A(s); self.vm.append(tag)
    def wait_tag(self, tag, extra=""):
        idx = max(i for i, t in enumerate(self.vm) if t == tag)
        n = len(self.vm) - 1 - idx
        assert n <= 63, n
        self.A(f"s_waitcnt vmcnt({n}) {extra}".strip())
    def lab(self, p):
        self.uid += 1
        return f"L_{p}_{self.uid}"

def build(opts):
    TS = opts.get("ts", 0)
    KVF = opts.get("kvflags", "nt")
    WF = opts.get("wflags", "")
    WOF = opts.get("woflags", WF)
    NSLOT = opts.get("nslot", 5)
    SPIN = opts.get("spin", 200000)
    NPRE = opts.get("npre", 4)
    THRESH = opts.get("thresh", 6)
    g = Gen(); A = g.A

    WO_LDS = 0
    WQ_LDS = 0
    W1_LDS = 16384
    W2_LDS = W1_LDS + 57344
    XN_LDS = 131072
    XN_STR = 912
    Q_LDS = XN_LDS + 8*XN_STR
    H_LDS = Q_LDS + 1024
    H_STR = 144
    ST_LDS = H_LDS + 2304
    G_LDS = ST_LDS + 128
    RED_LDS = G_LDS + 128
    SY_LDS = RED_LDS + 512
    CB_LDS = SY_LDS + 64
    LDS_TOTAL = CB_LDS + 16384
    assert LDS_TOTAL <= 163840 and CB_LDS % 16 == 0
    WS_EP = 0
    WS_Q = 0x1000
    WS_FP = 0x40000
    WS_OP = 0x110000
    OP_STR = 2176
    WS_TS = 0x1A0000
    WS_SIZE = 0x200000
    assert WS_OP + 256*OP_STR <= WS_TS

    CSC = math.log2(math.e) / 16.0
    sWG, sWV, sHKV, sIDX, sB, sSPL = "s2", "s3", "s4", "s5", "s6", "s7"
    K_, V_, X_, WQ_, W1_, W2_, WO_, WS_, OUT_ = 8, 12, 16, 20, 24, 28, 32, 36, 44
    def srd(n): return f"s[{n}:{n+3}]"
    sP, sHS, sFC, sFV, sCS, sSLOT, sKOFF, sC = "s86", "s87", "s88", "s89", "s90", "s91", "s92", "s93"
    sTAG = "s[94:95]"; sTAG0, sTAG1 = "s94", "s95"
    sT0, sT1, sT2, sT3 = "s48", "s49", "s50", "s51"
    sSO = "s52"; sSO2 = "s53"; sCNT = "s54"

    def stamp(i):
        if not TS: return
        A(f"s_memrealtime s[60:61]")
        A("s_waitcnt lgkmcnt(0)")
        A(f"v_writelane_b32 v15, s60, {i}")

    def xreduce(v, t, op="v_add_f32"):
        A(f"v_mov_b32 v{t}, v{v}")
        A("s_nop 1")
        A(f"v_permlane16_swap_b32 v{v}, v{t}")
        A("s_nop 1")
        A(f"{op} v{v}, v{v}, v{t}")
        A(f"v_mov_b32 v{t}, v{v}")
        A("s_nop 1")
        A(f"v_permlane32_swap_b32 v{v}, v{t}")
        A("s_nop 1")
        A(f"{op} v{v}, v{v}, v{t}")
    def allreduce(v, t, op="v_add_f32"):
        for mode in ["quad_perm:[1,0,3,2]", "quad_perm:[2,3,0,1]", "row_half_mirror", "row_mirror"]:
            A("s_nop 1")
            A(f"{op}_dpp v{v}, v{v}, v{v} {mode} row_mask:0xf bank_mask:0xf")
        xreduce(v, t, op)
    def lds_wait_ge(off, val, vt, sleep=2):
        l0 = g.lab("lw"); l1 = g.lab("lwx")
        A(f"v_mov_b32 v{vt}, {SY_LDS+off}")
        A(f"s_mov_b32 {sCNT}, 0")
        A(f"{l0}:")
        A(f"ds_read_b32 v{vt+1}, v{vt}")
        A(f"s_add_u32 {sCNT}, {sCNT}, 1")
        A(f"s_cmp_gt_u32 {sCNT}, {SPIN}")
        A(f"s_cbranch_scc1 {l1}")
        A("s_waitcnt lgkmcnt(0)")
        A(f"v_cmp_le_u32 vcc, {val}, v{vt+1}")
        A(f"s_cbranch_vccnz {l1}")
        A(f"s_sleep {sleep}")
        A(f"s_branch {l0}")
        A(f"{l1}:")
        A("s_waitcnt lgkmcnt(0)")
    def lds_set(off, vt):
        A(f"v_mov_b32 v{vt}, {SY_LDS+off}")
        A(f"v_mov_b32 v{vt+1}, 1")
        A("s_waitcnt lgkmcnt(0)")
        A(f"ds_write_b32 v{vt}, v{vt+1}")

    A(f"s_cmp_ge_u32 {sWG}, 256")
    A("s_cbranch_scc1 L_end")
    A("s_setprio 3")
    A("s_load_dwordx16 s[64:79], s[0:1], 0")
    A("s_load_dwordx4 s[80:83], s[0:1], 64")
    A("s_load_dwordx2 s[84:85], s[0:1], 80")
    if TS:
        A("v_mov_b32 v15, 0")
        A("s_memrealtime s[62:63]")
    A("v_lshrrev_b32 v1, 6, v0")
    A("v_and_b32 v0, 63, v0")
    A(f"s_and_b32 {sHKV}, {sWG}, 7")
    A(f"v_readfirstlane_b32 {sWV}, v1")
    A(f"s_lshr_b32 {sIDX}, {sWG}, 3")
    A(f"s_and_b32 {sB}, {sIDX}, 7")
    A(f"s_lshr_b32 {sSPL}, {sIDX}, 3")
    A(f"s_lshl_b32 {sP}, {sHKV}, 5")
    A(f"s_add_u32 {sP}, {sP}, {sIDX}")
    A(f"s_lshl_b32 {sSLOT}, {sB}, 3")
    A(f"s_add_u32 {sSLOT}, {sSLOT}, {sHKV}")
    A(f"s_lshl_b32 {sSLOT}, {sSLOT}, 2")
    A(f"s_add_u32 {sSLOT}, {sSLOT}, {sSPL}")
    A(f"s_lshl_b32 {sT2}, {sSLOT}, 19")
    A(f"s_lshl_b32 {sKOFF}, {sWV}, 13")
    A("v_and_b32 v7, 15, v0")
    A("v_lshrrev_b32 v8, 4, v0")
    A(f"s_mul_i32 {sT3}, {sWV}, 896")
    A(f"v_lshlrev_b32 v9, 4, v0")
    A(f"v_add_u32 v9, {sT3}, v9")
    A("v_mov_b32 v10, 0x7fffff00")
    A("v_cmp_gt_u32 vcc, 56, v0")
    A("v_lshrrev_b32 v11, 1, v0")
    A("v_lshlrev_b32 v11, 13, v11")
    A("v_cndmask_b32 v9, v10, v9, vcc")
    A("v_and_b32 v12, 1, v0")
    A("v_lshl_add_u32 v11, v12, 4, v11")
    A("v_lshlrev_b32 v1, 9, v7")
    A("v_lshl_add_u32 v1, v8, 4, v1")
    A("s_waitcnt lgkmcnt(0)")
    A(f"s_load_dwordx2 {sTAG}, s[84:85], {WS_EP}")
    A(f"s_mov_b32 s{X_}, s64\ns_mov_b32 s{X_+1}, s65\ns_mov_b32 s{X_+2}, 7168\ns_mov_b32 s{X_+3}, 0x20000")
    A(f"s_lshl_b32 {sT0}, {sP}, 5")
    A(f"s_add_u32 s{WQ_}, s70, {sT0}\ns_addc_u32 s{WQ_+1}, s71, 0\ns_sub_u32 s{WQ_+2}, 3670016, {sT0}\ns_mov_b32 s{WQ_+3}, 0x20000")
    g.vmem(f"buffer_load_dwordx4 v[16:19], v9, {srd(X_)}, 0 offen", "x")
    for i in range(2):
        A(f"s_add_u32 {sT0}, {sWV}, {8*i}")
        A(f"s_lshl_b32 {sT1}, {sT0}, 10")
        A(f"s_mov_b32 m0, {sT1}")
        A(f"s_lshl_b32 {sSO}, {sT0}, 18")
        g.vmem(f"buffer_load_dwordx4 v11, {srd(WQ_)}, {sSO} offen lds {WF}", "wq")
    A(f"s_add_u32 s{K_}, s66, {sT2}\ns_addc_u32 s{K_+1}, s67, 0\ns_mov_b32 s{K_+2}, 0x80000\ns_mov_b32 s{K_+3}, 0x20000")

    RING = 96
    def tile_loads(n, lo=0, hi=8):
        slot = n % NSLOT
        base = RING + slot*32
        t = n % 8
        A(f"s_add_u32 {sSO}, {sKOFF}, {t*65536}")
        for i in range(lo, hi):
            d = base + i*4
            if n < 8:
                g.vmem(f"buffer_load_dwordx4 v[{d}:{d+3}], v1, {srd(K_)}, {sSO} offen offset:{i*64} {KVF}", f"t{n}")
            else:
                g.vmem(f"buffer_load_dwordx4 v[{d}:{d+3}], v2, {srd(V_)}, {sSO} offen offset:{(i//2)*512+(i%2)*256} {KVF}", f"t{n}")
    A(f"s_cmp_lt_u32 {sWV}, 2")
    A("s_cbranch_scc1 L_front_noload")
    A("s_setprio 1")
    tile_loads(0, 0, NPRE)
    A("L_front_noload:")
    A(f"s_add_u32 s{V_}, s68, {sT2}\ns_addc_u32 s{V_+1}, s69, 0\ns_mov_b32 s{V_+2}, 0x80000\ns_mov_b32 s{V_+3}, 0x20000")
    A(f"s_mul_i32 {sT0}, {sIDX}, 37")
    A(f"s_lshr_b32 {sT0}, {sT0}, 8")
    A(f"s_mul_i32 {sT1}, {sT0}, 7")
    A(f"s_sub_u32 {sFC}, {sIDX}, {sT1}")
    A(f"s_lshl_b32 {sHS}, {sT0}, 3")
    A(f"s_add_u32 {sHS}, {sHS}, {sHKV}")
    A(f"s_cmp_lt_u32 {sHS}, 28")
    A(f"s_cselect_b32 {sFV}, 1, 0")
    A(f"s_lshl_b32 {sCS}, {sHKV}, 2")
    A(f"s_add_u32 {sCS}, {sCS}, {sSPL}")
    A(f"s_mov_b32 {sC}, 0x{f2u(CSC):08x}")
    A(f"s_lshl_b32 {sT0}, {sHS}, 7")
    A(f"s_add_u32 s{W1_}, s76, {sT0}\ns_addc_u32 s{W1_+1}, s77, 0\ns_sub_u32 {sT1}, 1605632, {sT0}")
    A(f"s_cmp_eq_u32 {sFV}, 1\ns_cselect_b32 s{W1_+2}, {sT1}, 0\ns_mov_b32 s{W1_+3}, 0x20000")
    A(f"s_mul_i32 {sT0}, {sHS}, 57344\ns_lshl_b32 {sT1}, {sFC}, 7\ns_add_u32 {sT0}, {sT0}, {sT1}")
    A(f"s_add_u32 s{W2_}, s78, {sT0}\ns_addc_u32 s{W2_+1}, s79, 0\ns_sub_u32 {sT1}, 1605632, {sT0}")
    A(f"s_cmp_eq_u32 {sFV}, 1\ns_cselect_b32 s{W2_+2}, {sT1}, 0\ns_mov_b32 s{W2_+3}, 0x20000")
    A(f"s_lshl_b32 {sT0}, {sCS}, 5")
    A(f"s_add_u32 s{WO_}, s72, {sT0}\ns_addc_u32 s{WO_+1}, s73, 0\ns_sub_u32 {sT1}, 3670016, {sT0}")
    A(f"s_cmp_lt_u32 {sHKV}, {0 if opts.get('nowo') else 7}\ns_cselect_b32 s{WO_+2}, {sT1}, 0\ns_mov_b32 s{WO_+3}, 0x20000")
    A(f"s_mov_b32 s{WS_}, s84\ns_mov_b32 s{WS_+1}, s85\ns_mov_b32 s{WS_+2}, {WS_SIZE}\ns_mov_b32 s{WS_+3}, 0x20000")
    A(f"s_mov_b32 s{OUT_}, s80\ns_mov_b32 s{OUT_+1}, s81\ns_mov_b32 s{OUT_+2}, 7168\ns_mov_b32 s{OUT_+3}, 0x20000")
    A("v_lshlrev_b32 v2, 11, v8")
    A("v_lshl_add_u32 v2, v7, 4, v2")
    A("v_and_b32 v9, 1, v0")
    A("v_lshlrev_b32 v9, 4, v9")
    A("v_mov_b32 v10, 0xffff")
    A("v_lshlrev_b32 v9, v9, v10")
    A("v_bfe_u32 v10, v0, 1, 2")
    for i in range(4):
        A(f"v_cmp_eq_u32 vcc, {i}, v10")
        A("s_nop 1")
        A(f"v_cndmask_b32 v{3+i}, 0, v9, vcc")
    A(f"v_mov_b32 v20, {SY_LDS}\nv_mov_b32 v24, 0\nv_mov_b32 v25, 0\nv_mov_b32 v26, 0\nv_mov_b32 v27, 0")
    A("ds_write_b128 v20, v[24:27]")
    A("ds_write_b128 v20, v[24:27] offset:16")
    A(f"s_cmp_lt_u32 {sWV}, 2")
    A("s_cbranch_scc1 L_wx0")
    A(f"s_waitcnt vmcnt({2+NPRE})")
    A("s_branch L_front_ln")
    A("L_wx0:")
    A(f"s_waitcnt vmcnt(2)")
    A("L_front_ln:")
    stamp(0)
    for i in range(4):
        A(f"v_lshlrev_b32 v{24+2*i}, 16, v{16+i}")
        A(f"v_and_b32 v{25+2*i}, 0xffff0000, v{16+i}")
    A("v_add_f32 v32, v24, v25\nv_add_f32 v33, v26, v27\nv_add_f32 v34, v28, v29\nv_add_f32 v35, v30, v31")
    A("v_add_f32 v32, v32, v33\nv_add_f32 v34, v34, v35\nv_add_f32 v32, v32, v34")
    allreduce(32, 33)
    A(f"v_mul_f32 v32, 0x{f2u(1.0/448):08x}, v32")
    for i in range(8): A(f"v_sub_f32 v{36+i}, v{24+i}, v32")
    A("v_mul_f32 v34, v36, v36")
    for i in range(1, 8): A(f"v_fmac_f32 v34, v{36+i}, v{36+i}")
    A("v_cmp_gt_u32 vcc, 56, v0")
    A("s_nop 1")
    A("v_cndmask_b32 v34, 0, v34, vcc")
    allreduce(34, 33)
    A(f"v_mul_f32 v34, 0x{f2u(1.0/448):08x}, v34")
    A("v_cvt_pk_bf16_f32 v33, v32, v34")
    A("v_lshlrev_b32 v32, 16, v33")
    A("v_and_b32 v34, 0xffff0000, v33")
    A(f"v_add_f32 v34, 0x{f2u(1e-5):08x}, v34")
    A("v_cvt_pk_bf16_f32 v34, v34, v34")
    A("v_lshlrev_b32 v34, 16, v34")
    A("v_sqrt_f32 v34, v34")
    A("s_nop 0")
    A("v_cvt_pk_bf16_f32 v34, v34, v34")
    A("v_lshlrev_b32 v34, 16, v34")
    A("v_rcp_f32 v34, v34")
    for i in range(8): A(f"v_sub_f32 v{36+i}, v{24+i}, v32")
    for i in range(4): A(f"v_cvt_pk_bf16_f32 v{44+i}, v{36+2*i}, v{37+2*i}")
    for i in range(4):
        A(f"v_lshlrev_b32 v{36+2*i}, 16, v{44+i}")
        A(f"v_and_b32 v{37+2*i}, 0xffff0000, v{44+i}")
    for i in range(8): A(f"v_mul_f32 v{36+i}, v{36+i}, v34")
    for i in range(4): A(f"v_cvt_pk_bf16_f32 v{44+i}, v{36+2*i}, v{37+2*i}")
    A(f"s_mul_i32 {sT0}, {sWV}, {XN_STR}")
    A(f"s_add_u32 {sT0}, {sT0}, {XN_LDS}")
    A(f"v_lshlrev_b32 v9, 4, v0")
    A(f"v_add_u32 v9, {sT0}, v9")
    A("s_mov_b32 exec_lo, -1\ns_mov_b32 exec_hi, 0x00ffffff")
    A("ds_write_b128 v9, v[44:47]")
    A("s_mov_b64 exec, -1")
    A("v_and_b32 v9, 7, v0")
    A(f"v_mul_u32_u24 v9, {XN_STR}, v9")
    A("v_lshl_add_u32 v9, v8, 4, v9")
    A(f"v_add_u32 v9, {XN_LDS}, v9")
    A("v_lshrrev_b32 v10, 2, v7")
    A("v_lshl_add_u32 v10, v8, 3, v10")
    A("v_and_b32 v12, 3, v7")
    A("v_lshlrev_b32 v12, 3, v12")
    A("v_lshl_add_u32 v11, v10, 7, v12")
    A(f"v_add_u32 v11, {W1_LDS}, v11")
    A("v_lshl_add_u32 v10, v10, 5, v12")
    A(f"s_cmp_lt_u32 {sWV}, 2")
    A("s_cbranch_scc1 L_b1_01")
    A(f"s_waitcnt vmcnt({NPRE}) lgkmcnt(0)")
    A(f"s_add_u32 {sTAG0}, {sTAG0}, 1")
    A("s_barrier")
    tile_loads(0, NPRE, 8)
    for n in range(1, NSLOT): tile_loads(n)
    A("s_branch L_wait_q")
    A("L_b1_01:")
    A(f"s_waitcnt vmcnt(0) lgkmcnt(0)")
    A(f"s_add_u32 {sTAG0}, {sTAG0}, 1")
    A("s_barrier")
    stamp(1)
    A(f"s_cmp_eq_u32 {sWV}, 0")
    A("s_cbranch_scc1 L_svc")
    A("s_setprio 2")
    A(f"s_cmp_eq_u32 {sFV}, 1")
    A("s_cbranch_scc0 L_ffn_done")
    A("v_lshrrev_b32 v14, 3, v0")
    A("v_and_b32 v13, 7, v0")
    A("v_lshlrev_b32 v13, 4, v13")
    A("v_mul_u32_u24 v12, 3584, v14")
    A("v_add_u32 v12, v12, v13")
    A("v_mul_u32_u24 v14, 896, v14")
    A("v_add_u32 v13, v14, v13")
    for i in range(56):
        A(f"s_mov_b32 m0, {W1_LDS + i*1024}")
        A(f"s_mov_b32 {sSO}, {i*28672}")
        A(f"buffer_load_dwordx4 v12, {srd(W1_)}, {sSO} offen lds {WF}")
        if i == 40: A("s_waitcnt vmcnt(30)")
    for i in range(8):
        A(f"s_mov_b32 m0, {W2_LDS + i*1024}")
        A(f"s_mov_b32 {sSO}, {i*7168}")
        A(f"buffer_load_dwordx4 v13, {srd(W2_)}, {sSO} offen lds {WF}")
    stamp(2)
    A("s_waitcnt vmcnt(0)")
    stamp(3)
    def ffn_issue(t):
        b = 32 + (t % 3)*20
        A(f"ds_read_b128 v[{b}:{b+3}], v9 offset:{t*64}")
        for ct in range(4):
            A(f"ds_read_b64_tr_b16 v[{b+4+ct*4}:{b+5+ct*4}], v11 offset:{t*4096+ct*32}")
            A(f"ds_read_b64_tr_b16 v[{b+6+ct*4}:{b+7+ct*4}], v11 offset:{t*4096+ct*32+512}")
    ffn_issue(0)
    for t in range(14):
        if t+1 < 14:
            A("s_waitcnt lgkmcnt(4)")
            ffn_issue(t+1)
            A("s_waitcnt lgkmcnt(9)")
        else:
            A("s_waitcnt lgkmcnt(0)")
        b = 32 + (t % 3)*20
        for ct in range(4):
            c = "0" if t == 0 else f"v[{16+ct*4}:{19+ct*4}]"
            A(f"v_mfma_f32_16x16x32_bf16 v[{16+ct*4}:{19+ct*4}], v[{b+4+ct*4}:{b+7+ct*4}], v[{b}:{b+3}], {c}")
    A("s_nop 7")
    A(f"v_mul_u32_u24 v12, {H_STR}, v7")
    A("v_lshl_add_u32 v13, v8, 3, v12")
    A(f"v_add_u32 v13, {H_LDS}, v13")
    A("v_lshl_add_u32 v12, v8, 4, v12")
    A(f"v_add_u32 v12, {H_LDS}, v12")
    for ct in range(4):
        for r in range(4): A(f"v_max_f32 v{16+ct*4+r}, 0, v{16+ct*4+r}")
        A(f"v_cvt_pk_bf16_f32 v{16+ct*4}, v{16+ct*4}, v{17+ct*4}")
        A(f"v_cvt_pk_bf16_f32 v{17+ct*4}, v{18+ct*4}, v{19+ct*4}")
        A(f"ds_write_b64 v13, v[{16+ct*4}:{17+ct*4}] offset:{ct*32}")
    A("s_waitcnt lgkmcnt(0)")
    A("ds_read_b128 v[32:35], v12")
    A("ds_read_b128 v[36:39], v12 offset:64")
    D2 = W2_LDS - W1_LDS
    for t in range(2):
        for ct in range(4):
            b = 40 + (t*4+ct)*4
            A(f"ds_read_b64_tr_b16 v[{b}:{b+1}], v11 offset:{D2+t*4096+ct*32}")
            A(f"ds_read_b64_tr_b16 v[{b+2}:{b+3}], v11 offset:{D2+t*4096+ct*32+512}")
        A("s_waitcnt lgkmcnt(0)")
    for t in range(2):
        for ct in range(4):
            b = 40 + (t*4+ct)*4
            gb = [72, 80, 88, 16][ct]
            c = "0" if t == 0 else f"v[{gb+2}:{gb+5}]"
            A(f"v_mfma_f32_16x16x32_bf16 v[{gb+2}:{gb+5}], v[{b}:{b+3}], v[{32+t*4}:{35+t*4}], {c}")
    for ct in range(4):
        gb = [72, 80, 88, 16][ct]
        A(f"v_mov_b32 v{gb}, {sTAG0}\nv_mov_b32 v{gb+1}, {sTAG1}\nv_mov_b32 v{gb+6}, {sTAG0}\nv_mov_b32 v{gb+7}, {sTAG1}")
    A("v_mul_u32_u24 v12, 3584, v7")
    A("v_lshl_add_u32 v12, v8, 5, v12")
    A(f"s_mul_i32 {sSO}, {sHS}, {8*3584}")
    A(f"s_lshl_b32 {sT0}, {sFC}, 9")
    A(f"s_add_u32 {sSO}, {sSO}, {sT0}")
    A(f"s_add_u32 {sSO}, {sSO}, {WS_FP}")
    A("s_mov_b32 exec_lo, 0x00ff00ff\ns_mov_b32 exec_hi, 0x00ff00ff")
    for ct in range(4):
        gb = [72, 80, 88, 16][ct]
        A(f"buffer_store_dwordx4 v[{gb}:{gb+3}], v12, {srd(WS_)}, {sSO} offen offset:{ct*128} sc1")
        A(f"buffer_store_dwordx4 v[{gb+4}:{gb+7}], v12, {srd(WS_)}, {sSO} offen offset:{ct*128+16} sc1")
    A("s_mov_b64 exec, -1")
    A("L_ffn_done:")
    lds_set(4, 12)
    stamp(4)
    A("s_setprio 1")
    g.vm = []
    for n in range(NSLOT): tile_loads(n)
    A("s_branch L_wait_q")

    A("L_svc:")
    def q_issue(t):
        b = 24 + (t % 5)*8
        A(f"ds_read_b128 v[{b}:{b+3}], v9 offset:{t*64}")
        A(f"ds_read_b64_tr_b16 v[{b+4}:{b+5}], v10 offset:{WQ_LDS+t*1024}")
        A(f"ds_read_b64_tr_b16 v[{b+6}:{b+7}], v10 offset:{WQ_LDS+t*1024+128}")
    for t in range(4): q_issue(t)
    for t in range(14):
        rem = min(13, t+3) - t
        A(f"s_waitcnt lgkmcnt({rem*3})")
        b = 24 + (t % 5)*8
        c = "0" if t == 0 else "v[16:19]"
        A(f"v_mfma_f32_16x16x32_bf16 v[16:19], v[{b+4}:{b+7}], v[{b}:{b+3}], {c}")
        if t+4 < 14: q_issue(t+4)
    A("v_lshlrev_b32 v12, 14, v7")
    A("v_lshl_add_u32 v12, v8, 4, v12")
    A(f"s_lshl_b32 {sSO}, {sP}, 6")
    A(f"s_add_u32 {sSO}, {sSO}, {WS_Q}")
    A("s_nop 3")
    A("v_cvt_pk_bf16_f32 v16, v16, v17")
    A("v_cvt_pk_bf16_f32 v17, v18, v19")
    A(f"v_mov_b32 v18, {sTAG0}\nv_mov_b32 v19, {sTAG1}")
    A("s_mov_b32 exec_lo, 0x00ff00ff\ns_mov_b32 exec_hi, 0x00ff00ff")
    A(f"buffer_store_dwordx4 v[16:19], v12, {srd(WS_)}, {sSO} offen sc1")
    A("s_mov_b64 exec, -1")
    stamp(2)
    A(f"s_lshl_b32 {sSO}, {sB}, 14")
    A(f"s_lshl_b32 {sT0}, {sHKV}, 11")
    A(f"s_add_u32 {sSO}, {sSO}, {sT0}")
    A(f"s_add_u32 {sSO}, {sSO}, {WS_Q}")
    A("v_lshlrev_b32 v12, 4, v0")
    A(f"s_mov_b32 {sCNT}, 0")
    A("L_qpoll:")
    A(f"buffer_load_dwordx4 v[24:27], v12, {srd(WS_)}, {sSO} offen sc1")
    A(f"buffer_load_dwordx4 v[28:31], v12, {srd(WS_)}, {sSO} offen offset:1024 sc1")
    A(f"s_add_u32 {sCNT}, {sCNT}, 1")
    A(f"s_cmp_gt_u32 {sCNT}, {SPIN}")
    A("s_cbranch_scc1 L_qpoll_x")
    A("s_waitcnt vmcnt(0)")
    A(f"v_cmp_ne_u64 vcc, {sTAG}, v[26:27]")
    A(f"v_cmp_ne_u64 s[56:57], {sTAG}, v[30:31]")
    A("s_or_b64 vcc, vcc, s[56:57]")
    A("s_and_b64 exec, exec, vcc")
    A("s_cbranch_execnz L_qpoll")
    A("L_qpoll_x:")
    A("s_mov_b64 exec, -1")
    A("s_waitcnt vmcnt(0)")
    stamp(4)
    A("v_lshlrev_b32 v12, 3, v0")
    A(f"v_add_u32 v12, {Q_LDS}, v12")
    A("ds_write_b64 v12, v[24:25]")
    A("ds_write_b64 v12, v[28:29] offset:512")
    lds_set(0, 12)
    A("s_setprio 1")
    g.vm = []
    for n in range(NSLOT): tile_loads(n)
    A("s_waitcnt lgkmcnt(0)")
    A("s_branch L_main")

    A("L_wait_q:")
    lds_wait_ge(0, 1, 12)
    A("L_main:")
    A("v_lshrrev_b32 v13, 3, v7")
    A("v_lshlrev_b32 v13, 9, v13")
    A("v_lshl_add_u32 v13, v8, 4, v13")
    A(f"v_add_u32 v13, {Q_LDS}, v13")
    for i in range(8):
        A(f"ds_read_b128 v[{16+4*i}:{19+4*i}], v13 offset:{i*64}")
    A("s_waitcnt lgkmcnt(0)")
    stamp(6)
    for n in range(8):
        g.wait_tag(f"t{n}")
        base = RING + (n % NSLOT)*32
        for i in range(8):
            c = "0" if i == 0 else f"v[{48+4*n}:{51+4*n}]"
            A(f"v_mfma_f32_16x16x32_bf16 v[{48+4*n}:{51+4*n}], v[{base+4*i}:{base+4*i+3}], v[{16+4*i}:{19+4*i}], {c}")
        if n + NSLOT < 16: tile_loads(n + NSLOT)
    stamp(7)
    A("s_nop 7")
    A("v_max3_f32 v16, v48, v49, v50")
    for i in range(51, 79, 2): A(f"v_max3_f32 v16, v16, v{i}, v{i+1}")
    A("v_max_f32 v16, v16, v79")
    xreduce(16, 18, "v_max_f32")
    A(f"v_mul_f32 v16, {sC}, v16")
    A("v_mov_b32 v17, 0")
    for i in range(32): A(f"v_fma_f32 v{48+i}, v{48+i}, {sC}, -v16")
    for i in range(32): A(f"v_exp_f32 v{48+i}, v{48+i}")
    for i in range(32):
        A(f"v_add_f32 v17, v17, v{48+i}")
        A(f"v_cvt_pk_bf16_f32 v{48+i}, v{48+i}, v{48+i}")
    xreduce(17, 18, "v_add_f32")
    A("v_lshrrev_b32 v18, 1, v8")
    A("v_lshlrev_b32 v18, 10, v18")
    A("v_lshl_add_u32 v18, v7, 5, v18")
    A("v_and_b32 v19, 1, v8")
    A("v_lshl_add_u32 v18, v19, 4, v18")
    A(f"s_lshl_b32 {sT0}, {sWV}, 11")
    A(f"s_add_u32 {sT0}, {sT0}, {CB_LDS}")
    A(f"v_add_u32 v18, {sT0}, v18")
    A("v_lshrrev_b32 v19, 3, v7")
    A("v_lshlrev_b32 v19, 6, v19")
    A(f"s_lshl_b32 {sT0}, {sWV}, 3")
    A(f"s_add_u32 {sT0}, {sT0}, {ST_LDS}")
    A(f"v_add_u32 v19, {sT0}, v19")
    A("ds_write_b64 v19, v[16:17]")
    A(f"v_mov_b32 v20, {SY_LDS+8}")
    A("v_mov_b32 v21, 1")
    def ands(s, t, r):
        for i in range(4): A(f"v_and_b32 v{88+4*s+i}, v{48+4*t+r}, v{3+i}")
    first = [True]
    for t in range(8):
        n = 8 + t
        base = RING + (n % NSLOT)*32
        ands(0, t, 0); ands(1, t, 1)
        g.wait_tag(f"t{n}")
        def pv(s, r):
            for hf in range(2):
                c = "0" if first[0] else f"v[{80+4*hf}:{83+4*hf}]"
                vb = base + (r*2+hf)*4
                A(f"v_mfma_f32_16x16x32_bf16 v[{80+4*hf}:{83+4*hf}], v[{88+4*s}:{91+4*s}], v[{vb}:{vb+3}], {c}")
            first[0] = False
        pv(0, 0); ands(0, t, 2); pv(1, 1); ands(1, t, 3); pv(0, 2); pv(1, 3)
        if n + NSLOT < 16: tile_loads(n + NSLOT)
    stamp(8)
    A("s_setprio 2")
    A("s_nop 6")
    A("ds_write_b128 v18, v[80:83]")
    A("ds_write_b128 v18, v[84:87] offset:512")
    A("s_mov_b64 exec, 1")
    A("s_waitcnt lgkmcnt(0)")
    A("ds_add_rtn_u32 v22, v20, v21")
    A("s_mov_b64 exec, -1")
    A("s_waitcnt lgkmcnt(0)")
    A(f"v_readfirstlane_b32 {sT0}, v22")
    A(f"s_cmp_eq_u32 {sT0}, 7")
    A("s_cbranch_scc0 L_role")
    A("v_lshlrev_b32 v18, 5, v0")
    A(f"v_add_u32 v18, {CB_LDS}, v18")
    A("v_lshrrev_b32 v19, 5, v0")
    A("v_lshlrev_b32 v19, 6, v19")
    A(f"v_add_u32 v19, {ST_LDS}, v19")
    for i in range(4): A(f"ds_read_b128 v[{20+4*i}:{23+4*i}], v19 offset:{16*i}")
    CBR = 96
    for w in range(4):
        A(f"ds_read_b128 v[{CBR+8*w}:{CBR+8*w+3}], v18 offset:{2048*w}")
        A(f"ds_read_b128 v[{CBR+8*w+4}:{CBR+8*w+7}], v18 offset:{2048*w+16}")
    A("s_waitcnt lgkmcnt(8)")
    for w in range(4, 8):
        A(f"ds_read_b128 v[{CBR+8*w}:{CBR+8*w+3}], v18 offset:{2048*w}")
        if w == 7: A("s_waitcnt lgkmcnt(14)")
        A(f"ds_read_b128 v[{CBR+8*w+4}:{CBR+8*w+7}], v18 offset:{2048*w+16}")
    A("v_max3_f32 v16, v20, v22, v24")
    A("v_max3_f32 v16, v16, v26, v28")
    A("v_max3_f32 v16, v16, v30, v32")
    A("v_max_f32 v16, v16, v34")
    for w in range(8): A(f"v_sub_f32 v{20+2*w}, v{20+2*w}, v16")
    for w in range(8): A(f"v_exp_f32 v{20+2*w}, v{20+2*w}")
    A("s_nop 0")
    A("v_mul_f32 v17, v20, v21")
    for w in range(1, 8): A(f"v_fmac_f32 v17, v{20+2*w}, v{21+2*w}")
    A(f"v_mov_b32 v18, {sTAG0}\nv_mov_b32 v19, {sTAG1}")
    A(f"v_mov_b32 v44, {sTAG0}\nv_mov_b32 v45, {sTAG1}\nv_mov_b32 v50, {sTAG0}\nv_mov_b32 v51, {sTAG1}")
    A(f"s_mul_i32 {sSO}, {sSLOT}, {OP_STR}")
    A(f"s_add_u32 {sSO}, {sSO}, {WS_OP}")
    A("v_lshrrev_b32 v53, 5, v0")
    A("v_lshlrev_b32 v53, 4, v53")
    A("s_mov_b32 exec_lo, 1\ns_mov_b32 exec_hi, 1")
    A(f"buffer_store_dwordx4 v[16:19], v53, {srd(WS_)}, {sSO} offen offset:2048 sc1")
    A("s_mov_b64 exec, -1")
    A("v_lshlrev_b32 v52, 5, v0")
    for w in range(8):
        A(f"s_waitcnt lgkmcnt({2*(7-w)})")
        for e in range(8):
            if w == 0: A(f"v_mul_f32 v{36+e}, v20, v{CBR+e}")
            else: A(f"v_fmac_f32 v{36+e}, v{20+2*w}, v{CBR+8*w+e}")
    for e in range(4): A(f"v_cvt_pk_bf16_f32 v{46+e}, v{36+2*e}, v{37+2*e}")
    A(f"buffer_store_dwordx4 v[44:47], v52, {srd(WS_)}, {sSO} offen sc1")
    A(f"buffer_store_dwordx4 v[48:51], v52, {srd(WS_)}, {sSO} offen offset:16 sc1")
    stamp(9)
    A("L_role:")
    A(f"s_cmp_lt_u32 {sWV}, 4")
    A("s_cbranch_scc0 L_fin")
    A(f"s_cmp_lt_u32 {sHKV}, 7")
    A("s_cbranch_scc0 L_fin")
    A("s_setprio 0")
    lds_wait_ge(4, 1, 12)
    A("v_lshrrev_b32 v12, 1, v0")
    A("v_mul_u32_u24 v12, 896, v12")
    A("v_and_b32 v13, 1, v0")
    A("v_lshl_add_u32 v12, v13, 4, v12")
    A(f"s_mul_i32 {sT0}, {sWV}, 458752")
    A(f"s_lshl_b32 {sT1}, {sWV}, 14")
    for ro in range(2):
        for i in range(16):
            A(f"s_add_u32 {sT3}, {sT1}, {WO_LDS + ro*65536 + i*1024}")
            A(f"s_mov_b32 m0, {sT3}")
            A(f"s_add_u32 {sSO}, {sT0}, {ro*4*458752 + i*28672}")
            A(f"buffer_load_dwordx4 v12, {srd(WO_)}, {sSO} offen lds {WOF}")
    A(f"s_cmp_eq_u32 {sWV}, 0")
    A("s_cbranch_scc0 L_role2")
    A("v_lshrrev_b32 v20, 3, v0")
    A(f"v_mul_u32_u24 v20, {8*3584}, v20")
    A("v_and_b32 v21, 7, v0")
    A("v_lshl_add_u32 v20, v21, 4, v20")
    A(f"s_mul_i32 {sSO}, {sB}, 3584")
    A(f"s_lshl_b32 {sT0}, {sCS}, 7")
    A(f"s_add_u32 {sSO}, {sSO}, {sT0}")
    A(f"s_add_u32 {sSO}, {sSO}, {WS_FP}")
    for i in range(1, 4): A(f"v_add_u32 v{20+i}, {i*8*8*3584}, v20")
    A(f"s_mul_i32 {sSO2}, {sB}, 896")
    A(f"s_lshl_b32 {sT0}, {sCS}, 5")
    A(f"s_add_u32 {sSO2}, {sSO2}, {sT0}")
    A("v_lshlrev_b32 v14, 1, v7")
    A(f"buffer_load_ushort v14, v14, {srd(X_)}, {sSO2} offen")
    A(f"s_mov_b32 {sCNT}, 0")
    A("s_mov_b32 s58, 0xaaaaaaaa\ns_mov_b32 s59, 0xaaaaaaaa")
    A("L_fpoll:")
    for i in range(3): A(f"buffer_load_dwordx4 v[{24+4*i}:{27+4*i}], v{20+i}, {srd(WS_)}, {sSO} offen sc1")
    A("s_mov_b32 exec_hi, 0")
    A(f"buffer_load_dwordx4 v[36:39], v23, {srd(WS_)}, {sSO} offen sc1")
    A("s_mov_b32 exec_hi, -1")
    A(f"s_add_u32 {sCNT}, {sCNT}, 1")
    A(f"s_cmp_gt_u32 {sCNT}, {SPIN}")
    A("s_cbranch_scc1 L_fpoll_x")
    A("s_waitcnt vmcnt(0)")
    A("s_mov_b64 s[56:57], 0")
    for i in range(4):
        b = 24+4*i
        A(f"v_cndmask_b32 v40, v{b}, v{b+2}, s[58:59]")
        A(f"v_cndmask_b32 v41, v{b+1}, v{b+3}, s[58:59]")
        A(f"v_cmp_ne_u64 vcc, {sTAG}, v[40:41]")
        if i == 3: A("s_or_b32 s56, s56, vcc_lo")
        else: A("s_or_b64 s[56:57], s[56:57], vcc")
    A("s_cmp_lg_u64 s[56:57], 0")
    A("s_cbranch_scc0 L_fpoll_x")
    A("s_sleep 8")
    A("s_branch L_fpoll")
    A("L_fpoll_x:")
    A("s_waitcnt vmcnt(0)")
    for i in range(4):
        b = 24+4*i
        A(f"v_cndmask_b32 v{40+2*i}, v{b+2}, v{b}, s[58:59]")
        A(f"v_cndmask_b32 v{41+2*i}, v{b+3}, v{b+1}, s[58:59]")
    A("v_cmp_gt_u32 vcc, 32, v0")
    A("v_add_f32 v40, v40, v42\nv_add_f32 v41, v41, v43")
    A("v_cndmask_b32 v46, 0, v46, vcc\nv_cndmask_b32 v47, 0, v47, vcc")
    A("v_add_f32 v44, v44, v46\nv_add_f32 v45, v45, v47")
    A("v_add_f32 v40, v40, v44\nv_add_f32 v41, v41, v45")
    A("s_nop 1")
    A("v_add_f32_dpp v40, v40, v40 row_ror:8 row_mask:0xf bank_mask:0xf")
    A("v_add_f32_dpp v41, v41, v41 row_ror:8 row_mask:0xf bank_mask:0xf")
    xreduce(40, 42, "v_add_f32"); xreduce(41, 42, "v_add_f32")
    A("v_cvt_pk_bf16_f32 v42, v40, v41")
    A("v_lshlrev_b32 v40, 16, v42\nv_and_b32 v41, 0xffff0000, v42")
    for r in range(2): A(f"v_mul_f32 v{42+r}, 0x{f2u(-math.log2(math.e)):08x}, v{40+r}")
    for r in range(2): A(f"v_exp_f32 v{42+r}, v{42+r}")
    A("s_nop 0")
    for r in range(2): A(f"v_add_f32 v{42+r}, 1.0, v{42+r}")
    for r in range(2): A(f"v_rcp_f32 v{42+r}, v{42+r}")
    A("s_nop 0")
    for r in range(2): A(f"v_mul_f32 v{40+r}, v{40+r}, v{42+r}")
    A("v_cvt_pk_bf16_f32 v42, v40, v41")
    A("v_lshlrev_b32 v40, 16, v42\nv_and_b32 v41, 0xffff0000, v42")
    A("v_and_b32 v20, 7, v0")
    A("v_lshlrev_b32 v20, 3, v20")
    A(f"v_add_u32 v20, {G_LDS}, v20")
    A("ds_write_b64 v20, v[40:41]")
    A("v_lshlrev_b32 v14, 16, v14")
    A("v_lshlrev_b32 v20, 2, v7")
    A(f"v_add_u32 v20, {G_LDS+64}, v20")
    A("ds_write_b32 v20, v14")
    A("L_role2:")
    A("s_waitcnt vmcnt(0)")
    stamp(10)
    A(f"s_lshl_b32 {sT0}, {sWV}, 14")
    A(f"v_add_u32 v21, {sT0}, v10")
    A(f"v_add_u32 v22, 65536, v21")
    for ro in range(2):
        for f in range(16):
            b = 96 + 64*ro + 4*f
            A(f"ds_read_b64_tr_b16 v[{b}:{b+1}], v{21+ro} offset:{WO_LDS+f*1024}")
            A(f"ds_read_b64_tr_b16 v[{b+2}:{b+3}], v{21+ro} offset:{WO_LDS+f*1024+128}")
            if f % 4 == 3: A("s_waitcnt lgkmcnt(4)")
    lds_wait_ge(8, THRESH, 12, sleep=8)
    stamp(11)
    A("v_and_b32 v12, 3, v0")
    A("v_bfe_u32 v13, v0, 3, 1")
    A("v_lshl_add_u32 v12, v13, 4, v12")
    A(f"v_mul_u32_u24 v12, {OP_STR}, v12")
    A("v_bfe_u32 v9, v0, 2, 1")
    A("v_lshl_add_u32 v13, v9, 4, v12")
    A("v_lshl_add_u32 v12, v9, 10, v12")
    A("v_lshl_add_u32 v12, v8, 5, v12")
    A(f"s_lshl_b32 {sT0}, {sB}, 3")
    A(f"s_add_u32 {sT0}, {sT0}, {sWV}")
    A(f"s_mul_i32 {sSO}, {sT0}, {4*OP_STR}")
    A(f"s_add_u32 {sSO}, {sSO}, {WS_OP}")
    A(f"s_mov_b32 {sCNT}, 0")
    A("L_ppoll:")
    for t in range(8):
        A(f"buffer_load_dwordx4 v[{16+8*t}:{19+8*t}], v12, {srd(WS_)}, {sSO} offen offset:{t*128} sc1")
        A(f"buffer_load_dwordx4 v[{20+8*t}:{23+8*t}], v12, {srd(WS_)}, {sSO} offen offset:{t*128+16} sc1")
    A(f"buffer_load_dwordx4 v[80:83], v13, {srd(WS_)}, {sSO} offen offset:2048 sc1")
    A(f"s_add_u32 {sCNT}, {sCNT}, 1")
    A(f"s_cmp_gt_u32 {sCNT}, {SPIN}")
    A("s_cbranch_scc1 L_ppoll_x")
    for t in range(8):
        A(f"s_waitcnt vmcnt({16-2*t-1})")
        A(f"v_cmp_ne_u64 vcc, {sTAG}, v[{16+8*t}:{17+8*t}]")
        A(f"v_cmp_ne_u64 s[58:59], {sTAG}, v[{22+8*t}:{23+8*t}]")
        if t == 0: A("s_or_b64 s[56:57], vcc, s[58:59]")
        else:
            A("s_or_b64 s[56:57], s[56:57], vcc")
            A("s_or_b64 s[56:57], s[56:57], s[58:59]")
    A("s_waitcnt vmcnt(0)")
    A(f"v_cmp_ne_u64 vcc, {sTAG}, v[82:83]")
    A("s_or_b64 s[56:57], s[56:57], vcc")
    A("s_and_b64 exec, exec, s[56:57]")
    A("s_cbranch_execnz L_ppoll")
    A("L_ppoll_x:")
    A("s_mov_b64 exec, -1")
    A("s_waitcnt vmcnt(0) lgkmcnt(0)")
    stamp(12)
    DB = 224
    for t in range(8):
        for ro in range(2):
            for h in range(2):
                d = DB + 4*(ro*2+h)
                c = "0" if t == 0 else f"v[{d}:{d+3}]"
                f = 96 + 64*ro + 4*(h*8+t)
                A(f"v_mfma_f32_16x16x32_bf16 v[{d}:{d+3}], v[{f}:{f+3}], v[{18+8*t}:{21+8*t}], {c}")
    A("v_mov_b32 v84, v80")
    for mode in ["quad_perm:[1,0,3,2]", "quad_perm:[2,3,0,1]"]:
        A("s_nop 1")
        A(f"v_max_f32_dpp v84, v84, v84 {mode} row_mask:0xf bank_mask:0xf")
    A("v_sub_f32 v84, v80, v84")
    A("v_exp_f32 v84, v84")
    A("s_nop 0")
    A("v_mul_f32 v85, v84, v81")
    for mode in ["quad_perm:[1,0,3,2]", "quad_perm:[2,3,0,1]"]:
        A("s_nop 1")
        A(f"v_add_f32_dpp v85, v85, v85 {mode} row_mask:0xf bank_mask:0xf")
    A("v_rcp_f32 v85, v85")
    A("s_mov_b32 s56, 0xf0f0f0f0\ns_mov_b32 s57, 0xf0f0f0f0")
    A("s_mov_b32 s58, 0xff00ff00\ns_mov_b32 s59, 0xff00ff00")
    A("v_mul_f32 v84, v84, v85")
    for r in range(4): A(f"v_cndmask_b32 v{DB+r}, v{DB+r}, v{DB+4+r}, s[56:57]")
    for r in range(4): A(f"v_cndmask_b32 v{DB+8+r}, v{DB+8+r}, v{DB+12+r}, s[56:57]")
    for r in range(4): A(f"v_cndmask_b32 v{DB+r}, v{DB+r}, v{DB+8+r}, s[58:59]")
    for r in range(4): A(f"v_mul_f32 v{DB+r}, v{DB+r}, v84")
    for mode in ["quad_perm:[1,0,3,2]", "quad_perm:[2,3,0,1]", "row_half_mirror", "row_mirror"]:
        for r in range(4):
            A(f"v_add_f32_dpp v{DB+r}, v{DB+r}, v{DB+r} {mode} row_mask:0xf bank_mask:0xf")
    A(f"s_lshl_b32 {sT0}, {sWV}, 6")
    A(f"s_add_u32 {sT0}, {sT0}, {RED_LDS}")
    A("v_lshlrev_b32 v21, 4, v8")
    A(f"v_add_u32 v21, {sT0}, v21")
    A(f"v_mov_b32 v20, {SY_LDS+12}")
    A("v_mov_b32 v23, 1")
    A("s_mov_b32 exec_lo, 0x00010001\ns_mov_b32 exec_hi, 0x00010001")
    A(f"ds_write_b128 v21, v[{DB}:{DB+3}]")
    A("s_mov_b64 exec, 1")
    A("s_waitcnt lgkmcnt(0)")
    A("ds_add_rtn_u32 v22, v20, v23")
    A("s_mov_b64 exec, -1")
    A("v_lshlrev_b32 v21, 6, v8")
    A("v_lshl_add_u32 v21, v7, 2, v21")
    A(f"v_add_u32 v21, {RED_LDS}, v21")
    A("v_lshlrev_b32 v23, 2, v7")
    A(f"v_add_u32 v23, {G_LDS}, v23")
    A(f"s_mul_i32 {sSO}, {sB}, 896")
    A(f"s_lshl_b32 {sT1}, {sCS}, 5")
    A(f"s_add_u32 {sSO}, {sSO}, {sT1}")
    A("s_waitcnt lgkmcnt(0)")
    A(f"v_readfirstlane_b32 {sT0}, v22")
    stamp(13)
    A(f"s_cmp_eq_u32 {sT0}, 3")
    A("s_cbranch_scc0 L_fin")
    A(f"ds_read_b32 v24, v21")
    A(f"ds_read_b32 v26, v23")
    A(f"ds_read_b32 v27, v23 offset:64")
    A("v_lshlrev_b32 v22, 1, v7")
    A("s_waitcnt lgkmcnt(0)")
    xreduce(24, 25, "v_add_f32")
    A("v_cvt_pk_bf16_f32 v24, v24, v24")
    A("v_lshlrev_b32 v24, 16, v24")
    A("v_mul_f32 v24, v24, v26")
    A("v_cvt_pk_bf16_f32 v24, v24, v24")
    A("v_lshlrev_b32 v24, 16, v24")
    A("v_add_f32 v24, v27, v24")
    A("v_cvt_pk_bf16_f32 v24, v24, v24")
    A("s_mov_b64 exec, 0xffff")
    A(f"buffer_store_short v24, v22, {srd(OUT_)}, {sSO} offen")
    A("s_mov_b64 exec, -1")
    A(f"s_cmp_eq_u32 {sWG}, 0")
    A("s_cbranch_scc0 L_fin")
    A(f"v_mov_b32 v24, {sTAG0}\nv_mov_b32 v25, {sTAG1}\nv_mov_b32 v22, {WS_EP}")
    A("s_mov_b64 exec, 1")
    A(f"buffer_store_dwordx2 v[24:25], v22, {srd(WS_)}, 0 offen sc1")
    A("s_mov_b64 exec, -1")
    A("L_fin:")
    if TS:
        stamp(14)
        A(f"v_writelane_b32 v15, s62, 15")
        A(f"s_lshl_b32 {sT0}, {sWG}, 3")
        A(f"s_add_u32 {sT0}, {sT0}, {sWV}")
        A(f"s_lshl_b32 {sSO}, {sT0}, 6")
        A(f"s_add_u32 {sSO}, {sSO}, {WS_TS}")
        A("v_lshlrev_b32 v21, 2, v0")
        A("s_mov_b64 exec, 0xffff")
        A(f"buffer_store_dword v15, v21, {srd(WS_)}, {sSO} offen")
    A("L_end:")
    A("s_endpgm")

    hdr = open("recurrent_scan__gqa_block_cached__dense_activation_relu__decode.s.ref").read().split("; Override launch geometry")[0]
    out = hdr
    out += f"; @launch grid=(256,1,1) block=(512,1,1) lds={LDS_TOTAL}\n"
    out += '.amdgcn_target "amdgcn-amd-amdhsa--gfx950"\n.text\n'
    out += f".globl {NAME}\n.p2align 8\n.type {NAME},@function\n{NAME}:\n"
    out += "\n".join(g.L) + "\n"
    out += f""".section .rodata,"a"
.p2align 6
.amdhsa_kernel {NAME}
  .amdhsa_next_free_vgpr 256
  .amdhsa_next_free_sgpr 102
  .amdhsa_accum_offset 256
  .amdhsa_group_segment_fixed_size 0
  .amdhsa_kernarg_size 88
  .amdhsa_user_sgpr_count 2
  .amdhsa_user_sgpr_kernarg_segment_ptr 1
  .amdhsa_system_sgpr_workgroup_id_x 1
.end_amdhsa_kernel
"""
    return out, LDS_TOTAL

if __name__ == "__main__":
    opts = {}
    outp = "recurrent_scan__gqa_block_cached__dense_activation_relu__decode.s"
    for a in sys.argv[1:]:
        if a.startswith("-o="): outp = a[3:]
        else:
            k, v = a.split("=")
            opts[k] = int(v) if v.lstrip("-").isdigit() else v.replace("_", " ")
    s, lds = build(opts)
    open(outp, "w").write(s)
    print("wrote", outp, "lds", lds)
```

```python
import sys, math, struct

NAME = "recurrent_scan__gqa_block_cached__dense_activation_relu__decode_kernel"
def f2u(f): return struct.unpack("<I", struct.pack("<f", f))[0]

class Gen:
    def __init__(self):
        self.L = []; self.uid = 0
    def A(self, s):
        for line in s.split("\n"):
            t = line.strip()
            self.L.append(t if t.endswith(":") else "  " + t)
    def lab(self, p):
        self.uid += 1
        return f"L_{p}_{self.uid}"

def build(opts):
    TS = opts.get("ts", 0)
    KVF = opts.get("kvflags", "nt")
    WF = opts.get("wflags", "")
    WOF = opts.get("woflags", WF)
    SPIN = opts.get("spin", 200000)
    NPRE = opts.get("npre", 1)
    g = Gen(); A = g.A

    WO_LDS = 0
    XN_LDS = 131072
    XN_STR = 912
    Q_LDS = XN_LDS + 8*XN_STR
    H_LDS = Q_LDS + 1024
    H_STR = 144
    ST_LDS = H_LDS + 2304
    G_LDS = ST_LDS + 128
    RED_LDS = G_LDS + 128
    SY_LDS = RED_LDS + 512
    CB_LDS = SY_LDS + 64
    LDS_TOTAL = CB_LDS + 16384
    assert LDS_TOTAL <= 163840 and CB_LDS % 16 == 0
    WS_EP = 0
    WS_Q = 0x1000
    WS_FP = 0x40000
    WS_OP = 0x110000
    OP_STR = 2176
    WS_TS = 0x1A0000
    WS_SIZE = 0x200000

    CSC = math.log2(math.e) / 16.0
    sWG, sWV, sHKV, sIDX, sB, sSPL = "s2", "s3", "s4", "s5", "s6", "s7"
    K_, V_, X_, WQ_, W1_, W2_, WO_, WS_, OUT_ = 8, 12, 16, 20, 24, 28, 32, 36, 44
    def srd(n): return f"s[{n}:{n+3}]"
    sP, sHS, sFC, sFV, sCS, sSLOT, sC = "s86", "s87", "s88", "s89", "s90", "s91", "s93"
    sTAG = "s[94:95]"; sTAG0, sTAG1 = "s94", "s95"
    sT0, sT1, sT2, sT3 = "s48", "s49", "s50", "s51"
    sSO = "s52"; sSO2 = "s53"; sCNT = "s54"; sNX = "s55"; sARR = "s92"
    sAM = "s[96:97]"

    def stamp(i):
        if not TS: return
        A(f"s_memrealtime s[60:61]")
        A("s_waitcnt lgkmcnt(0)")
        A(f"v_writelane_b32 v15, s60, {i}")
    def xreduce(v, t, op="v_add_f32"):
        A(f"v_mov_b32 v{t}, v{v}")
        A("s_nop 1")
        A(f"v_permlane16_swap_b32 v{v}, v{t}")
        A("s_nop 1")
        A(f"{op} v{v}, v{v}, v{t}")
        A(f"v_mov_b32 v{t}, v{v}")
        A("s_nop 1")
        A(f"v_permlane32_swap_b32 v{v}, v{t}")
        A("s_nop 1")
        A(f"{op} v{v}, v{v}, v{t}")
    def allreduce(v, t, op="v_add_f32"):
        for mode in ["quad_perm:[1,0,3,2]", "quad_perm:[2,3,0,1]", "row_half_mirror", "row_mirror"]:
            A("s_nop 1")
            A(f"{op}_dpp v{v}, v{v}, v{v} {mode} row_mask:0xf bank_mask:0xf")
        xreduce(v, t, op)
    def lds_wait_ge(off, val, vt, sleep=2):
        l0 = g.lab("lw"); l1 = g.lab("lwx")
        A(f"v_mov_b32 v{vt}, {SY_LDS+off}")
        A(f"s_mov_b32 {sCNT}, 0")
        A(f"{l0}:")
        A(f"ds_read_b32 v{vt+1}, v{vt}")
        A(f"s_add_u32 {sCNT}, {sCNT}, 1")
        A(f"s_cmp_gt_u32 {sCNT}, {SPIN}")
        A(f"s_cbranch_scc1 {l1}")
        A("s_waitcnt lgkmcnt(0)")
        A(f"v_cmp_le_u32 vcc, {val}, v{vt+1}")
        A(f"s_cbranch_vccnz {l1}")
        A(f"s_sleep {sleep}")
        A(f"s_branch {l0}")
        A(f"{l1}:")
        A("s_waitcnt lgkmcnt(0)")
    def lds_set(off, vt):
        A(f"v_mov_b32 v{vt}, {SY_LDS+off}")
        A(f"v_mov_b32 v{vt+1}, 1")
        A("s_waitcnt lgkmcnt(0)")
        A(f"ds_write_b32 v{vt}, v{vt+1}")
    def lds_inc(off, vt, ret=None):
        A(f"v_mov_b32 v{vt}, {SY_LDS+off}")
        A(f"v_mov_b32 v{vt+1}, 1")
        A("s_mov_b64 exec, 1")
        A("s_waitcnt lgkmcnt(0)")
        if ret:
            A(f"ds_add_rtn_u32 v{vt+1}, v{vt}, v{vt+1}")
            A("s_mov_b64 exec, -1")
            A("s_waitcnt lgkmcnt(0)")
            A(f"v_readfirstlane_b32 {ret}, v{vt+1}")
        else:
            A(f"ds_add_u32 v{vt}, v{vt+1}")
            A("s_mov_b64 exec, -1")

    SLOT = {"A": 128, "B": 192}
    def kloads(sl, so):
        for i in range(8):
            d = SLOT[sl] + i*4
            A(f"buffer_load_dwordx4 v[{d}:{d+3}], v1, {srd(K_)}, {so} offen offset:{i*64} {KVF}")
    def vloads(sl, so):
        for i in range(8):
            d = SLOT[sl] + 32 + i*4
            A(f"buffer_load_dwordx4 v[{d}:{d+3}], v2, {srd(V_)}, {so} offen offset:{(i//2)*512+(i%2)*256} {KVF}")

    A(f"s_cmp_ge_u32 {sWG}, 256")
    A("s_cbranch_scc1 L_end")
    A("s_setprio 3")
    A("s_load_dwordx16 s[64:79], s[0:1], 0")
    A("s_load_dwordx4 s[80:83], s[0:1], 64")
    A("s_load_dwordx2 s[84:85], s[0:1], 80")
    if TS:
        A("v_mov_b32 v15, 0")
        A("s_memrealtime s[62:63]")
    A("v_lshrrev_b32 v1, 6, v0")
    A("v_and_b32 v0, 63, v0")
    A(f"s_and_b32 {sHKV}, {sWG}, 7")
    A(f"v_readfirstlane_b32 {sWV}, v1")
    A(f"s_lshr_b32 {sIDX}, {sWG}, 3")
    A(f"s_and_b32 {sB}, {sIDX}, 7")
    A(f"s_lshr_b32 {sSPL}, {sIDX}, 3")
    A(f"s_lshl_b32 {sP}, {sHKV}, 5")
    A(f"s_add_u32 {sP}, {sP}, {sIDX}")
    A(f"s_lshl_b32 {sSLOT}, {sB}, 3")
    A(f"s_add_u32 {sSLOT}, {sSLOT}, {sHKV}")
    A(f"s_lshl_b32 {sSLOT}, {sSLOT}, 2")
    A(f"s_add_u32 {sSLOT}, {sSLOT}, {sSPL}")
    A(f"s_lshl_b32 {sT2}, {sSLOT}, 19")
    A("v_and_b32 v7, 15, v0")
    A("v_lshrrev_b32 v8, 4, v0")
    A(f"s_mul_i32 {sT3}, {sWV}, 896")
    A(f"v_lshlrev_b32 v9, 4, v0")
    A(f"v_add_u32 v9, {sT3}, v9")
    A("v_mov_b32 v10, 0x7fffff00")
    A("v_cmp_gt_u32 vcc, 56, v0")
    A("v_lshrrev_b32 v11, 1, v0")
    A("v_lshlrev_b32 v11, 13, v11")
    A("v_cndmask_b32 v9, v10, v9, vcc")
    A("v_and_b32 v12, 1, v0")
    A("v_lshl_add_u32 v11, v12, 4, v11")
    A("v_lshlrev_b32 v1, 9, v7")
    A("v_lshl_add_u32 v1, v8, 4, v1")
    A(f"s_lshl_b32 {sT0}, {sP}, 5")
    A(f"s_lshl_b32 {sSO}, {sWV}, 18")
    A(f"s_add_u32 {sSO2}, {sSO}, {8<<18}")
    A(f"s_mov_b32 s{X_+2}, 7168\ns_mov_b32 s{X_+3}, 0x20000")
    A(f"s_sub_u32 s{WQ_+2}, 3670016, {sT0}\ns_mov_b32 s{WQ_+3}, 0x20000")
    A(f"s_mov_b32 s{K_+2}, 0x80000\ns_mov_b32 s{K_+3}, 0x20000")
    A(f"s_lshl_b32 {sT3}, {sWV}, 13")
    A("s_waitcnt lgkmcnt(0)")
    A(f"s_mov_b32 s{X_}, s64\ns_mov_b32 s{X_+1}, s65")
    A(f"s_add_u32 s{WQ_}, s70, {sT0}\ns_addc_u32 s{WQ_+1}, s71, 0")
    A(f"buffer_load_dwordx4 v[16:19], v9, {srd(X_)}, 0 offen")
    A(f"buffer_load_dwordx4 v[64:67], v11, {srd(WQ_)}, {sSO} offen {WF}")
    A(f"buffer_load_dwordx4 v[68:71], v11, {srd(WQ_)}, {sSO2} offen {WF}")
    A(f"s_load_dwordx2 {sTAG}, s[84:85], {WS_EP}")
    A(f"s_add_u32 s{K_}, s66, {sT2}\ns_addc_u32 s{K_+1}, s67, 0")
    if NPRE:
        A(f"s_cmp_lt_u32 {sWV}, 2")
        A("s_cbranch_scc1 L_front_noload")
        A("s_setprio 1")
        kloads("A", sT3)
        A("L_front_noload:")
    A(f"s_add_u32 s{V_}, s68, {sT2}\ns_addc_u32 s{V_+1}, s69, 0\ns_mov_b32 s{V_+2}, 0x80000\ns_mov_b32 s{V_+3}, 0x20000")
    A(f"s_mul_i32 {sT0}, {sIDX}, 37")
    A(f"s_lshr_b32 {sT0}, {sT0}, 8")
    A(f"s_mul_i32 {sT1}, {sT0}, 7")
    A(f"s_sub_u32 {sFC}, {sIDX}, {sT1}")
    A(f"s_lshl_b32 {sHS}, {sT0}, 3")
    A(f"s_add_u32 {sHS}, {sHS}, {sHKV}")
    A(f"s_cmp_lt_u32 {sHS}, 28")
    A(f"s_cselect_b32 {sFV}, 1, 0")
    A(f"s_lshl_b32 {sCS}, {sHKV}, 2")
    A(f"s_add_u32 {sCS}, {sCS}, {sSPL}")
    A(f"s_mov_b32 {sC}, 0x{f2u(CSC):08x}")
    A(f"s_lshl_b32 {sT0}, {sHS}, 7")
    A(f"s_add_u32 s{W1_}, s76, {sT0}\ns_addc_u32 s{W1_+1}, s77, 0\ns_sub_u32 {sT1}, 1605632, {sT0}")
    A(f"s_cmp_eq_u32 {sFV}, 1\ns_cselect_b32 s{W1_+2}, {sT1}, 0\ns_mov_b32 s{W1_+3}, 0x20000")
    A(f"s_mul_i32 {sT0}, {sHS}, 57344\ns_lshl_b32 {sT1}, {sFC}, 7\ns_add_u32 {sT0}, {sT0}, {sT1}")
    A(f"s_add_u32 s{W2_}, s78, {sT0}\ns_addc_u32 s{W2_+1}, s79, 0\ns_sub_u32 {sT1}, 1605632, {sT0}")
    A(f"s_cmp_eq_u32 {sFV}, 1\ns_cselect_b32 s{W2_+2}, {sT1}, 0\ns_mov_b32 s{W2_+3}, 0x20000")
    A(f"s_lshl_b32 {sT0}, {sCS}, 5")
    A(f"s_add_u32 s{WO_}, s72, {sT0}\ns_addc_u32 s{WO_+1}, s73, 0\ns_sub_u32 {sT1}, 3670016, {sT0}")
    A(f"s_cmp_lt_u32 {sHKV}, {0 if opts.get('nowo') else 7}\ns_cselect_b32 s{WO_+2}, {sT1}, 0\ns_mov_b32 s{WO_+3}, 0x20000")
    A(f"s_mov_b32 s{WS_}, s84\ns_mov_b32 s{WS_+1}, s85\ns_mov_b32 s{WS_+2}, {WS_SIZE}\ns_mov_b32 s{WS_+3}, 0x20000")
    A(f"s_mov_b32 s{OUT_}, s80\ns_mov_b32 s{OUT_+1}, s81\ns_mov_b32 s{OUT_+2}, 7168\ns_mov_b32 s{OUT_+3}, 0x20000")
    A("s_mov_b32 s96, 0x00ff00ff\ns_mov_b32 s97, 0xff00ff00")
    A("v_lshlrev_b32 v2, 11, v8")
    A("v_lshl_add_u32 v2, v7, 4, v2")
    A("v_and_b32 v9, 1, v0")
    A("v_lshlrev_b32 v9, 4, v9")
    A("v_mov_b32 v10, 0xffff")
    A("v_lshlrev_b32 v9, v9, v10")
    A("v_bfe_u32 v10, v0, 1, 2")
    for i in range(4):
        A(f"v_cmp_eq_u32 vcc, {i}, v10")
        A("s_nop 1")
        A(f"v_cndmask_b32 v{3+i}, 0, v9, vcc")
    A(f"v_mov_b32 v20, {SY_LDS}\nv_mov_b32 v24, 0\nv_mov_b32 v25, 0\nv_mov_b32 v26, 0\nv_mov_b32 v27, 0\nv_mov_b32 v28, 16\nv_mov_b32 v29, 0\nv_mov_b32 v30, 0\nv_mov_b32 v31, 0")
    A("ds_write_b128 v20, v[24:27]")
    A("ds_write_b128 v20, v[28:31] offset:16")
    if NPRE:
        A(f"s_cmp_lt_u32 {sWV}, 2")
        A("s_cbranch_scc1 L_wx0")
        A(f"s_waitcnt vmcnt(10)")
        A("s_branch L_front_ln")
        A("L_wx0:")
    A(f"s_waitcnt vmcnt(2)")
    A("L_front_ln:")
    stamp(0)
    for i in range(4):
        A(f"v_lshlrev_b32 v{24+2*i}, 16, v{16+i}")
        A(f"v_and_b32 v{25+2*i}, 0xffff0000, v{16+i}")
    A("v_add_f32 v32, v24, v25\nv_add_f32 v33, v26, v27\nv_add_f32 v34, v28, v29\nv_add_f32 v35, v30, v31")
    A("v_add_f32 v32, v32, v33\nv_add_f32 v34, v34, v35\nv_add_f32 v32, v32, v34")
    allreduce(32, 33)
    A(f"v_mul_f32 v32, 0x{f2u(1.0/448):08x}, v32")
    for i in range(8): A(f"v_sub_f32 v{36+i}, v{24+i}, v32")
    A("v_mul_f32 v34, v36, v36")
    for i in range(1, 8): A(f"v_fmac_f32 v34, v{36+i}, v{36+i}")
    A("v_cmp_gt_u32 vcc, 56, v0")
    A("s_nop 1")
    A("v_cndmask_b32 v34, 0, v34, vcc")
    allreduce(34, 33)
    A(f"v_mul_f32 v34, 0x{f2u(1.0/448):08x}, v34")
    A("v_cvt_pk_bf16_f32 v33, v32, v34")
    A("v_lshlrev_b32 v32, 16, v33")
    A("v_and_b32 v34, 0xffff0000, v33")
    A(f"v_add_f32 v34, 0x{f2u(1e-5):08x}, v34")
    A("v_cvt_pk_bf16_f32 v34, v34, v34")
    A("v_lshlrev_b32 v34, 16, v34")
    A("v_sqrt_f32 v34, v34")
    A("s_nop 0")
    A("v_cvt_pk_bf16_f32 v34, v34, v34")
    A("v_lshlrev_b32 v34, 16, v34")
    A("v_rcp_f32 v34, v34")
    for i in range(8): A(f"v_sub_f32 v{36+i}, v{24+i}, v32")
    for i in range(4): A(f"v_cvt_pk_bf16_f32 v{44+i}, v{36+2*i}, v{37+2*i}")
    for i in range(4):
        A(f"v_lshlrev_b32 v{36+2*i}, 16, v{44+i}")
        A(f"v_and_b32 v{37+2*i}, 0xffff0000, v{44+i}")
    for i in range(8): A(f"v_mul_f32 v{36+i}, v{36+i}, v34")
    for i in range(4): A(f"v_cvt_pk_bf16_f32 v{44+i}, v{36+2*i}, v{37+2*i}")
    A(f"s_mul_i32 {sT0}, {sWV}, {XN_STR}")
    A(f"s_add_u32 {sT0}, {sT0}, {XN_LDS}")
    A(f"v_lshlrev_b32 v9, 4, v0")
    A(f"v_add_u32 v9, {sT0}, v9")
    A("s_mov_b32 exec_lo, -1\ns_mov_b32 exec_hi, 0x00ffffff")
    A("ds_write_b128 v9, v[44:47]")
    A("s_mov_b64 exec, -1")
    A("v_and_b32 v9, 7, v0")
    A(f"v_mul_u32_u24 v9, {XN_STR}, v9")
    A("v_lshl_add_u32 v9, v8, 4, v9")
    A(f"v_add_u32 v9, {XN_LDS}, v9")
    A("v_lshrrev_b32 v10, 2, v7")
    A("v_lshl_add_u32 v10, v8, 3, v10")
    A("v_and_b32 v12, 3, v7")
    A("v_lshlrev_b32 v12, 3, v12")
    A("v_lshl_add_u32 v11, v10, 7, v12")
    A(f"v_add_u32 v11, {CB_LDS}, v11")
    A("v_lshl_add_u32 v10, v10, 5, v12")
    A(f"s_lshl_b32 {sT0}, {sWV}, 10")
    A(f"s_add_u32 {sT0}, {sT0}, {CB_LDS}")
    A("v_lshlrev_b32 v13, 4, v0")
    A(f"v_add_u32 v13, {sT0}, v13")
    if NPRE:
        A(f"s_cmp_lt_u32 {sWV}, 2")
        A("s_cbranch_scc1 L_b1_01")
        A(f"s_waitcnt vmcnt(8)")
        A("s_branch L_b1")
        A("L_b1_01:")
    A(f"s_waitcnt vmcnt(0)")
    A("L_b1:")
    A(f"ds_write_b128 v13, v[64:67]")
    A(f"ds_write_b128 v13, v[68:71] offset:8192")
    A(f"s_waitcnt lgkmcnt(0)")
    A(f"s_add_u32 {sTAG0}, {sTAG0}, 1")
    A("s_barrier")
    stamp(1)
    A(f"s_cmp_eq_u32 {sWV}, 0")
    A("s_cbranch_scc1 L_svc")
    A(f"s_cmp_eq_u32 {sWV}, 1")
    A(f"s_cbranch_scc0 {'L_stream1' if NPRE else 'L_stream0'}")
    A("s_setprio 2")
    A(f"s_cmp_eq_u32 {sFV}, 1")
    A("s_cbranch_scc0 L_ffn_done")
    A("v_lshrrev_b32 v14, 3, v0")
    A("v_and_b32 v13, 7, v0")
    A("v_lshlrev_b32 v13, 4, v13")
    A("v_mul_u32_u24 v12, 3584, v14")
    A("v_add_u32 v12, v12, v13")
    A("v_mul_u32_u24 v14, 896, v14")
    A("v_add_u32 v13, v14, v13")
    A("v_lshlrev_b32 v14, 4, v0")
    A(f"v_add_u32 v14, {CB_LDS}, v14")
    def wburst(lo, hi):
        for i in range(lo, hi):
            A(f"s_mov_b32 s{64+i-lo}, {i*28672 if i < 56 else (i-56)*7168}")
        for i in range(lo, hi):
            d = 96 + (i % 40)*4
            if i < 56: A(f"buffer_load_dwordx4 v[{d}:{d+3}], v12, {srd(W1_)}, s{64+i-lo} offen {WF}")
            else: A(f"buffer_load_dwordx4 v[{d}:{d+3}], v13, {srd(W2_)}, s{64+i-lo} offen {WF}")
    wburst(0, 20); wburst(20, 40)
    stamp(2)
    lds_wait_ge(4, 1, 72)
    def ffn_issue(t, tl):
        b = 32 + (t % 2)*20
        A(f"ds_read_b128 v[{b}:{b+3}], v9 offset:{t*64}")
        for ct in range(4):
            A(f"ds_read_b64_tr_b16 v[{b+4+ct*4}:{b+5+ct*4}], v11 offset:{tl*4096+ct*32}")
            A(f"ds_read_b64_tr_b16 v[{b+6+ct*4}:{b+7+ct*4}], v11 offset:{tl*4096+ct*32+512}")
    issued = 40
    chunks = [(0,16),(16,32),(32,48),(48,56)]
    for (lo, hi) in chunks:
        A(f"s_waitcnt vmcnt({issued - hi})")
        for i in range(lo, hi):
            d = 96 + (i % 40)*4
            A(f"ds_write_b128 v14, v[{d}:{d+3}] offset:{(i-lo)*1024}")
            if (i-lo) % 8 == 7: A("s_waitcnt lgkmcnt(4)")
        A("s_waitcnt lgkmcnt(0)")
        nxt = min(64, hi + 40)
        if nxt > issued:
            wburst(issued, nxt); issued = nxt
        t0 = lo // 4; nt = (hi-lo)//4
        ffn_issue(t0, 0)
        for tl in range(nt):
            t = t0 + tl
            if tl+1 < nt:
                A("s_waitcnt lgkmcnt(4)")
                ffn_issue(t+1, tl+1)
                A("s_waitcnt lgkmcnt(9)")
            else:
                A("s_waitcnt lgkmcnt(0)")
            b = 32 + (t % 2)*20
            for ct in range(4):
                c = "0" if t == 0 else f"v[{16+ct*4}:{19+ct*4}]"
                A(f"v_mfma_f32_16x16x32_bf16 v[{16+ct*4}:{19+ct*4}], v[{b+4+ct*4}:{b+7+ct*4}], v[{b}:{b+3}], {c}")
    A("s_waitcnt vmcnt(0)")
    for i in range(56, 64):
        d = 96 + (i % 40)*4
        A(f"ds_write_b128 v14, v[{d}:{d+3}] offset:{(i-56)*1024}")
    stamp(3)
    A(f"v_mul_u32_u24 v12, {H_STR}, v7")
    A("v_lshl_add_u32 v13, v8, 3, v12")
    A(f"v_add_u32 v13, {H_LDS}, v13")
    A("v_lshl_add_u32 v12, v8, 4, v12")
    A(f"v_add_u32 v12, {H_LDS}, v12")
    for ct in range(4):
        for r in range(4): A(f"v_max_f32 v{16+ct*4+r}, 0, v{16+ct*4+r}")
        A(f"v_cvt_pk_bf16_f32 v{16+ct*4}, v{16+ct*4}, v{17+ct*4}")
        A(f"v_cvt_pk_bf16_f32 v{17+ct*4}, v{18+ct*4}, v{19+ct*4}")
        A(f"ds_write_b64 v13, v[{16+ct*4}:{17+ct*4}] offset:{ct*32}")
    A("s_waitcnt lgkmcnt(0)")
    A("ds_read_b128 v[32:35], v12")
    A("ds_read_b128 v[36:39], v12 offset:64")
    for t in range(2):
        for ct in range(4):
            b = 40 + (t*4+ct)*4
            A(f"ds_read_b64_tr_b16 v[{b}:{b+1}], v11 offset:{t*4096+ct*32}")
            A(f"ds_read_b64_tr_b16 v[{b+2}:{b+3}], v11 offset:{t*4096+ct*32+512}")
        A("s_waitcnt lgkmcnt(0)")
    GB = [72, 80, 88, 96]
    for t in range(2):
        for ct in range(4):
            b = 40 + (t*4+ct)*4
            gb = GB[ct]
            c = "0" if t == 0 else f"v[{gb+2}:{gb+5}]"
            A(f"v_mfma_f32_16x16x32_bf16 v[{gb+2}:{gb+5}], v[{b}:{b+3}], v[{32+t*4}:{35+t*4}], {c}")
    for ct in range(4):
        gb = GB[ct]
        A(f"v_mov_b32 v{gb}, {sTAG0}\nv_mov_b32 v{gb+1}, {sTAG1}\nv_mov_b32 v{gb+6}, {sTAG0}\nv_mov_b32 v{gb+7}, {sTAG1}")
    A("v_mul_u32_u24 v12, 3584, v7")
    A("v_lshl_add_u32 v12, v8, 5, v12")
    A(f"s_mul_i32 {sSO}, {sHS}, {8*3584}")
    A(f"s_lshl_b32 {sT0}, {sFC}, 9")
    A(f"s_add_u32 {sSO}, {sSO}, {sT0}")
    A(f"s_add_u32 {sSO}, {sSO}, {WS_FP}")
    A("s_mov_b32 exec_lo, 0x00ff00ff\ns_mov_b32 exec_hi, 0x00ff00ff")
    for ct in range(4):
        gb = GB[ct]
        A(f"buffer_store_dwordx4 v[{gb}:{gb+3}], v12, {srd(WS_)}, {sSO} offen offset:{ct*128} sc1")
        A(f"buffer_store_dwordx4 v[{gb+4}:{gb+7}], v12, {srd(WS_)}, {sSO} offen offset:{ct*128+16} sc1")
    A("s_mov_b64 exec, -1")
    A("L_ffn_done:")
    lds_set(24, 12)
    stamp(4)
    A("s_branch L_stream0")

    A("L_svc:")
    A(f"v_add_u32 v14, {CB_LDS}, v10")
    def q_issue(t):
        b = 24 + (t % 5)*8
        A(f"ds_read_b128 v[{b}:{b+3}], v9 offset:{t*64}")
        A(f"ds_read_b64_tr_b16 v[{b+4}:{b+5}], v14 offset:{t*1024}")
        A(f"ds_read_b64_tr_b16 v[{b+6}:{b+7}], v14 offset:{t*1024+128}")
    for t in range(4): q_issue(t)
    for t in range(14):
        rem = min(13, t+3) - t
        A(f"s_waitcnt lgkmcnt({rem*3})")
        b = 24 + (t % 5)*8
        c = "0" if t == 0 else "v[16:19]"
        A(f"v_mfma_f32_16x16x32_bf16 v[16:19], v[{b+4}:{b+7}], v[{b}:{b+3}], {c}")
        if t+4 < 14: q_issue(t+4)
    A("v_lshlrev_b32 v12, 14, v7")
    A("v_lshl_add_u32 v12, v8, 4, v12")
    A(f"s_lshl_b32 {sSO}, {sP}, 6")
    A(f"s_add_u32 {sSO}, {sSO}, {WS_Q}")
    A("s_nop 3")
    A("v_cvt_pk_bf16_f32 v16, v16, v17")
    A("v_cvt_pk_bf16_f32 v17, v18, v19")
    A(f"v_mov_b32 v18, {sTAG0}\nv_mov_b32 v19, {sTAG1}")
    A("s_mov_b32 exec_lo, 0x00ff00ff\ns_mov_b32 exec_hi, 0x00ff00ff")
    A(f"buffer_store_dwordx4 v[16:19], v12, {srd(WS_)}, {sSO} offen sc1")
    A("s_mov_b64 exec, -1")
    lds_set(4, 20)
    stamp(2)
    A(f"s_lshl_b32 {sSO}, {sB}, 14")
    A(f"s_lshl_b32 {sT0}, {sHKV}, 11")
    A(f"s_add_u32 {sSO}, {sSO}, {sT0}")
    A(f"s_add_u32 {sSO}, {sSO}, {WS_Q}")
    A("v_lshlrev_b32 v12, 4, v0")
    A(f"s_mov_b32 {sCNT}, 0")
    A("L_qpoll:")
    A(f"buffer_load_dwordx4 v[24:27], v12, {srd(WS_)}, {sSO} offen sc1")
    A(f"buffer_load_dwordx4 v[28:31], v12, {srd(WS_)}, {sSO} offen offset:1024 sc1")
    A(f"s_add_u32 {sCNT}, {sCNT}, 1")
    A(f"s_cmp_gt_u32 {sCNT}, {SPIN}")
    A("s_cbranch_scc1 L_qpoll_x")
    A("s_waitcnt vmcnt(0)")
    A(f"v_cmp_ne_u64 vcc, {sTAG}, v[26:27]")
    A(f"v_cmp_ne_u64 s[56:57], {sTAG}, v[30:31]")
    A("s_or_b64 vcc, vcc, s[56:57]")
    A("s_and_b64 exec, exec, vcc")
    A("s_cbranch_execnz L_qpoll")
    A("L_qpoll_x:")
    A("s_mov_b64 exec, -1")
    A("s_waitcnt vmcnt(0)")
    stamp(4)
    A("v_lshlrev_b32 v12, 3, v0")
    A(f"v_add_u32 v12, {Q_LDS}, v12")
    A("ds_write_b64 v12, v[24:25]")
    A("ds_write_b64 v12, v[28:29] offset:512")
    lds_set(0, 12)

    A("L_stream0:")
    A("s_setprio 1")
    A(f"s_lshl_b32 {sT3}, {sWV}, 13")
    kloads("A", sT3)
    A("L_stream1:")
    A("v_lshrrev_b32 v12, 1, v0")
    A("v_mul_u32_u24 v12, 896, v12")
    A("v_and_b32 v13, 1, v0")
    A("v_lshl_add_u32 v12, v13, 4, v12")
    A(f"s_mul_i32 {sT0}, {sWV}, 458752")
    for i in range(16): A(f"s_add_u32 s{64+i}, {sT0}, {i*28672}")
    for i in range(16):
        d = SLOT["B"] + i*4
        A(f"buffer_load_dwordx4 v[{d}:{d+3}], v12, {srd(WO_)}, s{64+i} offen {WOF}")
    vloads("A", sT3)
    A(f"s_lshl_b32 {sT1}, {sWV}, 14")
    A("v_lshlrev_b32 v13, 4, v0")
    A(f"v_add_u32 v13, {sT1}, v13")
    A(f"s_add_u32 {sT3}, {sT3}, 65536")
    for c in range(2):
        A(f"s_waitcnt vmcnt(16)")
        for i in range(8*c, 8*c+8):
            d = SLOT["B"] + i*4
            A(f"ds_write_b128 v13, v[{d}:{d+3}] offset:{WO_LDS + i*1024}")
        A("s_waitcnt lgkmcnt(0)")
        if c == 0: kloads("B", sT3)
        else: vloads("B", sT3)
    lds_inc(20, 12)
    stamp(5)
    lds_wait_ge(0, 1, 12)
    A("v_lshrrev_b32 v13, 3, v7")
    A("v_lshlrev_b32 v13, 9, v13")
    A("v_lshl_add_u32 v13, v8, 4, v13")
    A(f"v_add_u32 v13, {Q_LDS}, v13")
    for i in range(8):
        A(f"ds_read_b128 v[{16+4*i}:{19+4*i}], v13 offset:{i*64}")
    A(f"v_mov_b32 v74, {SY_LDS+16}")
    A("v_mov_b32 v75, 1")
    def grab():
        A("s_mov_b64 exec, 1")
        A("ds_add_rtn_u32 v76, v74, v75")
        A("s_mov_b64 exec, -1")
    grab()
    A(f"v_mov_b32 v68, 0x{f2u(-1e30):08x}")
    A("v_mov_b32 v69, 0")
    for i in range(8): A(f"v_mov_b32 v{52+i}, 0")
    A("s_waitcnt lgkmcnt(0)")
    A(f"v_readfirstlane_b32 {sNX}, v76")
    stamp(6)
    A(f"s_cmp_lt_u32 {sNX}, 64")
    A("s_cbranch_scc0 L_noref_A")
    def ands(st, r):
        for i in range(4): A(f"v_and_b32 v{60+4*st+i}, v{48+r}, v{3+i}")
    def proc(sl, kind):
        o = "B" if sl == "A" else "A"
        base = SLOT[sl]
        A(f"L_{kind}_{sl}:")
        if kind == "full":
            grab()
            A(f"s_lshl_b32 {sSO}, {sNX}, 13")
        if kind == "noref":
            lds_wait_ge(24, 1, 70)
        A(f"s_waitcnt vmcnt({8 if kind == 'last' else 24})")
        for i in range(8):
            c = "0" if i == 0 else "v[48:51]"
            A(f"v_mfma_f32_16x16x32_bf16 v[48:51], v[{base+4*i}:{base+4*i+3}], v[{16+4*i}:{19+4*i}], {c}")
        if kind == "full": kloads(sl, sSO)
        else: A("s_nop 7")
        A("v_max3_f32 v70, v48, v49, v50")
        A("v_max_f32 v70, v70, v51")
        xreduce(70, 71, "v_max_f32")
        A(f"v_mul_f32 v70, {sC}, v70")
        A("v_max_f32 v70, v70, v68")
        A("v_sub_f32 v72, v68, v70")
        A("v_exp_f32 v72, v72")
        A("v_mov_b32 v68, v70")
        for r in range(4): A(f"v_fma_f32 v{48+r}, v{48+r}, {sC}, -v70")
        for r in range(4): A(f"v_exp_f32 v{48+r}, v{48+r}")
        A("v_mov_b32_dpp v73, v72 row_ror:8 row_mask:0xf bank_mask:0xf")
        A("v_mul_f32 v69, v69, v72")
        A(f"v_cndmask_b32 v73, v73, v72, {sAM}")
        for r in range(4):
            A(f"v_add_f32 v69, v69, v{48+r}")
            A(f"v_cvt_pk_bf16_f32 v{48+r}, v{48+r}, v{48+r}")
        for i in range(8): A(f"v_mul_f32 v{52+i}, v{52+i}, v73")
        ands(0, 0); ands(1, 1)
        A(f"s_waitcnt vmcnt({ {'full':24,'noref':16,'last':0}[kind] })")
        def pv(st, r):
            for hf in range(2):
                vb = base + 32 + (r*2+hf)*4
                A(f"v_mfma_f32_16x16x32_bf16 v[{52+4*hf}:{55+4*hf}], v[{60+4*st}:{63+4*st}], v[{vb}:{vb+3}], v[{52+4*hf}:{55+4*hf}]")
        pv(0, 0); ands(0, 2); pv(1, 1); ands(1, 3); pv(0, 2); pv(1, 3)
        if kind == "full":
            vloads(sl, sSO)
            A("s_waitcnt lgkmcnt(0)")
            A(f"v_readfirstlane_b32 {sNX}, v76")
            A(f"s_cmp_lt_u32 {sNX}, 64")
            A(f"s_cbranch_scc0 L_noref_{o}")
            if sl == "B": A("s_branch L_full_A")
        elif kind == "noref":
            pass
        else:
            if sl == "B": A("s_branch L_done")
    proc("A", "full"); proc("B", "full")
    proc("A", "noref"); proc("B", "last")
    proc("B", "noref"); proc("A", "last")
    A("L_done:")
    stamp(8)
    A("s_setprio 2")
    xreduce(69, 71, "v_add_f32")
    A("v_lshrrev_b32 v18, 1, v8")
    A("v_lshlrev_b32 v18, 10, v18")
    A("v_lshl_add_u32 v18, v7, 5, v18")
    A("v_and_b32 v19, 1, v8")
    A("v_lshl_add_u32 v18, v19, 4, v18")
    A(f"s_lshl_b32 {sT0}, {sWV}, 11")
    A(f"s_add_u32 {sT0}, {sT0}, {CB_LDS}")
    A(f"v_add_u32 v18, {sT0}, v18")
    A("v_lshrrev_b32 v19, 3, v7")
    A("v_lshlrev_b32 v19, 6, v19")
    A(f"s_lshl_b32 {sT0}, {sWV}, 3")
    A(f"s_add_u32 {sT0}, {sT0}, {ST_LDS}")
    A(f"v_add_u32 v19, {sT0}, v19")
    A("ds_write_b64 v19, v[68:69]")
    A("ds_write_b128 v18, v[52:55]")
    A("ds_write_b128 v18, v[56:59] offset:512")
    lds_inc(8, 20, ret=sARR)
    A(f"s_cmp_eq_u32 {sARR}, 7")
    A("s_cbranch_scc0 L_role")
    A("v_lshlrev_b32 v18, 5, v0")
    A(f"v_add_u32 v18, {CB_LDS}, v18")
    A("v_lshrrev_b32 v19, 5, v0")
    A("v_lshlrev_b32 v19, 6, v19")
    A(f"v_add_u32 v19, {ST_LDS}, v19")
    for i in range(4): A(f"ds_read_b128 v[{20+4*i}:{23+4*i}], v19 offset:{16*i}")
    CBR = 96
    for w in range(4):
        A(f"ds_read_b128 v[{CBR+8*w}:{CBR+8*w+3}], v18 offset:{2048*w}")
        A(f"ds_read_b128 v[{CBR+8*w+4}:{CBR+8*w+7}], v18 offset:{2048*w+16}")
    A("s_waitcnt lgkmcnt(8)")
    for w in range(4, 8):
        A(f"ds_read_b128 v[{CBR+8*w}:{CBR+8*w+3}], v18 offset:{2048*w}")
        if w == 7: A("s_waitcnt lgkmcnt(14)")
        A(f"ds_read_b128 v[{CBR+8*w+4}:{CBR+8*w+7}], v18 offset:{2048*w+16}")
    A("v_max3_f32 v16, v20, v22, v24")
    A("v_max3_f32 v16, v16, v26, v28")
    A("v_max3_f32 v16, v16, v30, v32")
    A("v_max_f32 v16, v16, v34")
    for w in range(8): A(f"v_sub_f32 v{20+2*w}, v{20+2*w}, v16")
    for w in range(8): A(f"v_exp_f32 v{20+2*w}, v{20+2*w}")
    A("s_nop 0")
    A("v_mul_f32 v17, v20, v21")
    for w in range(1, 8): A(f"v_fmac_f32 v17, v{20+2*w}, v{21+2*w}")
    A(f"v_mov_b32 v18, {sTAG0}\nv_mov_b32 v19, {sTAG1}")
    A(f"v_mov_b32 v44, {sTAG0}\nv_mov_b32 v45, {sTAG1}\nv_mov_b32 v50, {sTAG0}\nv_mov_b32 v51, {sTAG1}")
    A(f"s_mul_i32 {sSO}, {sSLOT}, {OP_STR}")
    A(f"s_add_u32 {sSO}, {sSO}, {WS_OP}")
    A("v_lshrrev_b32 v53, 5, v0")
    A("v_lshlrev_b32 v53, 4, v53")
    A("s_mov_b32 exec_lo, 1\ns_mov_b32 exec_hi, 1")
    A(f"buffer_store_dwordx4 v[16:19], v53, {srd(WS_)}, {sSO} offen offset:2048 sc1")
    A("s_mov_b64 exec, -1")
    A("v_lshlrev_b32 v52, 5, v0")
    for w in range(8):
        A(f"s_waitcnt lgkmcnt({2*(7-w)})")
        for e in range(8):
            if w == 0: A(f"v_mul_f32 v{36+e}, v20, v{CBR+e}")
            else: A(f"v_fmac_f32 v{36+e}, v{20+2*w}, v{CBR+8*w+e}")
    for e in range(4): A(f"v_cvt_pk_bf16_f32 v{46+e}, v{36+2*e}, v{37+2*e}")
    A(f"buffer_store_dwordx4 v[44:47], v52, {srd(WS_)}, {sSO} offen sc1")
    A(f"buffer_store_dwordx4 v[48:51], v52, {srd(WS_)}, {sSO} offen offset:16 sc1")
    stamp(9)
    A("s_branch L_fin")
    A("L_role:")
    A(f"s_cmp_lt_u32 {sHKV}, 7")
    A("s_cbranch_scc0 L_fin")
    A(f"s_cmp_lt_u32 {sARR}, 4")
    A("s_cbranch_scc1 L_role_poll")
    A(f"s_cmp_eq_u32 {sARR}, 4")
    A("s_cbranch_scc0 L_fin")
    A("v_lshrrev_b32 v20, 3, v0")
    A(f"v_mul_u32_u24 v20, {8*3584}, v20")
    A("v_and_b32 v21, 7, v0")
    A("v_lshl_add_u32 v20, v21, 4, v20")
    A(f"s_mul_i32 {sSO}, {sB}, 3584")
    A(f"s_lshl_b32 {sT0}, {sCS}, 7")
    A(f"s_add_u32 {sSO}, {sSO}, {sT0}")
    A(f"s_add_u32 {sSO}, {sSO}, {WS_FP}")
    for i in range(1, 4): A(f"v_add_u32 v{20+i}, {i*8*8*3584}, v20")
    A(f"s_mul_i32 {sSO2}, {sB}, 896")
    A(f"s_lshl_b32 {sT0}, {sCS}, 5")
    A(f"s_add_u32 {sSO2}, {sSO2}, {sT0}")
    A("v_lshlrev_b32 v14, 1, v7")
    A(f"buffer_load_ushort v14, v14, {srd(X_)}, {sSO2} offen")
    A(f"s_mov_b32 {sCNT}, 0")
    A("s_mov_b32 s58, 0xaaaaaaaa\ns_mov_b32 s59, 0xaaaaaaaa")
    A("L_fpoll:")
    for i in range(3): A(f"buffer_load_dwordx4 v[{24+4*i}:{27+4*i}], v{20+i}, {srd(WS_)}, {sSO} offen sc1")
    A("s_mov_b32 exec_hi, 0")
    A(f"buffer_load_dwordx4 v[36:39], v23, {srd(WS_)}, {sSO} offen sc1")
    A("s_mov_b32 exec_hi, -1")
    A(f"s_add_u32 {sCNT}, {sCNT}, 1")
    A(f"s_cmp_gt_u32 {sCNT}, {SPIN}")
    A("s_cbranch_scc1 L_fpoll_x")
    A("s_waitcnt vmcnt(0)")
    A("s_mov_b64 s[56:57], 0")
    for i in range(4):
        b = 24+4*i
        A(f"v_cndmask_b32 v40, v{b}, v{b+2}, s[58:59]")
        A(f"v_cndmask_b32 v41, v{b+1}, v{b+3}, s[58:59]")
        A(f"v_cmp_ne_u64 vcc, {sTAG}, v[40:41]")
        if i == 3: A("s_or_b32 s56, s56, vcc_lo")
        else: A("s_or_b64 s[56:57], s[56:57], vcc")
    A("s_cmp_lg_u64 s[56:57], 0")
    A("s_cbranch_scc0 L_fpoll_x")
    A("s_sleep 8")
    A("s_branch L_fpoll")
    A("L_fpoll_x:")
    A("s_waitcnt vmcnt(0)")
    for i in range(4):
        b = 24+4*i
        A(f"v_cndmask_b32 v{40+2*i}, v{b+2}, v{b}, s[58:59]")
        A(f"v_cndmask_b32 v{41+2*i}, v{b+3}, v{b+1}, s[58:59]")
    A("v_cmp_gt_u32 vcc, 32, v0")
    A("v_add_f32 v40, v40, v42\nv_add_f32 v41, v41, v43")
    A("v_cndmask_b32 v46, 0, v46, vcc\nv_cndmask_b32 v47, 0, v47, vcc")
    A("v_add_f32 v44, v44, v46\nv_add_f32 v45, v45, v47")
    A("v_add_f32 v40, v40, v44\nv_add_f32 v41, v41, v45")
    A("s_nop 1")
    A("v_add_f32_dpp v40, v40, v40 row_ror:8 row_mask:0xf bank_mask:0xf")
    A("v_add_f32_dpp v41, v41, v41 row_ror:8 row_mask:0xf bank_mask:0xf")
    xreduce(40, 42, "v_add_f32"); xreduce(41, 42, "v_add_f32")
    A("v_cvt_pk_bf16_f32 v42, v40, v41")
    A("v_lshlrev_b32 v40, 16, v42\nv_and_b32 v41, 0xffff0000, v42")
    for r in range(2): A(f"v_mul_f32 v{42+r}, 0x{f2u(-math.log2(math.e)):08x}, v{40+r}")
    for r in range(2): A(f"v_exp_f32 v{42+r}, v{42+r}")
    A("s_nop 0")
    for r in range(2): A(f"v_add_f32 v{42+r}, 1.0, v{42+r}")
    for r in range(2): A(f"v_rcp_f32 v{42+r}, v{42+r}")
    A("s_nop 0")
    for r in range(2): A(f"v_mul_f32 v{40+r}, v{40+r}, v{42+r}")
    A("v_cvt_pk_bf16_f32 v42, v40, v41")
    A("v_lshlrev_b32 v40, 16, v42\nv_and_b32 v41, 0xffff0000, v42")
    A("v_and_b32 v20, 7, v0")
    A("v_lshlrev_b32 v20, 3, v20")
    A(f"v_add_u32 v20, {G_LDS}, v20")
    A("ds_write_b64 v20, v[40:41]")
    A("v_lshlrev_b32 v14, 16, v14")
    A("v_lshlrev_b32 v20, 2, v7")
    A(f"v_add_u32 v20, {G_LDS+64}, v20")
    A("ds_write_b32 v20, v14")
    stamp(10)
    A("s_branch L_cnt2")
    A("L_role_poll:")
    A("s_setprio 0")
    A("v_and_b32 v12, 3, v0")
    A("v_bfe_u32 v13, v0, 3, 1")
    A("v_lshl_add_u32 v12, v13, 4, v12")
    A(f"v_mul_u32_u24 v12, {OP_STR}, v12")
    A("v_bfe_u32 v9, v0, 2, 1")
    A("v_lshl_add_u32 v13, v9, 4, v12")
    A("v_lshl_add_u32 v12, v9, 10, v12")
    A("v_lshl_add_u32 v12, v8, 5, v12")
    A(f"s_lshl_b32 {sT0}, {sB}, 3")
    A(f"s_add_u32 {sT0}, {sT0}, {sARR}")
    A(f"s_mul_i32 {sSO}, {sT0}, {4*OP_STR}")
    A(f"s_add_u32 {sSO}, {sSO}, {WS_OP}")
    def poll_loads():
        for t in range(8):
            A(f"buffer_load_dwordx4 v[{16+8*t}:{19+8*t}], v12, {srd(WS_)}, {sSO} offen offset:{t*128} sc1")
            A(f"buffer_load_dwordx4 v[{20+8*t}:{23+8*t}], v12, {srd(WS_)}, {sSO} offen offset:{t*128+16} sc1")
        A(f"buffer_load_dwordx4 v[80:83], v13, {srd(WS_)}, {sSO} offen offset:2048 sc1")
    poll_loads()
    lds_wait_ge(20, 8, 84)
    A(f"s_lshl_b32 {sT0}, {sARR}, 14")
    A(f"v_add_u32 v84, {sT0}, v10")
    A(f"v_add_u32 v85, 65536, v84")
    for ro in range(2):
        for f in range(16):
            b = 96 + 64*ro + 4*f
            A(f"ds_read_b64_tr_b16 v[{b}:{b+1}], v{84+ro} offset:{WO_LDS+f*1024}")
            A(f"ds_read_b64_tr_b16 v[{b+2}:{b+3}], v{84+ro} offset:{WO_LDS+f*1024+128}")
            if f % 4 == 3: A("s_waitcnt lgkmcnt(4)")
    stamp(11)
    A(f"s_mov_b32 {sCNT}, 0")
    A("s_branch L_pcheck")
    A("L_ppoll:")
    poll_loads()
    A(f"s_add_u32 {sCNT}, {sCNT}, 1")
    A(f"s_cmp_gt_u32 {sCNT}, {SPIN}")
    A("s_cbranch_scc1 L_ppoll_x")
    A("L_pcheck:")
    for t in range(8):
        A(f"s_waitcnt vmcnt({16-2*t-1})")
        A(f"v_cmp_ne_u64 vcc, {sTAG}, v[{16+8*t}:{17+8*t}]")
        A(f"v_cmp_ne_u64 s[58:59], {sTAG}, v[{22+8*t}:{23+8*t}]")
        if t == 0: A("s_or_b64 s[56:57], vcc, s[58:59]")
        else:
            A("s_or_b64 s[56:57], s[56:57], vcc")
            A("s_or_b64 s[56:57], s[56:57], s[58:59]")
    A("s_waitcnt vmcnt(0)")
    A(f"v_cmp_ne_u64 vcc, {sTAG}, v[82:83]")
    A("s_or_b64 s[56:57], s[56:57], vcc")
    A("s_and_b64 exec, exec, s[56:57]")
    A("s_cbranch_execnz L_ppoll")
    A("L_ppoll_x:")
    A("s_mov_b64 exec, -1")
    A("s_waitcnt vmcnt(0) lgkmcnt(0)")
    stamp(12)
    DB = 224
    for t in range(8):
        for ro in range(2):
            for h in range(2):
                d = DB + 4*(ro*2+h)
                c = "0" if t == 0 else f"v[{d}:{d+3}]"
                f = 96 + 64*ro + 4*(h*8+t)
                A(f"v_mfma_f32_16x16x32_bf16 v[{d}:{d+3}], v[{f}:{f+3}], v[{18+8*t}:{21+8*t}], {c}")
    A("v_mov_b32 v84, v80")
    for mode in ["quad_perm:[1,0,3,2]", "quad_perm:[2,3,0,1]"]:
        A("s_nop 1")
        A(f"v_max_f32_dpp v84, v84, v84 {mode} row_mask:0xf bank_mask:0xf")
    A("v_sub_f32 v84, v80, v84")
    A("v_exp_f32 v84, v84")
    A("s_nop 0")
    A("v_mul_f32 v85, v84, v81")
    for mode in ["quad_perm:[1,0,3,2]", "quad_perm:[2,3,0,1]"]:
        A("s_nop 1")
        A(f"v_add_f32_dpp v85, v85, v85 {mode} row_mask:0xf bank_mask:0xf")
    A("v_rcp_f32 v85, v85")
    A("s_mov_b32 s56, 0xf0f0f0f0\ns_mov_b32 s57, 0xf0f0f0f0")
    A("s_mov_b32 s58, 0xff00ff00\ns_mov_b32 s59, 0xff00ff00")
    A("v_mul_f32 v84, v84, v85")
    for r in range(4): A(f"v_cndmask_b32 v{DB+r}, v{DB+r}, v{DB+4+r}, s[56:57]")
    for r in range(4): A(f"v_cndmask_b32 v{DB+8+r}, v{DB+8+r}, v{DB+12+r}, s[56:57]")
    for r in range(4): A(f"v_cndmask_b32 v{DB+r}, v{DB+r}, v{DB+8+r}, s[58:59]")
    for r in range(4): A(f"v_mul_f32 v{DB+r}, v{DB+r}, v84")
    for mode in ["quad_perm:[1,0,3,2]", "quad_perm:[2,3,0,1]", "row_half_mirror", "row_mirror"]:
        for r in range(4):
            A(f"v_add_f32_dpp v{DB+r}, v{DB+r}, v{DB+r} {mode} row_mask:0xf bank_mask:0xf")
    A(f"s_lshl_b32 {sT0}, {sARR}, 6")
    A(f"s_add_u32 {sT0}, {sT0}, {RED_LDS}")
    A("v_lshlrev_b32 v21, 4, v8")
    A(f"v_add_u32 v21, {sT0}, v21")
    A("s_mov_b32 exec_lo, 0x00010001\ns_mov_b32 exec_hi, 0x00010001")
    A(f"ds_write_b128 v21, v[{DB}:{DB+3}]")
    A("s_mov_b64 exec, -1")
    A("L_cnt2:")
    A("v_lshlrev_b32 v24, 6, v8")
    A("v_lshl_add_u32 v24, v7, 2, v24")
    A(f"v_add_u32 v24, {RED_LDS}, v24")
    A("v_lshlrev_b32 v23, 2, v7")
    A(f"v_add_u32 v23, {G_LDS}, v23")
    A(f"s_mul_i32 {sSO}, {sB}, 896")
    A(f"s_lshl_b32 {sT1}, {sCS}, 5")
    A(f"s_add_u32 {sSO}, {sSO}, {sT1}")
    lds_inc(12, 20, ret=sT0)
    stamp(13)
    A(f"s_cmp_eq_u32 {sT0}, 4")
    A("s_cbranch_scc0 L_fin")
    A(f"ds_read_b32 v24, v24")
    A(f"ds_read_b32 v26, v23")
    A(f"ds_read_b32 v27, v23 offset:64")
    A("v_lshlrev_b32 v22, 1, v7")
    A("s_waitcnt lgkmcnt(0)")
    xreduce(24, 25, "v_add_f32")
    A("v_cvt_pk_bf16_f32 v24, v24, v24")
    A("v_lshlrev_b32 v24, 16, v24")
    A("v_mul_f32 v24, v24, v26")
    A("v_cvt_pk_bf16_f32 v24, v24, v24")
    A("v_lshlrev_b32 v24, 16, v24")
    A("v_add_f32 v24, v27, v24")
    A("v_cvt_pk_bf16_f32 v24, v24, v24")
    A("s_mov_b64 exec, 0xffff")
    A(f"buffer_store_short v24, v22, {srd(OUT_)}, {sSO} offen")
    A("s_mov_b64 exec, -1")
    A(f"s_cmp_eq_u32 {sWG}, 0")
    A("s_cbranch_scc0 L_fin")
    A(f"v_mov_b32 v24, {sTAG0}\nv_mov_b32 v25, {sTAG1}\nv_mov_b32 v22, {WS_EP}")
    A("s_mov_b64 exec, 1")
    A(f"buffer_store_dwordx2 v[24:25], v22, {srd(WS_)}, 0 offen sc1")
    A("s_mov_b64 exec, -1")
    A("L_fin:")
    if TS:
        stamp(14)
        A(f"v_writelane_b32 v15, s62, 15")
        A(f"s_lshl_b32 {sT0}, {sWG}, 3")
        A(f"s_add_u32 {sT0}, {sT0}, {sWV}")
        A(f"s_lshl_b32 {sSO}, {sT0}, 6")
        A(f"s_add_u32 {sSO}, {sSO}, {WS_TS}")
        A("v_lshlrev_b32 v21, 2, v0")
        A("s_mov_b64 exec, 0xffff")
        A(f"buffer_store_dword v15, v21, {srd(WS_)}, {sSO} offen")
    A("L_end:")
    A("s_endpgm")

    hdr = open("recurrent_scan__gqa_block_cached__dense_activation_relu__decode.s.ref").read().split("; Override launch geometry")[0]
    out = hdr
    out += f"; @launch grid=(256,1,1) block=(512,1,1) lds={LDS_TOTAL}\n"
    out += '.amdgcn_target "amdgcn-amd-amdhsa--gfx950"\n.text\n'
    out += f".globl {NAME}\n.p2align 8\n.type {NAME},@function\n{NAME}:\n"
    out += "\n".join(g.L) + "\n"
    out += f""".section .rodata,"a"
.p2align 6
.amdhsa_kernel {NAME}
  .amdhsa_next_free_vgpr 256
  .amdhsa_next_free_sgpr 102
  .amdhsa_accum_offset 256
  .amdhsa_group_segment_fixed_size 0
  .amdhsa_kernarg_size 88
  .amdhsa_user_sgpr_count 2
  .amdhsa_user_sgpr_kernarg_segment_ptr 1
  .amdhsa_system_sgpr_workgroup_id_x 1
.end_amdhsa_kernel
"""
    return out, LDS_TOTAL

if __name__ == "__main__":
    opts = {}
    outp = "recurrent_scan__gqa_block_cached__dense_activation_relu__decode.s"
    for a in sys.argv[1:]:
        if a.startswith("-o="): outp = a[3:]
        else:
            k, v = a.split("=")
            opts[k] = int(v) if v.lstrip("-").isdigit() else v.replace("_", " ")
    s, lds = build(opts)
    open(outp, "w").write(s)
    print("wrote", outp, "lds", lds)
```

```python
import sys, math, struct

NAME = "recurrent_scan__gqa_block_cached__dense_activation_relu__decode_kernel"
def f2u(f): return struct.unpack("<I", struct.pack("<f", f))[0]

class Gen:
    def __init__(self):
        self.L = []; self.uid = 0
    def A(self, s):
        for line in s.split("\n"):
            t = line.strip()
            self.L.append(t if t.endswith(":") else "  " + t)
    def lab(self, p):
        self.uid += 1
        return f"L_{p}_{self.uid}"

def build(opts):
    TS = opts.get("ts", 0)
    KVF = opts.get("kvflags", "nt")
    WF = opts.get("wflags", "")
    WOF = opts.get("woflags", WF)
    SPIN = opts.get("spin", 200000)
    NPRE = opts.get("npre", 1)
    THRESH = opts.get("thresh", 66)
    g = Gen(); A = g.A

    WO_LDS = 0
    XN_LDS = 114688
    XN_STR = 912
    Q_LDS = XN_LDS + 8*XN_STR
    H_LDS = Q_LDS + 1024
    H_STR = 144
    ST_LDS = H_LDS + 2304
    O_LDS = ST_LDS + 128
    SY_LDS = O_LDS + 256
    CB_LDS = SY_LDS + 64
    LDS_TOTAL = CB_LDS + 16384
    assert LDS_TOTAL <= 163840 and CB_LDS % 16 == 0
    WS_EP = 0
    WS_Q = 0x1000
    WS_FP = 0x40000
    WS_OP = 0x110000
    OP_STR = 2176
    WS_SP = 0x1A0000
    WS_TS = 0x300000
    WS_SIZE = 0x400000

    CSC = math.log2(math.e) / 16.0
    sWG, sWV, sHKV, sIDX, sB, sSPL = "s2", "s3", "s4", "s5", "s6", "s7"
    K_, V_, X_, WQ_, W1_, W2_, WO_, WS_, OUT_ = 8, 12, 16, 20, 24, 28, 32, 36, 44
    def srd(n): return f"s[{n}:{n+3}]"
    sP, sHS, sFC, sFV, sCS, sSLOT, sC = "s86", "s87", "s88", "s89", "s90", "s91", "s93"
    sTAG = "s[94:95]"; sTAG0, sTAG1 = "s94", "s95"
    sT0, sT1, sT2, sT3 = "s48", "s49", "s50", "s51"
    sSO = "s52"; sSO2 = "s53"; sCNT = "s54"; sNX = "s55"; sARR = "s92"
    sAM = "s[96:97]"

    def stamp(i):
        if not TS: return
        A(f"s_memrealtime s[60:61]")
        A("s_waitcnt lgkmcnt(0)")
        A(f"v_writelane_b32 v15, s60, {i}")
    def xreduce(v, t, op="v_add_f32"):
        A(f"v_mov_b32 v{t}, v{v}")
        A("s_nop 1")
        A(f"v_permlane16_swap_b32 v{v}, v{t}")
        A("s_nop 1")
        A(f"{op} v{v}, v{v}, v{t}")
        A(f"v_mov_b32 v{t}, v{v}")
        A("s_nop 1")
        A(f"v_permlane32_swap_b32 v{v}, v{t}")
        A("s_nop 1")
        A(f"{op} v{v}, v{v}, v{t}")
    def xreduce2(v0_, v1_, t0, t1, op="v_add_f32"):
        for sw in ["v_permlane16_swap_b32", "v_permlane32_swap_b32"]:
            A(f"v_mov_b32 v{t0}, v{v0_}")
            A(f"v_mov_b32 v{t1}, v{v1_}")
            A("s_nop 0")
            A(f"{sw} v{v0_}, v{t0}")
            A(f"{sw} v{v1_}, v{t1}")
            A("s_nop 0")
            A(f"{op} v{v0_}, v{v0_}, v{t0}")
            A(f"{op} v{v1_}, v{v1_}, v{t1}")
    def allreduce(v, t, op="v_add_f32"):
        for mode in ["quad_perm:[1,0,3,2]", "quad_perm:[2,3,0,1]", "row_half_mirror", "row_mirror"]:
            A("s_nop 1")
            A(f"{op}_dpp v{v}, v{v}, v{v} {mode} row_mask:0xf bank_mask:0xf")
        xreduce(v, t, op)
    def lds_wait_ge(off, val, vt, sleep=2):
        l0 = g.lab("lw"); l1 = g.lab("lwx")
        A(f"v_mov_b32 v{vt}, {SY_LDS+off}")
        A(f"s_mov_b32 {sCNT}, 0")
        A(f"{l0}:")
        A(f"ds_read_b32 v{vt+1}, v{vt}")
        A(f"s_add_u32 {sCNT}, {sCNT}, 1")
        A(f"s_cmp_gt_u32 {sCNT}, {SPIN}")
        A(f"s_cbranch_scc1 {l1}")
        A("s_waitcnt lgkmcnt(0)")
        A(f"v_cmp_le_u32 vcc, {val}, v{vt+1}")
        A(f"s_cbranch_vccnz {l1}")
        if sleep: A(f"s_sleep {sleep}")
        A(f"s_branch {l0}")
        A(f"{l1}:")
        A("s_waitcnt lgkmcnt(0)")
    def lds_set(off, vt):
        A(f"v_mov_b32 v{vt}, {SY_LDS+off}")
        A(f"v_mov_b32 v{vt+1}, 1")
        A("s_waitcnt lgkmcnt(0)")
        A(f"ds_write_b32 v{vt}, v{vt+1}")
    def lds_inc(off, vt, ret=None):
        A(f"v_mov_b32 v{vt}, {SY_LDS+off}")
        A(f"v_mov_b32 v{vt+1}, 1")
        A("s_mov_b64 exec, 1")
        A("s_waitcnt lgkmcnt(0)")
        if ret:
            A(f"ds_add_rtn_u32 v{vt+1}, v{vt}, v{vt+1}")
            A("s_mov_b64 exec, -1")
            A("s_waitcnt lgkmcnt(0)")
            A(f"v_readfirstlane_b32 {ret}, v{vt+1}")
        else:
            A(f"ds_add_u32 v{vt}, v{vt+1}")
            A("s_mov_b64 exec, -1")

    SLOT = {"A": 128, "B": 192}
    def kloads(sl, so):
        for i in range(8):
            d = SLOT[sl] + i*4
            A(f"buffer_load_dwordx4 v[{d}:{d+3}], v1, {srd(K_)}, {so} offen offset:{i*64} {KVF}")
    def vloads(sl, so):
        for i in range(8):
            d = SLOT[sl] + 32 + i*4
            A(f"buffer_load_dwordx4 v[{d}:{d+3}], v2, {srd(V_)}, {so} offen offset:{(i//2)*512+(i%2)*256} {KVF}")

    A(f"s_cmp_ge_u32 {sWG}, 256")
    A("s_cbranch_scc1 L_end")
    A("s_setprio 3")
    A("s_load_dwordx16 s[64:79], s[0:1], 0")
    A("s_load_dwordx4 s[80:83], s[0:1], 64")
    A("s_load_dwordx2 s[84:85], s[0:1], 80")
    if TS:
        A("v_mov_b32 v15, 0")
        A("s_memrealtime s[62:63]")
    A("v_lshrrev_b32 v1, 6, v0")
    A("v_and_b32 v0, 63, v0")
    A(f"s_and_b32 {sHKV}, {sWG}, 7")
    A(f"v_readfirstlane_b32 {sWV}, v1")
    A(f"s_lshr_b32 {sIDX}, {sWG}, 3")
    A(f"s_and_b32 {sB}, {sIDX}, 7")
    A(f"s_lshr_b32 {sSPL}, {sIDX}, 3")
    A(f"s_lshl_b32 {sP}, {sHKV}, 5")
    A(f"s_add_u32 {sP}, {sP}, {sIDX}")
    A(f"s_lshl_b32 {sSLOT}, {sB}, 3")
    A(f"s_add_u32 {sSLOT}, {sSLOT}, {sHKV}")
    A(f"s_lshl_b32 {sSLOT}, {sSLOT}, 2")
    A(f"s_add_u32 {sSLOT}, {sSLOT}, {sSPL}")
    A(f"s_lshl_b32 {sT2}, {sSLOT}, 19")
    A("v_and_b32 v7, 15, v0")
    A("v_lshrrev_b32 v8, 4, v0")
    A(f"s_mul_i32 {sT3}, {sWV}, 896")
    A(f"v_lshlrev_b32 v9, 4, v0")
    A(f"v_add_u32 v9, {sT3}, v9")
    A("v_mov_b32 v10, 0x7fffff00")
    A("v_cmp_gt_u32 vcc, 56, v0")
    A("v_lshrrev_b32 v11, 1, v0")
    A("v_lshlrev_b32 v11, 13, v11")
    A("v_cndmask_b32 v9, v10, v9, vcc")
    A("v_and_b32 v12, 1, v0")
    A("v_lshl_add_u32 v11, v12, 4, v11")
    A("v_lshlrev_b32 v1, 9, v7")
    A("v_lshl_add_u32 v1, v8, 4, v1")
    A(f"s_lshl_b32 {sT0}, {sP}, 5")
    A(f"s_lshl_b32 {sSO}, {sWV}, 18")
    A(f"s_add_u32 {sSO2}, {sSO}, {8<<18}")
    A(f"s_mov_b32 s{X_+2}, 7168\ns_mov_b32 s{X_+3}, 0x20000")
    A(f"s_sub_u32 s{WQ_+2}, 3670016, {sT0}\ns_mov_b32 s{WQ_+3}, 0x20000")
    A(f"s_mov_b32 s{K_+2}, 0x80000\ns_mov_b32 s{K_+3}, 0x20000")
    A(f"s_and_b32 {sT3}, {sWV}, 3")
    A(f"s_lshl_b32 {sT3}, {sT3}, 13")
    A("s_waitcnt lgkmcnt(0)")
    A(f"s_mov_b32 s{X_}, s64\ns_mov_b32 s{X_+1}, s65")
    A(f"s_add_u32 s{WQ_}, s70, {sT0}\ns_addc_u32 s{WQ_+1}, s71, 0")
    A(f"buffer_load_dwordx4 v[16:19], v9, {srd(X_)}, 0 offen")
    A(f"buffer_load_dwordx4 v[64:67], v11, {srd(WQ_)}, {sSO} offen {WF}")
    A(f"buffer_load_dwordx4 v[68:71], v11, {srd(WQ_)}, {sSO2} offen {WF}")
    A(f"s_load_dwordx2 {sTAG}, s[84:85], {WS_EP}")
    A(f"s_add_u32 s{K_}, s66, {sT2}\ns_addc_u32 s{K_+1}, s67, 0")
    if NPRE:
        A(f"s_cmp_lt_u32 {sWV}, 4")
        A("s_cbranch_scc1 L_front_noload")
        A("s_setprio 1")
        kloads("A", sT3)
        A("L_front_noload:")
    A(f"s_add_u32 s{V_}, s68, {sT2}\ns_addc_u32 s{V_+1}, s69, 0\ns_mov_b32 s{V_+2}, 0x80000\ns_mov_b32 s{V_+3}, 0x20000")
    A(f"s_mul_i32 {sT0}, {sIDX}, 37")
    A(f"s_lshr_b32 {sT0}, {sT0}, 8")
    A(f"s_mul_i32 {sT1}, {sT0}, 7")
    A(f"s_sub_u32 {sFC}, {sIDX}, {sT1}")
    A(f"s_lshl_b32 {sHS}, {sT0}, 3")
    A(f"s_add_u32 {sHS}, {sHS}, {sHKV}")
    A(f"s_cmp_lt_u32 {sHS}, {0 if opts.get('noffn') else 28}")
    A(f"s_cselect_b32 {sFV}, 1, 0")
    A(f"s_lshl_b32 {sCS}, {sHKV}, 2")
    A(f"s_add_u32 {sCS}, {sCS}, {sSPL}")
    A(f"s_mov_b32 {sC}, 0x{f2u(CSC):08x}")
    A(f"s_lshl_b32 {sT0}, {sHS}, 7")
    A(f"s_add_u32 s{W1_}, s76, {sT0}\ns_addc_u32 s{W1_+1}, s77, 0\ns_sub_u32 {sT1}, 1605632, {sT0}")
    A(f"s_cmp_eq_u32 {sFV}, 1\ns_cselect_b32 s{W1_+2}, {sT1}, 0\ns_mov_b32 s{W1_+3}, 0x20000")
    A(f"s_mul_i32 {sT0}, {sHS}, 57344\ns_lshl_b32 {sT1}, {sFC}, 7\ns_add_u32 {sT0}, {sT0}, {sT1}")
    A(f"s_add_u32 s{W2_}, s78, {sT0}\ns_addc_u32 s{W2_+1}, s79, 0\ns_sub_u32 {sT1}, 1605632, {sT0}")
    A(f"s_cmp_eq_u32 {sFV}, 1\ns_cselect_b32 s{W2_+2}, {sT1}, 0\ns_mov_b32 s{W2_+3}, 0x20000")
    A(f"s_mul_i32 {sT0}, {sHKV}, 458752\ns_mul_i32 {sT1}, {sSPL}, 57344\ns_add_u32 {sT0}, {sT0}, {sT1}")
    A(f"s_add_u32 s{WO_}, s72, {sT0}\ns_addc_u32 s{WO_+1}, s73, 0\ns_sub_u32 s{WO_+2}, {0 if opts.get('nowo') else 3670016}, {0 if opts.get('nowo') else sT0}\ns_mov_b32 s{WO_+3}, 0x20000")
    A(f"s_mov_b32 s{WS_}, s84\ns_mov_b32 s{WS_+1}, s85\ns_mov_b32 s{WS_+2}, {WS_SIZE}\ns_mov_b32 s{WS_+3}, 0x20000")
    A(f"s_mov_b32 s{OUT_}, s80\ns_mov_b32 s{OUT_+1}, s81\ns_mov_b32 s{OUT_+2}, 7168\ns_mov_b32 s{OUT_+3}, 0x20000")
    A("s_mov_b32 s96, 0x00ff00ff\ns_mov_b32 s97, 0xff00ff00")
    A("v_lshlrev_b32 v2, 11, v8")
    A("v_lshl_add_u32 v2, v7, 4, v2")
    A("v_and_b32 v9, 1, v0")
    A("v_lshlrev_b32 v9, 4, v9")
    A("v_mov_b32 v10, 0xffff")
    A("v_lshlrev_b32 v9, v9, v10")
    A("v_bfe_u32 v10, v0, 1, 2")
    for i in range(4):
        A(f"v_cmp_eq_u32 vcc, {i}, v10")
        A("s_nop 1")
        A(f"v_cndmask_b32 v{3+i}, 0, v9, vcc")
    A(f"v_mov_b32 v20, {SY_LDS}\nv_mov_b32 v24, 0\nv_mov_b32 v25, 0\nv_mov_b32 v26, 0\nv_mov_b32 v27, 0\nv_mov_b32 v28, 8\nv_mov_b32 v29, 0\nv_mov_b32 v30, 0\nv_mov_b32 v31, 0")
    A("ds_write_b128 v20, v[24:27]")
    A("ds_write_b128 v20, v[28:31] offset:16")
    if NPRE:
        A(f"s_cmp_lt_u32 {sWV}, 4")
        A("s_cbranch_scc1 L_wx0")
        A(f"s_waitcnt vmcnt(10)")
        A("s_branch L_front_ln")
        A("L_wx0:")
    A(f"s_waitcnt vmcnt(2)")
    A("L_front_ln:")
    stamp(0)
    for i in range(4):
        A(f"v_lshlrev_b32 v{24+2*i}, 16, v{16+i}")
        A(f"v_and_b32 v{25+2*i}, 0xffff0000, v{16+i}")
    A("v_add_f32 v32, v24, v25\nv_add_f32 v33, v26, v27\nv_add_f32 v34, v28, v29\nv_add_f32 v35, v30, v31")
    A("v_add_f32 v32, v32, v33\nv_add_f32 v34, v34, v35\nv_add_f32 v32, v32, v34")
    allreduce(32, 33)
    A(f"v_mul_f32 v32, 0x{f2u(1.0/448):08x}, v32")
    for i in range(8): A(f"v_sub_f32 v{36+i}, v{24+i}, v32")
    A("v_mul_f32 v34, v36, v36")
    for i in range(1, 8): A(f"v_fmac_f32 v34, v{36+i}, v{36+i}")
    A("v_cmp_gt_u32 vcc, 56, v0")
    A("s_nop 1")
    A("v_cndmask_b32 v34, 0, v34, vcc")
    allreduce(34, 33)
    A(f"v_mul_f32 v34, 0x{f2u(1.0/448):08x}, v34")
    A("v_cvt_pk_bf16_f32 v33, v32, v34")
    A("v_lshlrev_b32 v32, 16, v33")
    A("v_and_b32 v34, 0xffff0000, v33")
    A(f"v_add_f32 v34, 0x{f2u(1e-5):08x}, v34")
    A("v_cvt_pk_bf16_f32 v34, v34, v34")
    A("v_lshlrev_b32 v34, 16, v34")
    A("v_sqrt_f32 v34, v34")
    A("s_nop 0")
    A("v_cvt_pk_bf16_f32 v34, v34, v34")
    A("v_lshlrev_b32 v34, 16, v34")
    A("v_rcp_f32 v34, v34")
    for i in range(8): A(f"v_sub_f32 v{36+i}, v{24+i}, v32")
    for i in range(4): A(f"v_cvt_pk_bf16_f32 v{44+i}, v{36+2*i}, v{37+2*i}")
    for i in range(4):
        A(f"v_lshlrev_b32 v{36+2*i}, 16, v{44+i}")
        A(f"v_and_b32 v{37+2*i}, 0xffff0000, v{44+i}")
    for i in range(8): A(f"v_mul_f32 v{36+i}, v{36+i}, v34")
    for i in range(4): A(f"v_cvt_pk_bf16_f32 v{44+i}, v{36+2*i}, v{37+2*i}")
    A(f"s_mul_i32 {sT0}, {sWV}, {XN_STR}")
    A(f"s_add_u32 {sT0}, {sT0}, {XN_LDS}")
    A(f"v_lshlrev_b32 v9, 4, v0")
    A(f"v_add_u32 v9, {sT0}, v9")
    A("s_mov_b32 exec_lo, -1\ns_mov_b32 exec_hi, 0x00ffffff")
    A("ds_write_b128 v9, v[44:47]")
    A("s_mov_b64 exec, -1")
    A("v_and_b32 v9, 7, v0")
    A(f"v_mul_u32_u24 v9, {XN_STR}, v9")
    A("v_lshl_add_u32 v9, v8, 4, v9")
    A(f"v_add_u32 v9, {XN_LDS}, v9")
    A("v_lshrrev_b32 v10, 2, v7")
    A("v_lshl_add_u32 v10, v8, 3, v10")
    A("v_and_b32 v12, 3, v7")
    A("v_lshlrev_b32 v12, 3, v12")
    A("v_lshl_add_u32 v11, v10, 7, v12")
    A(f"v_add_u32 v11, {CB_LDS}, v11")
    A("v_lshl_add_u32 v14, v10, 5, v12")
    A(f"v_add_u32 v14, {CB_LDS}, v14")
    A("v_mul_u32_u24 v10, 896, v10")
    A("v_add_u32 v10, v10, v12")
    A(f"s_lshl_b32 {sT0}, {sWV}, 10")
    A(f"s_add_u32 {sT0}, {sT0}, {CB_LDS}")
    A("v_lshlrev_b32 v13, 4, v0")
    A(f"v_add_u32 v13, {sT0}, v13")
    if NPRE:
        A(f"s_cmp_lt_u32 {sWV}, 4")
        A("s_cbranch_scc1 L_b1_01")
        A(f"s_waitcnt vmcnt(8)")
        A("s_branch L_b1")
        A("L_b1_01:")
    A(f"s_waitcnt vmcnt(0)")
    A("L_b1:")
    A(f"ds_write_b128 v13, v[64:67]")
    A(f"ds_write_b128 v13, v[68:71] offset:8192")
    A(f"s_waitcnt lgkmcnt(0)")
    A(f"s_add_u32 {sTAG0}, {sTAG0}, 1")
    A("s_barrier")
    stamp(1)
    A(f"s_cmp_ge_u32 {sWV}, 4")
    A(f"s_cbranch_scc1 L_stream")
    A(f"s_cmp_eq_u32 {sWV}, 0")
    A("s_cbranch_scc1 L_svc")
    A("s_setprio 2")
    A(f"s_cmp_eq_u32 {sWV}, 1")
    A(f"s_cbranch_scc0 L_wostage")
    A(f"s_cmp_eq_u32 {sFV}, 1")
    A("s_cbranch_scc0 L_ffn_done")
    A("v_lshrrev_b32 v14, 3, v0")
    A("v_and_b32 v13, 7, v0")
    A("v_lshlrev_b32 v13, 4, v13")
    A("v_mul_u32_u24 v12, 3584, v14")
    A("v_add_u32 v12, v12, v13")
    A("v_mul_u32_u24 v14, 896, v14")
    A("v_add_u32 v13, v14, v13")
    A("v_lshlrev_b32 v14, 4, v0")
    A(f"v_add_u32 v14, {CB_LDS}, v14")
    def wburst(lo, hi):
        for i in range(lo, hi):
            A(f"s_mov_b32 s{64+i-lo}, {i*28672 if i < 56 else (i-56)*7168}")
        for i in range(lo, hi):
            d = 96 + (i % 40)*4
            if i < 56: A(f"buffer_load_dwordx4 v[{d}:{d+3}], v12, {srd(W1_)}, s{64+i-lo} offen {WF}")
            else: A(f"buffer_load_dwordx4 v[{d}:{d+3}], v13, {srd(W2_)}, s{64+i-lo} offen {WF}")
    wburst(0, 20); wburst(20, 40)
    stamp(2)
    lds_wait_ge(4, 1, 72)
    def ffn_issue(t, tl):
        b = 32 + (t % 2)*20
        A(f"ds_read_b128 v[{b}:{b+3}], v9 offset:{t*64}")
        for ct in range(4):
            A(f"ds_read_b64_tr_b16 v[{b+4+ct*4}:{b+5+ct*4}], v11 offset:{tl*4096+ct*32}")
            A(f"ds_read_b64_tr_b16 v[{b+6+ct*4}:{b+7+ct*4}], v11 offset:{tl*4096+ct*32+512}")
    issued = 40
    for (lo, hi) in [(0,16),(16,32),(32,48),(48,56)]:
        A(f"s_waitcnt vmcnt({issued - hi})")
        for i in range(lo, hi):
            d = 96 + (i % 40)*4
            A(f"ds_write_b128 v14, v[{d}:{d+3}] offset:{(i-lo)*1024}")
            if (i-lo) % 8 == 7: A("s_waitcnt lgkmcnt(4)")
        A("s_waitcnt lgkmcnt(0)")
        nxt = min(64, hi + 40)
        if nxt > issued:
            wburst(issued, nxt); issued = nxt
        t0 = lo // 4; nt = (hi-lo)//4
        ffn_issue(t0, 0)
        for tl in range(nt):
            t = t0 + tl
            if tl+1 < nt:
                A("s_waitcnt lgkmcnt(4)")
                ffn_issue(t+1, tl+1)
                A("s_waitcnt lgkmcnt(9)")
            else:
                A("s_waitcnt lgkmcnt(0)")
            b = 32 + (t % 2)*20
            for ct in range(4):
                c = "0" if t == 0 else f"v[{16+ct*4}:{19+ct*4}]"
                A(f"v_mfma_f32_16x16x32_bf16 v[{16+ct*4}:{19+ct*4}], v[{b+4+ct*4}:{b+7+ct*4}], v[{b}:{b+3}], {c}")
    A("s_waitcnt vmcnt(0)")
    for i in range(56, 64):
        d = 96 + (i % 40)*4
        A(f"ds_write_b128 v14, v[{d}:{d+3}] offset:{(i-56)*1024}")
    stamp(3)
    A(f"v_mul_u32_u24 v12, {H_STR}, v7")
    A("v_lshl_add_u32 v13, v8, 3, v12")
    A(f"v_add_u32 v13, {H_LDS}, v13")
    A("v_lshl_add_u32 v12, v8, 4, v12")
    A(f"v_add_u32 v12, {H_LDS}, v12")
    for ct in range(4):
        for r in range(4): A(f"v_max_f32 v{16+ct*4+r}, 0, v{16+ct*4+r}")
        A(f"v_cvt_pk_bf16_f32 v{16+ct*4}, v{16+ct*4}, v{17+ct*4}")
        A(f"v_cvt_pk_bf16_f32 v{17+ct*4}, v{18+ct*4}, v{19+ct*4}")
        A(f"ds_write_b64 v13, v[{16+ct*4}:{17+ct*4}] offset:{ct*32}")
    A("s_waitcnt lgkmcnt(0)")
    A("ds_read_b128 v[32:35], v12")
    A("ds_read_b128 v[36:39], v12 offset:64")
    for t in range(2):
        for ct in range(4):
            b = 40 + (t*4+ct)*4
            A(f"ds_read_b64_tr_b16 v[{b}:{b+1}], v11 offset:{t*4096+ct*32}")
            A(f"ds_read_b64_tr_b16 v[{b+2}:{b+3}], v11 offset:{t*4096+ct*32+512}")
        A("s_waitcnt lgkmcnt(0)")
    GB = [72, 80, 88, 96]
    for t in range(2):
        for ct in range(4):
            b = 40 + (t*4+ct)*4
            gb = GB[ct]
            c = "0" if t == 0 else f"v[{gb+2}:{gb+5}]"
            A(f"v_mfma_f32_16x16x32_bf16 v[{gb+2}:{gb+5}], v[{b}:{b+3}], v[{32+t*4}:{35+t*4}], {c}")
    for ct in range(4):
        gb = GB[ct]
        A(f"v_mov_b32 v{gb}, {sTAG0}\nv_mov_b32 v{gb+1}, {sTAG1}\nv_mov_b32 v{gb+6}, {sTAG0}\nv_mov_b32 v{gb+7}, {sTAG1}")
    A("v_mul_u32_u24 v12, 3584, v7")
    A("v_lshl_add_u32 v12, v8, 5, v12")
    A(f"s_mul_i32 {sSO}, {sHS}, {8*3584}")
    A(f"s_lshl_b32 {sT0}, {sFC}, 9")
    A(f"s_add_u32 {sSO}, {sSO}, {sT0}")
    A(f"s_add_u32 {sSO}, {sSO}, {WS_FP}")
    A("s_mov_b32 exec_lo, 0x00ff00ff\ns_mov_b32 exec_hi, 0x00ff00ff")
    for ct in range(4):
        gb = GB[ct]
        A(f"buffer_store_dwordx4 v[{gb}:{gb+3}], v12, {srd(WS_)}, {sSO} offen offset:{ct*128} sc1")
        A(f"buffer_store_dwordx4 v[{gb+4}:{gb+7}], v12, {srd(WS_)}, {sSO} offen offset:{ct*128+16} sc1")
    A("s_mov_b64 exec, -1")
    A("L_ffn_done:")
    lds_set(24, 12)
    stamp(4)
    A("s_branch L_helper_end")

    A("L_svc:")
    def q_issue(t):
        b = 24 + (t % 5)*8
        A(f"ds_read_b128 v[{b}:{b+3}], v9 offset:{t*64}")
        A(f"ds_read_b64_tr_b16 v[{b+4}:{b+5}], v14 offset:{t*1024}")
        A(f"ds_read_b64_tr_b16 v[{b+6}:{b+7}], v14 offset:{t*1024+128}")
    for t in range(4): q_issue(t)
    for t in range(14):
        rem = min(13, t+3) - t
        A(f"s_waitcnt lgkmcnt({rem*3})")
        b = 24 + (t % 5)*8
        c = "0" if t == 0 else "v[16:19]"
        A(f"v_mfma_f32_16x16x32_bf16 v[16:19], v[{b+4}:{b+7}], v[{b}:{b+3}], {c}")
        if t+4 < 14: q_issue(t+4)
    A("v_lshlrev_b32 v12, 14, v7")
    A("v_lshl_add_u32 v12, v8, 4, v12")
    A(f"s_lshl_b32 {sSO}, {sP}, 6")
    A(f"s_add_u32 {sSO}, {sSO}, {WS_Q}")
    A("s_nop 3")
    A("v_cvt_pk_bf16_f32 v16, v16, v17")
    A("v_cvt_pk_bf16_f32 v17, v18, v19")
    A(f"v_mov_b32 v18, {sTAG0}\nv_mov_b32 v19, {sTAG1}")
    A("s_mov_b32 exec_lo, 0x00ff00ff\ns_mov_b32 exec_hi, 0x00ff00ff")
    A(f"buffer_store_dwordx4 v[16:19], v12, {srd(WS_)}, {sSO} offen sc1")
    A("s_mov_b64 exec, -1")
    lds_set(4, 20)
    stamp(2)
    A(f"s_lshl_b32 {sSO}, {sB}, 14")
    A(f"s_lshl_b32 {sT0}, {sHKV}, 11")
    A(f"s_add_u32 {sSO}, {sSO}, {sT0}")
    A(f"s_add_u32 {sSO}, {sSO}, {WS_Q}")
    A("v_lshlrev_b32 v12, 4, v0")
    A(f"s_mov_b32 {sCNT}, 0")
    A("L_qpoll:")
    A(f"buffer_load_dwordx4 v[24:27], v12, {srd(WS_)}, {sSO} offen sc1")
    A(f"buffer_load_dwordx4 v[28:31], v12, {srd(WS_)}, {sSO} offen offset:1024 sc1")
    A(f"s_add_u32 {sCNT}, {sCNT}, 1")
    A(f"s_cmp_gt_u32 {sCNT}, {SPIN}")
    A("s_cbranch_scc1 L_qpoll_x")
    A("s_waitcnt vmcnt(0)")
    A(f"v_cmp_ne_u64 vcc, {sTAG}, v[26:27]")
    A(f"v_cmp_ne_u64 s[56:57], {sTAG}, v[30:31]")
    A("s_or_b64 vcc, vcc, s[56:57]")
    A("s_and_b64 exec, exec, vcc")
    A("s_cbranch_execnz L_qpoll")
    A("L_qpoll_x:")
    A("s_mov_b64 exec, -1")
    A("s_waitcnt vmcnt(0)")
    stamp(4)
    A("v_lshlrev_b32 v12, 3, v0")
    A(f"v_add_u32 v12, {Q_LDS}, v12")
    A("ds_write_b64 v12, v[24:25]")
    A("ds_write_b64 v12, v[28:29] offset:512")
    lds_set(0, 12)
    A("s_branch L_helper_end")

    A("L_wostage:")
    A(f"s_sub_u32 {sT0}, {sWV}, 2")
    A(f"s_mul_i32 {sT1}, {sT0}, 57344")
    A(f"s_mul_i32 {sT0}, {sT0}, 229376")
    A("v_lshlrev_b32 v12, 4, v0")
    A(f"v_add_u32 v13, {sT1}, v12")
    for i in range(14): A(f"s_add_u32 s{64+i}, {sT0}, {i*4096}")
    for i in range(56):
        d = 32 + i*4
        A(f"buffer_load_dwordx4 v[{d}:{d+3}], v12, {srd(WO_)}, s{64+i//4} offen offset:{(i%4)*1024} {WOF}")
        if i % opts.get("woburst", 14) == opts.get("woburst", 14)-1: A("s_nop 0")
    stamp(2)
    for c in range(7):
        A(f"s_waitcnt vmcnt({48-8*c})")
        for i in range(8*c, 8*c+8):
            d = 32 + i*4
            A(f"ds_write_b128 v13, v[{d}:{d+3}] offset:{WO_LDS + i*1024}")
        A("s_waitcnt lgkmcnt(4)")
    lds_inc(20, 12)
    stamp(4)

    A("L_helper_end:")
    if opts.get("norole"): A("s_branch L_fin")
    lds_wait_ge(20, 2, 12, sleep=8)
    A(f"s_mul_i32 {sT0}, {sWV}, 224")
    A(f"v_add_u32 v12, {sT0}, v10")
    A(f"v_add_u32 v13, 57344, v12")
    for tl in range(7):
        for t in range(4):
            b = 128 + (tl*4+t)*4
            va = 12 if t < 2 else 13
            off = WO_LDS + (t % 2)*32*896 + tl*32
            A(f"ds_read_b64_tr_b16 v[{b}:{b+1}], v{va} offset:{off}")
            A(f"ds_read_b64_tr_b16 v[{b+2}:{b+3}], v{va} offset:{off+4*896}")
        A("s_waitcnt lgkmcnt(4)")
    stamp(5)
    def gather(prefix, nload, last_half, base_s, pstride, vb, sleep):
        A("v_lshrrev_b32 v20, 3, v0")
        A(f"v_mul_u32_u24 v20, {pstride}, v20")
        A("v_and_b32 v21, 7, v0")
        A("v_lshl_add_u32 v20, v21, 4, v20")
        for i in range(1, 4): A(f"v_add_u32 v{20+i}, {i*8*pstride}, v20")
        A(f"s_mov_b32 {sCNT}, 0")
        A("s_mov_b32 s58, 0xaaaaaaaa\ns_mov_b32 s59, 0xaaaaaaaa")
        A(f"L_{prefix}poll:")
        for i in range(3): A(f"buffer_load_dwordx4 v[{vb+4*i}:{vb+3+4*i}], v{20+i}, {srd(WS_)}, {base_s} offen sc1")
        if last_half: A("s_mov_b32 exec_hi, 0")
        A(f"buffer_load_dwordx4 v[{vb+12}:{vb+15}], v23, {srd(WS_)}, {base_s} offen sc1")
        if last_half: A("s_mov_b32 exec_hi, -1")
        A(f"s_add_u32 {sCNT}, {sCNT}, 1")
        A(f"s_cmp_gt_u32 {sCNT}, {SPIN}")
        A(f"s_cbranch_scc1 L_{prefix}poll_x")
        for i in range(4):
            b = vb+4*i
            A(f"s_waitcnt vmcnt({3-i})")
            A(f"v_cndmask_b32 v40, v{b}, v{b+2}, s[58:59]")
            A(f"v_cndmask_b32 v41, v{b+1}, v{b+3}, s[58:59]")
            if i == 0: A(f"v_cmp_ne_u64 s[56:57], {sTAG}, v[40:41]")
            else:
                A(f"v_cmp_ne_u64 vcc, {sTAG}, v[40:41]")
                if i == 3 and last_half: A("s_or_b32 s56, s56, vcc_lo")
                else: A("s_or_b64 s[56:57], s[56:57], vcc")
        A("s_cmp_lg_u64 s[56:57], 0")
        A(f"s_cbranch_scc0 L_{prefix}poll_x")
        if sleep: A(f"s_sleep {sleep}")
        A(f"s_branch L_{prefix}poll")
        A(f"L_{prefix}poll_x:")
        A("s_waitcnt vmcnt(0)")
        for i in range(4):
            b = vb+4*i
            A(f"v_cndmask_b32 v{40+2*i}, v{b+2}, v{b}, s[58:59]")
            A(f"v_cndmask_b32 v{41+2*i}, v{b+3}, v{b+1}, s[58:59]")
        if last_half: A("v_cmp_gt_u32 vcc, 32, v0")
        A("v_add_f32 v40, v40, v42\nv_add_f32 v41, v41, v43")
        if last_half: A("v_cndmask_b32 v46, 0, v46, vcc\nv_cndmask_b32 v47, 0, v47, vcc")
        A("v_add_f32 v44, v44, v46\nv_add_f32 v45, v45, v47")
        A("v_add_f32 v40, v40, v44\nv_add_f32 v41, v41, v45")
        A("s_nop 1")
        A("v_add_f32_dpp v40, v40, v40 row_ror:8 row_mask:0xf bank_mask:0xf")
        A("v_add_f32_dpp v41, v41, v41 row_ror:8 row_mask:0xf bank_mask:0xf")
        xreduce2(40, 41, 42, 43)
    A(f"s_cmp_eq_u32 {sWV}, 3")
    A("s_cbranch_scc0 L_nofg")
    A(f"s_cmp_lt_u32 {sHKV}, 7")
    A("s_cbranch_scc0 L_nofg")
    A(f"s_mul_i32 {sSO2}, {sB}, 896")
    A(f"s_lshl_b32 {sT0}, {sCS}, 5")
    A(f"s_add_u32 {sSO2}, {sSO2}, {sT0}")
    A("v_and_b32 v14, 7, v0")
    A("v_lshlrev_b32 v14, 2, v14")
    A(f"buffer_load_dword v19, v14, {srd(X_)}, {sSO2} offen")
    A(f"s_mul_i32 {sSO}, {sB}, 3584")
    A(f"s_lshl_b32 {sT0}, {sCS}, 7")
    A(f"s_add_u32 {sSO}, {sSO}, {sT0}")
    A(f"s_add_u32 {sSO}, {sSO}, {WS_FP}")
    gather("f", 4, True, sSO, 8*3584, 24, 8)
    A("v_cvt_pk_bf16_f32 v42, v40, v41")
    A("v_lshlrev_b32 v40, 16, v42\nv_and_b32 v41, 0xffff0000, v42")
    for r in range(2): A(f"v_mul_f32 v{42+r}, 0x{f2u(-math.log2(math.e)):08x}, v{40+r}")
    for r in range(2): A(f"v_exp_f32 v{42+r}, v{42+r}")
    A("s_nop 0")
    for r in range(2): A(f"v_add_f32 v{42+r}, 1.0, v{42+r}")
    for r in range(2): A(f"v_rcp_f32 v{42+r}, v{42+r}")
    A("s_nop 0")
    for r in range(2): A(f"v_mul_f32 v{40+r}, v{40+r}, v{42+r}")
    A("v_cvt_pk_bf16_f32 v42, v40, v41")
    A("v_lshlrev_b32 v16, 16, v42\nv_and_b32 v17, 0xffff0000, v42")
    A("v_lshlrev_b32 v18, 16, v19\nv_and_b32 v19, 0xffff0000, v19")
    stamp(6)
    A("L_nofg:")
    A(f"s_lshl_b32 {sT0}, {sB}, 5")
    A(f"s_add_u32 {sT0}, {sT0}, {sCS}")
    A(f"s_mul_i32 {sSO2}, {sT0}, 3584")
    A(f"s_mul_i32 {sT0}, {sWV}, 896")
    A(f"s_add_u32 {sSO2}, {sSO2}, {sT0}")
    A(f"s_add_u32 {sSO2}, {sSO2}, {WS_SP}")
    A("v_and_b32 v11, 1, v0")
    A("v_lshlrev_b32 v11, 4, v11")
    A("v_lshl_add_u32 v11, v8, 5, v11")
    A(f"v_lshlrev_b32 v9, 4, v8")
    A(f"v_add_u32 v9, {O_LDS}, v9")
    A(f"s_cmp_eq_u32 {sWV}, 0")
    A("s_cbranch_scc0 L_wait_o")
    lds_wait_ge(16, THRESH, 12, sleep=8)
    stamp(7)
    A("v_lshlrev_b32 v12, 10, v8")
    A("v_lshl_add_u32 v12, v7, 4, v12")
    A(f"s_lshl_b32 {sT0}, {sSPL}, 8")
    A(f"v_add_u32 v12, {sT0}, v12")
    A("v_lshlrev_b32 v13, 4, v8")
    A(f"s_and_b32 {sT0}, {sSLOT}, 0xfc")
    A(f"s_mul_i32 {sSO}, {sT0}, {OP_STR}")
    A(f"s_add_u32 {sSO}, {sSO}, {WS_OP}")
    for s_ in range(4): A(f"s_add_u32 s{64+s_}, {sSO}, {s_*OP_STR}")
    A(f"s_mov_b32 {sCNT}, 0")
    A("s_mov_b32 exec_hi, 0")
    A("L_gpoll:")
    for s_ in range(4): A(f"buffer_load_dwordx4 v[{48+4*s_}:{51+4*s_}], v12, {srd(WS_)}, s{64+s_} offen sc1")
    for s_ in range(4): A(f"buffer_load_dwordx4 v[{64+4*s_}:{67+4*s_}], v13, {srd(WS_)}, s{64+s_} offen offset:2048 sc1")
    A(f"s_add_u32 {sCNT}, {sCNT}, 1")
    A(f"s_cmp_gt_u32 {sCNT}, {SPIN}")
    A("s_cbranch_scc1 L_gpoll_x")
    for i in range(8):
        A(f"s_waitcnt vmcnt({7-i})")
        if i == 0: A(f"v_cmp_ne_u64 s[56:57], {sTAG}, v[50:51]")
        else:
            A(f"v_cmp_ne_u64 vcc, {sTAG}, v[{50+4*i}:{51+4*i}]")
            A("s_or_b64 s[56:57], s[56:57], vcc")
    A("s_cmp_lg_u64 s[56:57], 0")
    A("s_cbranch_scc1 L_gpoll")
    A("L_gpoll_x:")
    A("s_waitcnt vmcnt(0)")
    stamp(8)
    A("v_max3_f32 v80, v64, v68, v72")
    A("v_max_f32 v80, v80, v76")
    for s_ in range(4): A(f"v_sub_f32 v{64+4*s_}, v{64+4*s_}, v80")
    for s_ in range(4): A(f"v_exp_f32 v{64+4*s_}, v{64+4*s_}")
    for s_ in range(4):
        A(f"v_lshlrev_b32 v{84+4*s_}, 16, v{48+4*s_}")
        A(f"v_and_b32 v{85+4*s_}, 0xffff0000, v{48+4*s_}")
        A(f"v_lshlrev_b32 v{86+4*s_}, 16, v{49+4*s_}")
        A(f"v_and_b32 v{87+4*s_}, 0xffff0000, v{49+4*s_}")
    A("v_mul_f32 v81, v64, v65")
    for s_ in range(1, 4): A(f"v_fmac_f32 v81, v{64+4*s_}, v{65+4*s_}")
    A("v_rcp_f32 v81, v81")
    for e in range(4): A(f"v_mul_f32 v{84+e}, v64, v{84+e}")
    for s_ in range(1, 4):
        for e in range(4): A(f"v_fmac_f32 v{84+e}, v{64+4*s_}, v{84+4*s_+e}")
    for e in range(4): A(f"v_mul_f32 v{84+e}, v{84+e}, v81")
    A("v_cvt_pk_bf16_f32 v84, v84, v85")
    A("v_cvt_pk_bf16_f32 v85, v86, v87")
    A("v_lshlrev_b32 v12, 3, v0")
    A(f"v_add_u32 v12, {O_LDS}, v12")
    A("ds_write_b64 v12, v[84:85]")
    A("s_mov_b64 exec, -1")
    lds_set(12, 12)
    A("s_branch L_gemv")
    A("L_wait_o:")
    lds_wait_ge(16, THRESH, 12, sleep=8)
    lds_wait_ge(12, 1, 12, sleep=0)
    A("L_gemv:")
    for t in range(4): A(f"ds_read_b128 v[{48+4*t}:{51+4*t}], v9 offset:{t*64}")
    A("s_mov_b32 s58, 0xaaaaaaaa\ns_mov_b32 s59, 0xaaaaaaaa")
    DB = 64
    for t in range(4):
        A(f"s_waitcnt lgkmcnt({3-t})")
        for tl in range(7):
            d = DB + 4*tl
            c = "0" if t == 0 else f"v[{d}:{d+3}]"
            b = 128 + (tl*4+t)*4
            A(f"v_mfma_f32_16x16x32_bf16 v[{d}:{d+3}], v[{b}:{b+3}], v[{48+4*t}:{51+4*t}], {c}")
    stamp(9)
    A(f"v_mov_b32 v92, {sTAG0}\nv_mov_b32 v93, {sTAG1}")
    A("s_mov_b32 exec_lo, 0x00030003\ns_mov_b32 exec_hi, 0x00030003")
    for tl in range(7):
        d = DB + 4*tl; o = 96 + 4*tl
        A(f"v_cndmask_b32 v{o}, v92, v{d+2}, s[58:59]")
        A(f"v_cndmask_b32 v{o+1}, v93, v{d+3}, s[58:59]")
        A(f"v_cndmask_b32 v{o+2}, v{d}, v92, s[58:59]")
        A(f"v_cndmask_b32 v{o+3}, v{d+1}, v93, s[58:59]")
    for tl in range(7):
        o = 96 + 4*tl
        A(f"buffer_store_dwordx4 v[{o}:{o+3}], v11, {srd(WS_)}, {sSO2} offen offset:{tl*128} sc1")
    A("s_mov_b64 exec, -1")
    stamp(10)
    A(f"s_cmp_eq_u32 {sWV}, 3")
    A("s_cbranch_scc0 L_fin")
    A(f"s_cmp_lt_u32 {sHKV}, 7")
    A("s_cbranch_scc0 L_fin")
    A(f"s_mul_i32 {sSO}, {sB}, {32*3584}")
    A(f"s_lshl_b32 {sT0}, {sCS}, 7")
    A(f"s_add_u32 {sSO}, {sSO}, {sT0}")
    A(f"s_add_u32 {sSO}, {sSO}, {WS_SP}")
    A(f"s_mul_i32 {sSO2}, {sB}, 896")
    A(f"s_lshl_b32 {sT0}, {sCS}, 5")
    A(f"s_add_u32 {sSO2}, {sSO2}, {sT0}")
    gather("s", 4, False, sSO, 3584, 24, 0)
    stamp(12)
    A("v_cvt_pk_bf16_f32 v42, v40, v41")
    A("v_lshlrev_b32 v40, 16, v42\nv_and_b32 v41, 0xffff0000, v42")
    A("v_mul_f32 v40, v40, v16\nv_mul_f32 v41, v41, v17")
    A("v_cvt_pk_bf16_f32 v42, v40, v41")
    A("v_lshlrev_b32 v40, 16, v42\nv_and_b32 v41, 0xffff0000, v42")
    A("v_add_f32 v40, v18, v40\nv_add_f32 v41, v19, v41")
    A("v_cvt_pk_bf16_f32 v42, v40, v41")
    A("s_mov_b64 exec, 0xff")
    A(f"buffer_store_dword v42, v14, {srd(OUT_)}, {sSO2} offen")
    A("s_mov_b64 exec, -1")
    A(f"s_cmp_eq_u32 {sWG}, 0")
    A("s_cbranch_scc0 L_fin")
    A(f"v_mov_b32 v24, {sTAG0}\nv_mov_b32 v25, {sTAG1}\nv_mov_b32 v22, {WS_EP}")
    A("s_mov_b64 exec, 1")
    A(f"buffer_store_dwordx2 v[24:25], v22, {srd(WS_)}, 0 offen sc1")
    A("s_mov_b64 exec, -1")
    A("s_branch L_fin")

    A("L_stream:")
    A("s_setprio 1")
    if not NPRE:
        kloads("A", sT3)
        A("s_nop 0")
    A(f"s_add_u32 {sT2}, {sT3}, 32768")
    vloads("A", sT3)
    A("s_nop 0")
    kloads("B", sT2)
    A("s_nop 0")
    vloads("B", sT2)
    stamp(5)
    lds_wait_ge(0, 1, 12)
    A("v_lshrrev_b32 v13, 3, v7")
    A("v_lshlrev_b32 v13, 9, v13")
    A("v_lshl_add_u32 v13, v8, 4, v13")
    A(f"v_add_u32 v13, {Q_LDS}, v13")
    for i in range(8):
        A(f"ds_read_b128 v[{16+4*i}:{19+4*i}], v13 offset:{i*64}")
    A(f"v_mov_b32 v74, {SY_LDS+16}")
    A("v_mov_b32 v75, 1")
    def grab():
        A("s_mov_b64 exec, 1")
        A("ds_add_rtn_u32 v76, v74, v75")
        A("s_mov_b64 exec, -1")
    grab()
    A(f"v_mov_b32 v68, 0x{f2u(-1e30):08x}")
    A("v_mov_b32 v69, 0")
    for i in range(8): A(f"v_mov_b32 v{52+i}, 0")
    A("v_lshrrev_b32 v78, 1, v8")
    A("v_lshlrev_b32 v78, 10, v78")
    A("v_lshl_add_u32 v78, v7, 5, v78")
    A("v_and_b32 v79, 1, v8")
    A("v_lshl_add_u32 v78, v79, 4, v78")
    A(f"s_and_b32 {sT1}, {sWV}, 3")
    A(f"s_lshl_b32 {sT0}, {sT1}, 11")
    A(f"s_add_u32 {sT0}, {sT0}, {CB_LDS}")
    A(f"v_add_u32 v78, {sT0}, v78")
    A("v_lshrrev_b32 v79, 3, v7")
    A("v_lshlrev_b32 v79, 5, v79")
    A(f"s_lshl_b32 {sT0}, {sT1}, 3")
    A(f"s_add_u32 {sT0}, {sT0}, {ST_LDS}")
    A(f"v_add_u32 v79, {sT0}, v79")
    A("s_waitcnt lgkmcnt(0)")
    A(f"v_readfirstlane_b32 {sNX}, v76")
    stamp(6)
    A(f"s_cmp_lt_u32 {sNX}, 64")
    A("s_cbranch_scc0 L_noref_A")
    def ands(st, r):
        for i in range(4): A(f"v_and_b32 v{60+4*st+i}, v{48+r}, v{3+i}")
    def proc(sl, kind):
        o = "B" if sl == "A" else "A"
        base = SLOT[sl]
        A(f"L_{kind}_{sl}:")
        if kind == "full":
            grab()
            A(f"s_lshl_b32 {sSO}, {sNX}, 13")
        if kind == "noref":
            lds_wait_ge(24, 1, 70)
        A(f"s_waitcnt vmcnt({8 if kind == 'last' else 24})")
        for i in range(8):
            c = "0" if i == 0 else "v[48:51]"
            A(f"v_mfma_f32_16x16x32_bf16 v[48:51], v[{base+4*i}:{base+4*i+3}], v[{16+4*i}:{19+4*i}], {c}")
        if kind == "full": kloads(sl, sSO)
        else: A("s_nop 7")
        A("v_max3_f32 v70, v48, v49, v50")
        A("v_max_f32 v70, v70, v51")
        xreduce(70, 71, "v_max_f32")
        A(f"v_mul_f32 v70, {sC}, v70")
        A("v_max_f32 v70, v70, v68")
        A("v_sub_f32 v72, v68, v70")
        A("v_exp_f32 v72, v72")
        A("v_mov_b32 v68, v70")
        for r in range(4): A(f"v_fma_f32 v{48+r}, v{48+r}, {sC}, -v70")
        for r in range(4): A(f"v_exp_f32 v{48+r}, v{48+r}")
        A("v_mov_b32_dpp v73, v72 row_ror:8 row_mask:0xf bank_mask:0xf")
        A("v_mul_f32 v69, v69, v72")
        A(f"v_cndmask_b32 v73, v73, v72, {sAM}")
        for r in range(4):
            A(f"v_add_f32 v69, v69, v{48+r}")
            A(f"v_cvt_pk_bf16_f32 v{48+r}, v{48+r}, v{48+r}")
        for i in range(8): A(f"v_mul_f32 v{52+i}, v{52+i}, v73")
        ands(0, 0); ands(1, 1)
        if kind == "last":
            xreduce(69, 71, "v_add_f32")
            A("ds_write_b64 v79, v[68:69]")
        A(f"s_waitcnt vmcnt({ {'full':24,'noref':16,'last':0}[kind] })")
        def pv(st, r):
            for hf in range(2):
                vb = base + 32 + (r*2+hf)*4
                A(f"v_mfma_f32_16x16x32_bf16 v[{52+4*hf}:{55+4*hf}], v[{60+4*st}:{63+4*st}], v[{vb}:{vb+3}], v[{52+4*hf}:{55+4*hf}]")
        pv(0, 0); ands(0, 2); pv(1, 1); ands(1, 3); pv(0, 2); pv(1, 3)
        if kind == "full":
            vloads(sl, sSO)
            A("s_waitcnt lgkmcnt(0)")
            A(f"v_readfirstlane_b32 {sNX}, v76")
            A(f"s_cmp_lt_u32 {sNX}, 64")
            A(f"s_cbranch_scc0 L_noref_{o}")
            if sl == "B": A("s_branch L_full_A")
        elif kind == "last":
            if sl == "B": A("s_branch L_done")
    proc("A", "full"); proc("B", "full")
    proc("A", "noref"); proc("B", "last")
    proc("B", "noref"); proc("A", "last")
    A("L_done:")
    stamp(8)
    A("s_setprio 3")
    A(f"v_mov_b32 v20, {SY_LDS+8}")
    A("v_mov_b32 v21, 1")
    A("v_lshlrev_b32 v18, 5, v0")
    A(f"v_add_u32 v18, {CB_LDS}, v18")
    A("v_lshrrev_b32 v19, 5, v0")
    A("v_lshlrev_b32 v19, 5, v19")
    A(f"v_add_u32 v19, {ST_LDS}, v19")
    A("s_nop 0")
    A("ds_write_b128 v78, v[52:55]")
    A("ds_write_b128 v78, v[56:59] offset:512")
    A("s_mov_b64 exec, 1")
    A("s_waitcnt lgkmcnt(0)")
    A("ds_add_rtn_u32 v21, v20, v21")
    A("s_mov_b64 exec, -1")
    A(f"s_mul_i32 {sSO}, {sSLOT}, {OP_STR}")
    A(f"s_add_u32 {sSO}, {sSO}, {WS_OP}")
    A("v_lshrrev_b32 v53, 5, v0")
    A("v_lshlrev_b32 v53, 4, v53")
    A("v_lshlrev_b32 v52, 5, v0")
    A(f"v_mov_b32 v46, {sTAG0}\nv_mov_b32 v47, {sTAG1}\nv_mov_b32 v50, {sTAG0}\nv_mov_b32 v51, {sTAG1}")
    A("s_waitcnt lgkmcnt(0)")
    A(f"v_readfirstlane_b32 {sARR}, v21")
    A(f"s_cmp_eq_u32 {sARR}, 3")
    A("s_cbranch_scc0 L_fin")
    for i in range(2): A(f"ds_read_b128 v[{20+4*i}:{23+4*i}], v19 offset:{16*i}")
    CBR = 96
    for w in range(4):
        A(f"ds_read_b128 v[{CBR+8*w}:{CBR+8*w+3}], v18 offset:{2048*w}")
        A(f"ds_read_b128 v[{CBR+8*w+4}:{CBR+8*w+7}], v18 offset:{2048*w+16}")
    A("s_waitcnt lgkmcnt(8)")
    A("v_max3_f32 v16, v20, v22, v24")
    A("v_max_f32 v16, v16, v26")
    for w in range(4): A(f"v_sub_f32 v{20+2*w}, v{20+2*w}, v16")
    for w in range(4): A(f"v_exp_f32 v{20+2*w}, v{20+2*w}")
    A(f"v_mov_b32 v18, {sTAG0}\nv_mov_b32 v19, {sTAG1}")
    A("v_mul_f32 v17, v20, v21")
    for w in range(1, 4): A(f"v_fmac_f32 v17, v{20+2*w}, v{21+2*w}")
    A("s_mov_b32 exec_lo, 1\ns_mov_b32 exec_hi, 1")
    A(f"buffer_store_dwordx4 v[16:19], v53, {srd(WS_)}, {sSO} offen offset:2048 sc1")
    A("s_mov_b64 exec, -1")
    for w in range(4):
        A(f"s_waitcnt lgkmcnt({2*(3-w)})")
        for e in range(8):
            if w == 0: A(f"v_mul_f32 v{36+e}, v20, v{CBR+e}")
            else: A(f"v_fmac_f32 v{36+e}, v{20+2*w}, v{CBR+8*w+e}")
    A("v_cvt_pk_bf16_f32 v44, v36, v37")
    A("v_cvt_pk_bf16_f32 v45, v38, v39")
    A("v_cvt_pk_bf16_f32 v48, v40, v41")
    A("v_cvt_pk_bf16_f32 v49, v42, v43")
    A(f"buffer_store_dwordx4 v[44:47], v52, {srd(WS_)}, {sSO} offen sc1")
    A(f"buffer_store_dwordx4 v[48:51], v52, {srd(WS_)}, {sSO} offen offset:16 sc1")
    stamp(9)
    A("L_fin:")
    if TS:
        stamp(14)
        A(f"v_writelane_b32 v15, s62, 15")
        A(f"s_lshl_b32 {sT0}, {sWG}, 3")
        A(f"s_add_u32 {sT0}, {sT0}, {sWV}")
        A(f"s_lshl_b32 {sSO}, {sT0}, 6")
        A(f"s_add_u32 {sSO}, {sSO}, {WS_TS}")
        A("v_lshlrev_b32 v21, 2, v0")
        A("s_mov_b64 exec, 0xffff")
        A(f"buffer_store_dword v15, v21, {srd(WS_)}, {sSO} offen")
    A("L_end:")
    A("s_endpgm")

    hdr = open("recurrent_scan__gqa_block_cached__dense_activation_relu__decode.s.ref").read().split("; Override launch geometry")[0]
    out = hdr
    out += f"; @launch grid=(256,1,1) block=(512,1,1) lds={LDS_TOTAL}\n"
    out += '.amdgcn_target "amdgcn-amd-amdhsa--gfx950"\n.text\n'
    out += f".globl {NAME}\n.p2align 8\n.type {NAME},@function\n{NAME}:\n"
    out += "\n".join(g.L) + "\n"
    out += f""".section .rodata,"a"
.p2align 6
.amdhsa_kernel {NAME}
  .amdhsa_next_free_vgpr 256
  .amdhsa_next_free_sgpr 102
  .amdhsa_accum_offset 256
  .amdhsa_group_segment_fixed_size 0
  .amdhsa_kernarg_size 88
  .amdhsa_user_sgpr_count 2
  .amdhsa_user_sgpr_kernarg_segment_ptr 1
  .amdhsa_system_sgpr_workgroup_id_x 1
.end_amdhsa_kernel
"""
    return out, LDS_TOTAL

if __name__ == "__main__":
    opts = {}
    outp = "recurrent_scan__gqa_block_cached__dense_activation_relu__decode.s"
    for a in sys.argv[1:]:
        if a.startswith("-o="): outp = a[3:]
        else:
            k, v = a.split("=")
            opts[k] = int(v) if v.lstrip("-").isdigit() else v.replace("_", " ")
    s, lds = build(opts)
    open(outp, "w").write(s)
    print("wrote", outp, "lds", lds)
```

```python
import sys, math, struct

NAME = "recurrent_scan__gqa_block_cached__dense_activation_relu__decode_kernel"
def f2u(f): return struct.unpack("<I", struct.pack("<f", f))[0]

class Gen:
    def __init__(self):
        self.L = []; self.uid = 0
    def A(self, s):
        for line in s.split("\n"):
            t = line.strip()
            self.L.append(t if t.endswith(":") else "  " + t)
    def lab(self, p):
        self.uid += 1
        return f"L_{p}_{self.uid}"

def build(opts):
    TS = opts.get("ts", 0)
    KVF = opts.get("kvflags", "nt")
    WF = opts.get("wflags", "nt")
    WOF = opts.get("woflags", WF)
    SPIN = opts.get("spin", 200000)
    NPRE = opts.get("npre", 1)
    THRESH = opts.get("thresh", 66)
    g = Gen(); A = g.A

    WO_LDS = 0
    XN_LDS = 114688
    XN_STR = 912
    Q_LDS = XN_LDS + 8*XN_STR
    H_LDS = Q_LDS + 1024
    H_STR = 144
    ST_LDS = H_LDS + 2304
    O_LDS = ST_LDS + 128
    SY_LDS = O_LDS + 256
    CB_LDS = SY_LDS + 64
    LDS_TOTAL = CB_LDS + 16384
    assert LDS_TOTAL <= 163840 and CB_LDS % 16 == 0
    WS_EP = 0
    WS_Q = 0x1000
    WS_FP = 0x40000
    WS_OP = 0x110000
    OP_STR = 2176
    WS_SP = 0x1A0000
    WS_TS = 0x300000
    WS_SIZE = 0x400000

    CSC = math.log2(math.e) / 16.0
    sWG, sWV, sHKV, sIDX, sB, sSPL = "s2", "s3", "s4", "s5", "s6", "s7"
    K_, V_, X_, WQ_, W1_, W2_, WO_, WS_, OUT_ = 8, 12, 16, 20, 24, 28, 32, 36, 44
    def srd(n): return f"s[{n}:{n+3}]"
    sP, sHS, sFC, sFV, sCS, sSLOT, sC = "s86", "s87", "s88", "s89", "s90", "s91", "s93"
    sTAG = "s[94:95]"; sTAG0, sTAG1 = "s94", "s95"
    sT0, sT1, sT2, sT3 = "s48", "s49", "s50", "s51"
    sSO = "s52"; sSO2 = "s53"; sCNT = "s54"; sNX = "s55"; sARR = "s92"
    sAM = "s[96:97]"

    def stamp(i):
        if not TS: return
        A(f"s_memrealtime s[60:61]")
        A("s_waitcnt lgkmcnt(0)")
        A(f"v_writelane_b32 v15, s60, {i}")
    def xreduce(v, t, op="v_add_f32"):
        A(f"v_mov_b32 v{t}, v{v}")
        A("s_nop 1")
        A(f"v_permlane16_swap_b32 v{v}, v{t}")
        A("s_nop 1")
        A(f"{op} v{v}, v{v}, v{t}")
        A(f"v_mov_b32 v{t}, v{v}")
        A("s_nop 1")
        A(f"v_permlane32_swap_b32 v{v}, v{t}")
        A("s_nop 1")
        A(f"{op} v{v}, v{v}, v{t}")
    def xreduce2(v0_, v1_, t0, t1, op="v_add_f32"):
        for sw in ["v_permlane16_swap_b32", "v_permlane32_swap_b32"]:
            A(f"v_mov_b32 v{t0}, v{v0_}")
            A(f"v_mov_b32 v{t1}, v{v1_}")
            A("s_nop 0")
            A(f"{sw} v{v0_}, v{t0}")
            A(f"{sw} v{v1_}, v{t1}")
            A("s_nop 0")
            A(f"{op} v{v0_}, v{v0_}, v{t0}")
            A(f"{op} v{v1_}, v{v1_}, v{t1}")
    def allreduce(v, t, op="v_add_f32"):
        for mode in ["quad_perm:[1,0,3,2]", "quad_perm:[2,3,0,1]", "row_half_mirror", "row_mirror"]:
            A("s_nop 1")
            A(f"{op}_dpp v{v}, v{v}, v{v} {mode} row_mask:0xf bank_mask:0xf")
        xreduce(v, t, op)
    def lds_wait_ge(off, val, vt, sleep=2):
        l0 = g.lab("lw"); l1 = g.lab("lwx")
        A(f"v_mov_b32 v{vt}, {SY_LDS+off}")
        A(f"s_mov_b32 {sCNT}, 0")
        A(f"{l0}:")
        A(f"ds_read_b32 v{vt+1}, v{vt}")
        A(f"s_add_u32 {sCNT}, {sCNT}, 1")
        A(f"s_cmp_gt_u32 {sCNT}, {SPIN}")
        A(f"s_cbranch_scc1 {l1}")
        A("s_waitcnt lgkmcnt(0)")
        A(f"v_cmp_le_u32 vcc, {val}, v{vt+1}")
        A(f"s_cbranch_vccnz {l1}")
        if sleep: A(f"s_sleep {sleep}")
        A(f"s_branch {l0}")
        A(f"{l1}:")
        A("s_waitcnt lgkmcnt(0)")
    def lds_set(off, vt):
        A(f"v_mov_b32 v{vt}, {SY_LDS+off}")
        A(f"v_mov_b32 v{vt+1}, 1")
        A("s_waitcnt lgkmcnt(0)")
        A(f"ds_write_b32 v{vt}, v{vt+1}")
    def lds_inc(off, vt, ret=None):
        A(f"v_mov_b32 v{vt}, {SY_LDS+off}")
        A(f"v_mov_b32 v{vt+1}, 1")
        A("s_mov_b64 exec, 1")
        A("s_waitcnt lgkmcnt(0)")
        if ret:
            A(f"ds_add_rtn_u32 v{vt+1}, v{vt}, v{vt+1}")
            A("s_mov_b64 exec, -1")
            A("s_waitcnt lgkmcnt(0)")
            A(f"v_readfirstlane_b32 {ret}, v{vt+1}")
        else:
            A(f"ds_add_u32 v{vt}, v{vt+1}")
            A("s_mov_b64 exec, -1")

    SLOT = {"A": 128, "B": 192}
    def kloads(sl, so):
        for i in range(8):
            d = SLOT[sl] + i*4
            A(f"buffer_load_dwordx4 v[{d}:{d+3}], v1, {srd(K_)}, {so} offen offset:{i*64} {KVF}")
    def vloads(sl, so):
        for i in range(8):
            d = SLOT[sl] + 32 + i*4
            A(f"buffer_load_dwordx4 v[{d}:{d+3}], v2, {srd(V_)}, {so} offen offset:{(i//2)*512+(i%2)*256} {KVF}")

    A(f"s_cmp_ge_u32 {sWG}, 256")
    A("s_cbranch_scc1 L_end")
    A("s_setprio 3")
    A("s_load_dwordx16 s[64:79], s[0:1], 0")
    A("s_load_dwordx4 s[80:83], s[0:1], 64")
    A("s_load_dwordx2 s[84:85], s[0:1], 80")
    if TS:
        A("v_mov_b32 v15, 0")
        A("s_memrealtime s[62:63]")
    A("v_lshrrev_b32 v1, 6, v0")
    A("v_and_b32 v0, 63, v0")
    A(f"s_and_b32 {sHKV}, {sWG}, 7")
    A(f"v_readfirstlane_b32 {sWV}, v1")
    A(f"s_lshr_b32 {sIDX}, {sWG}, 3")
    A(f"s_and_b32 {sB}, {sIDX}, 7")
    A(f"s_lshr_b32 {sSPL}, {sIDX}, 3")
    A(f"s_lshl_b32 {sP}, {sHKV}, 5")
    A(f"s_add_u32 {sP}, {sP}, {sIDX}")
    A(f"s_lshl_b32 {sSLOT}, {sB}, 3")
    A(f"s_add_u32 {sSLOT}, {sSLOT}, {sHKV}")
    A(f"s_lshl_b32 {sSLOT}, {sSLOT}, 2")
    A(f"s_add_u32 {sSLOT}, {sSLOT}, {sSPL}")
    A(f"s_lshl_b32 {sT2}, {sSLOT}, 19")
    A("v_and_b32 v7, 15, v0")
    A("v_lshrrev_b32 v8, 4, v0")
    A(f"s_mul_i32 {sT3}, {sWV}, 896")
    A(f"v_lshlrev_b32 v9, 4, v0")
    A(f"v_add_u32 v9, {sT3}, v9")
    A("v_mov_b32 v10, 0x7fffff00")
    A("v_cmp_gt_u32 vcc, 56, v0")
    A("v_lshrrev_b32 v11, 1, v0")
    A("v_lshlrev_b32 v11, 13, v11")
    A("v_cndmask_b32 v9, v10, v9, vcc")
    A("v_and_b32 v12, 1, v0")
    A("v_lshl_add_u32 v11, v12, 4, v11")
    A("v_lshlrev_b32 v1, 9, v7")
    A("v_lshl_add_u32 v1, v8, 4, v1")
    A(f"s_lshl_b32 {sT0}, {sP}, 5")
    A(f"s_lshl_b32 {sSO}, {sWV}, 18")
    A(f"s_add_u32 {sSO2}, {sSO}, {8<<18}")
    A(f"s_mov_b32 s{X_+2}, 7168\ns_mov_b32 s{X_+3}, 0x20000")
    A(f"s_sub_u32 s{WQ_+2}, 3670016, {sT0}\ns_mov_b32 s{WQ_+3}, 0x20000")
    A(f"s_mov_b32 s{K_+2}, 0x80000\ns_mov_b32 s{K_+3}, 0x20000")
    A(f"s_and_b32 {sT3}, {sWV}, 3")
    A(f"s_lshl_b32 {sT3}, {sT3}, 13")
    A("s_waitcnt lgkmcnt(0)")
    A(f"s_mov_b32 s{X_}, s64\ns_mov_b32 s{X_+1}, s65")
    A(f"s_add_u32 s{WQ_}, s70, {sT0}\ns_addc_u32 s{WQ_+1}, s71, 0")
    A(f"buffer_load_dwordx4 v[16:19], v9, {srd(X_)}, 0 offen")
    A(f"buffer_load_dwordx4 v[64:67], v11, {srd(WQ_)}, {sSO} offen {WF}")
    A(f"buffer_load_dwordx4 v[68:71], v11, {srd(WQ_)}, {sSO2} offen {WF}")
    A(f"s_load_dwordx2 {sTAG}, s[84:85], {WS_EP}")
    A(f"s_add_u32 s{K_}, s66, {sT2}\ns_addc_u32 s{K_+1}, s67, 0")
    if NPRE:
        A(f"s_cmp_lt_u32 {sWV}, 4")
        A("s_cbranch_scc1 L_front_noload")
        A("s_setprio 1")
        kloads("A", sT3)
        A("L_front_noload:")
    A(f"s_add_u32 s{V_}, s68, {sT2}\ns_addc_u32 s{V_+1}, s69, 0\ns_mov_b32 s{V_+2}, 0x80000\ns_mov_b32 s{V_+3}, 0x20000")
    A(f"s_mul_i32 {sT0}, {sIDX}, 37")
    A(f"s_lshr_b32 {sT0}, {sT0}, 8")
    A(f"s_mul_i32 {sT1}, {sT0}, 7")
    A(f"s_sub_u32 {sFC}, {sIDX}, {sT1}")
    A(f"s_lshl_b32 {sHS}, {sT0}, 3")
    A(f"s_add_u32 {sHS}, {sHS}, {sHKV}")
    A(f"s_cmp_lt_u32 {sHS}, {0 if opts.get('noffn') else 28}")
    A(f"s_cselect_b32 {sFV}, 1, 0")
    A(f"s_lshl_b32 {sCS}, {sHKV}, 2")
    A(f"s_add_u32 {sCS}, {sCS}, {sSPL}")
    A(f"s_mov_b32 {sC}, 0x{f2u(CSC):08x}")
    A(f"s_lshl_b32 {sT0}, {sHS}, 7")
    A(f"s_add_u32 s{W1_}, s76, {sT0}\ns_addc_u32 s{W1_+1}, s77, 0\ns_sub_u32 {sT1}, 1605632, {sT0}")
    A(f"s_cmp_eq_u32 {sFV}, 1\ns_cselect_b32 s{W1_+2}, {sT1}, 0\ns_mov_b32 s{W1_+3}, 0x20000")
    A(f"s_mul_i32 {sT0}, {sHS}, 57344\ns_lshl_b32 {sT1}, {sFC}, 7\ns_add_u32 {sT0}, {sT0}, {sT1}")
    A(f"s_add_u32 s{W2_}, s78, {sT0}\ns_addc_u32 s{W2_+1}, s79, 0\ns_sub_u32 {sT1}, 1605632, {sT0}")
    A(f"s_cmp_eq_u32 {sFV}, 1\ns_cselect_b32 s{W2_+2}, {sT1}, 0\ns_mov_b32 s{W2_+3}, 0x20000")
    A(f"s_mul_i32 {sT0}, {sHKV}, 458752\ns_mul_i32 {sT1}, {sSPL}, 57344\ns_add_u32 {sT0}, {sT0}, {sT1}")
    A(f"s_add_u32 s{WO_}, s72, {sT0}\ns_addc_u32 s{WO_+1}, s73, 0\ns_sub_u32 s{WO_+2}, {0 if opts.get('nowo') else 3670016}, {0 if opts.get('nowo') else sT0}\ns_mov_b32 s{WO_+3}, 0x20000")
    A(f"s_mov_b32 s{WS_}, s84\ns_mov_b32 s{WS_+1}, s85\ns_mov_b32 s{WS_+2}, {WS_SIZE}\ns_mov_b32 s{WS_+3}, 0x20000")
    A(f"s_mov_b32 s{OUT_}, s80\ns_mov_b32 s{OUT_+1}, s81\ns_mov_b32 s{OUT_+2}, 7168\ns_mov_b32 s{OUT_+3}, 0x20000")
    A("s_mov_b32 s96, 0x00ff00ff\ns_mov_b32 s97, 0xff00ff00")
    A("v_lshlrev_b32 v2, 11, v8")
    A("v_lshl_add_u32 v2, v7, 4, v2")
    A("v_and_b32 v9, 1, v0")
    A("v_lshlrev_b32 v9, 4, v9")
    A("v_mov_b32 v10, 0xffff")
    A("v_lshlrev_b32 v9, v9, v10")
    A("v_bfe_u32 v10, v0, 1, 2")
    for i in range(4):
        A(f"v_cmp_eq_u32 vcc, {i}, v10")
        A("s_nop 1")
        A(f"v_cndmask_b32 v{3+i}, 0, v9, vcc")
    A(f"v_mov_b32 v20, {SY_LDS}\nv_mov_b32 v24, 0\nv_mov_b32 v25, 0\nv_mov_b32 v26, 0\nv_mov_b32 v27, 0\nv_mov_b32 v28, 8\nv_mov_b32 v29, 0\nv_mov_b32 v30, 0\nv_mov_b32 v31, 0")
    A("ds_write_b128 v20, v[24:27]")
    A("ds_write_b128 v20, v[28:31] offset:16")
    if NPRE:
        A(f"s_cmp_lt_u32 {sWV}, 4")
        A("s_cbranch_scc1 L_wx0")
        A(f"s_waitcnt vmcnt(10)")
        A("s_branch L_front_ln")
        A("L_wx0:")
    A(f"s_waitcnt vmcnt(2)")
    A("L_front_ln:")
    stamp(0)
    for i in range(4):
        A(f"v_lshlrev_b32 v{24+2*i}, 16, v{16+i}")
        A(f"v_and_b32 v{25+2*i}, 0xffff0000, v{16+i}")
    A("v_add_f32 v32, v24, v25\nv_add_f32 v33, v26, v27\nv_add_f32 v34, v28, v29\nv_add_f32 v35, v30, v31")
    A("v_add_f32 v32, v32, v33\nv_add_f32 v34, v34, v35\nv_add_f32 v32, v32, v34")
    allreduce(32, 33)
    A(f"v_mul_f32 v32, 0x{f2u(1.0/448):08x}, v32")
    for i in range(8): A(f"v_sub_f32 v{36+i}, v{24+i}, v32")
    A("v_mul_f32 v34, v36, v36")
    for i in range(1, 8): A(f"v_fmac_f32 v34, v{36+i}, v{36+i}")
    A("v_cmp_gt_u32 vcc, 56, v0")
    A("s_nop 1")
    A("v_cndmask_b32 v34, 0, v34, vcc")
    allreduce(34, 33)
    A(f"v_mul_f32 v34, 0x{f2u(1.0/448):08x}, v34")
    A("v_cvt_pk_bf16_f32 v33, v32, v34")
    A("v_lshlrev_b32 v32, 16, v33")
    A("v_and_b32 v34, 0xffff0000, v33")
    A(f"v_add_f32 v34, 0x{f2u(1e-5):08x}, v34")
    A("v_cvt_pk_bf16_f32 v34, v34, v34")
    A("v_lshlrev_b32 v34, 16, v34")
    A("v_sqrt_f32 v34, v34")
    A("s_nop 0")
    A("v_cvt_pk_bf16_f32 v34, v34, v34")
    A("v_lshlrev_b32 v34, 16, v34")
    A("v_rcp_f32 v34, v34")
    for i in range(8): A(f"v_sub_f32 v{36+i}, v{24+i}, v32")
    for i in range(4): A(f"v_cvt_pk_bf16_f32 v{44+i}, v{36+2*i}, v{37+2*i}")
    for i in range(4):
        A(f"v_lshlrev_b32 v{36+2*i}, 16, v{44+i}")
        A(f"v_and_b32 v{37+2*i}, 0xffff0000, v{44+i}")
    for i in range(8): A(f"v_mul_f32 v{36+i}, v{36+i}, v34")
    for i in range(4): A(f"v_cvt_pk_bf16_f32 v{44+i}, v{36+2*i}, v{37+2*i}")
    A(f"s_mul_i32 {sT0}, {sWV}, {XN_STR}")
    A(f"s_add_u32 {sT0}, {sT0}, {XN_LDS}")
    A(f"v_lshlrev_b32 v9, 4, v0")
    A(f"v_add_u32 v9, {sT0}, v9")
    A("s_mov_b32 exec_lo, -1\ns_mov_b32 exec_hi, 0x00ffffff")
    A("ds_write_b128 v9, v[44:47]")
    A("s_mov_b64 exec, -1")
    A("v_and_b32 v9, 7, v0")
    A(f"v_mul_u32_u24 v9, {XN_STR}, v9")
    A("v_lshl_add_u32 v9, v8, 4, v9")
    A(f"v_add_u32 v9, {XN_LDS}, v9")
    A("v_lshrrev_b32 v10, 2, v7")
    A("v_lshl_add_u32 v10, v8, 3, v10")
    A("v_and_b32 v12, 3, v7")
    A("v_lshlrev_b32 v12, 3, v12")
    A("v_lshl_add_u32 v11, v10, 7, v12")
    A(f"v_add_u32 v11, {CB_LDS}, v11")
    A("v_lshl_add_u32 v14, v10, 5, v12")
    A(f"v_add_u32 v14, {CB_LDS}, v14")
    A("v_mul_u32_u24 v10, 896, v10")
    A("v_add_u32 v10, v10, v12")
    A(f"s_lshl_b32 {sT0}, {sWV}, 10")
    A(f"s_add_u32 {sT0}, {sT0}, {CB_LDS}")
    A("v_lshlrev_b32 v13, 4, v0")
    A(f"v_add_u32 v13, {sT0}, v13")
    if NPRE:
        A(f"s_cmp_lt_u32 {sWV}, 4")
        A("s_cbranch_scc1 L_b1_01")
        A(f"s_waitcnt vmcnt(8)")
        A("s_branch L_b1")
        A("L_b1_01:")
    A(f"s_waitcnt vmcnt(0)")
    A("L_b1:")
    A(f"ds_write_b128 v13, v[64:67]")
    A(f"ds_write_b128 v13, v[68:71] offset:8192")
    A(f"s_waitcnt lgkmcnt(0)")
    A(f"s_add_u32 {sTAG0}, {sTAG0}, 1")
    A("s_barrier")
    stamp(1)
    A(f"s_cmp_ge_u32 {sWV}, 4")
    A(f"s_cbranch_scc1 L_stream")
    A(f"s_cmp_eq_u32 {sWV}, 0")
    A("s_cbranch_scc1 L_svc")
    A("s_setprio 2")
    A(f"s_cmp_eq_u32 {sWV}, 1")
    A(f"s_cbranch_scc0 L_wostage")
    A(f"s_cmp_eq_u32 {sFV}, 1")
    A("s_cbranch_scc0 L_ffn_done")
    A("v_lshrrev_b32 v14, 3, v0")
    A("v_and_b32 v13, 7, v0")
    A("v_lshlrev_b32 v13, 4, v13")
    A("v_mul_u32_u24 v12, 3584, v14")
    A("v_add_u32 v12, v12, v13")
    A("v_mul_u32_u24 v14, 896, v14")
    A("v_add_u32 v13, v14, v13")
    A("v_lshlrev_b32 v14, 4, v0")
    A(f"v_add_u32 v14, {CB_LDS}, v14")
    def wburst(lo, hi):
        for i in range(lo, hi):
            A(f"s_mov_b32 s{64+i-lo}, {i*28672 if i < 56 else (i-56)*7168}")
        for i in range(lo, hi):
            d = 96 + (i % 40)*4
            if i < 56: A(f"buffer_load_dwordx4 v[{d}:{d+3}], v12, {srd(W1_)}, s{64+i-lo} offen {WF}")
            else: A(f"buffer_load_dwordx4 v[{d}:{d+3}], v13, {srd(W2_)}, s{64+i-lo} offen {WF}")
    wburst(0, 20); wburst(20, 40)
    stamp(2)
    lds_wait_ge(4, 1, 72)
    def ffn_issue(t, tl):
        b = 32 + (t % 2)*20
        A(f"ds_read_b128 v[{b}:{b+3}], v9 offset:{t*64}")
        for ct in range(4):
            A(f"ds_read_b64_tr_b16 v[{b+4+ct*4}:{b+5+ct*4}], v11 offset:{tl*4096+ct*32}")
            A(f"ds_read_b64_tr_b16 v[{b+6+ct*4}:{b+7+ct*4}], v11 offset:{tl*4096+ct*32+512}")
    issued = 40
    for (lo, hi) in [(0,16),(16,32),(32,48),(48,56)]:
        A(f"s_waitcnt vmcnt({issued - hi})")
        for i in range(lo, hi):
            d = 96 + (i % 40)*4
            A(f"ds_write_b128 v14, v[{d}:{d+3}] offset:{(i-lo)*1024}")
            if (i-lo) % 8 == 7: A("s_waitcnt lgkmcnt(4)")
        A("s_waitcnt lgkmcnt(0)")
        nxt = min(64, hi + 40)
        if nxt > issued:
            wburst(issued, nxt); issued = nxt
        t0 = lo // 4; nt = (hi-lo)//4
        ffn_issue(t0, 0)
        for tl in range(nt):
            t = t0 + tl
            if tl+1 < nt:
                A("s_waitcnt lgkmcnt(4)")
                ffn_issue(t+1, tl+1)
                A("s_waitcnt lgkmcnt(9)")
            else:
                A("s_waitcnt lgkmcnt(0)")
            b = 32 + (t % 2)*20
            for ct in range(4):
                c = "0" if t == 0 else f"v[{16+ct*4}:{19+ct*4}]"
                A(f"v_mfma_f32_16x16x32_bf16 v[{16+ct*4}:{19+ct*4}], v[{b+4+ct*4}:{b+7+ct*4}], v[{b}:{b+3}], {c}")
    A("s_waitcnt vmcnt(0)")
    for i in range(56, 64):
        d = 96 + (i % 40)*4
        A(f"ds_write_b128 v14, v[{d}:{d+3}] offset:{(i-56)*1024}")
    stamp(3)
    A(f"v_mul_u32_u24 v12, {H_STR}, v7")
    A("v_lshl_add_u32 v13, v8, 3, v12")
    A(f"v_add_u32 v13, {H_LDS}, v13")
    A("v_lshl_add_u32 v12, v8, 4, v12")
    A(f"v_add_u32 v12, {H_LDS}, v12")
    for ct in range(4):
        for r in range(4): A(f"v_max_f32 v{16+ct*4+r}, 0, v{16+ct*4+r}")
        A(f"v_cvt_pk_bf16_f32 v{16+ct*4}, v{16+ct*4}, v{17+ct*4}")
        A(f"v_cvt_pk_bf16_f32 v{17+ct*4}, v{18+ct*4}, v{19+ct*4}")
        A(f"ds_write_b64 v13, v[{16+ct*4}:{17+ct*4}] offset:{ct*32}")
    A("s_waitcnt lgkmcnt(0)")
    A("ds_read_b128 v[32:35], v12")
    A("ds_read_b128 v[36:39], v12 offset:64")
    for t in range(2):
        for ct in range(4):
            b = 40 + (t*4+ct)*4
            A(f"ds_read_b64_tr_b16 v[{b}:{b+1}], v11 offset:{t*4096+ct*32}")
            A(f"ds_read_b64_tr_b16 v[{b+2}:{b+3}], v11 offset:{t*4096+ct*32+512}")
        A("s_waitcnt lgkmcnt(0)")
    for t in range(2):
        for ct in range(4):
            b = 40 + (t*4+ct)*4
            gb = 72 + 4*ct
            c = "0" if t == 0 else f"v[{gb}:{gb+3}]"
            A(f"v_mfma_f32_16x16x32_bf16 v[{gb}:{gb+3}], v[{b}:{b+3}], v[{32+t*4}:{35+t*4}], {c}")
    A(f"v_mov_b32 v92, {sTAG0}\nv_mov_b32 v93, {sTAG1}")
    A("v_and_b32 v12, 7, v0")
    A("v_mul_u32_u24 v12, 3584, v12")
    A("v_lshl_add_u32 v12, v8, 5, v12")
    A("v_bfe_u32 v13, v0, 3, 1")
    A("v_lshl_add_u32 v12, v13, 4, v12")
    A(f"s_mul_i32 {sSO}, {sHS}, {8*3584}")
    A(f"s_lshl_b32 {sT0}, {sFC}, 9")
    A(f"s_add_u32 {sSO}, {sSO}, {sT0}")
    A(f"s_add_u32 {sSO}, {sSO}, {WS_FP}")
    A("s_mov_b32 s58, 0xff00ff00\ns_mov_b32 s59, 0xff00ff00")
    for ct in range(4):
        d = 72 + 4*ct; o = 96 + 4*ct
        A(f"v_cndmask_b32 v{o}, v92, v{d+2}, s[58:59]")
        A(f"v_cndmask_b32 v{o+1}, v93, v{d+3}, s[58:59]")
        A(f"v_cndmask_b32 v{o+2}, v{d}, v92, s[58:59]")
        A(f"v_cndmask_b32 v{o+3}, v{d+1}, v93, s[58:59]")
    if not opts.get("nofst"):
        for ct in range(4):
            o = 96 + 4*ct
            A(f"buffer_store_dwordx4 v[{o}:{o+3}], v12, {srd(WS_)}, {sSO} offen offset:{ct*128} {opts.get('stflags','sc1 nt')}")
    A("L_ffn_done:")
    lds_set(24, 12)
    stamp(4)
    A("s_branch L_helper_end")

    A("L_svc:")
    def q_issue(t):
        b = 24 + (t % 5)*8
        A(f"ds_read_b128 v[{b}:{b+3}], v9 offset:{t*64}")
        A(f"ds_read_b64_tr_b16 v[{b+4}:{b+5}], v14 offset:{t*1024}")
        A(f"ds_read_b64_tr_b16 v[{b+6}:{b+7}], v14 offset:{t*1024+128}")
    for t in range(4): q_issue(t)
    for t in range(14):
        rem = min(13, t+3) - t
        A(f"s_waitcnt lgkmcnt({rem*3})")
        b = 24 + (t % 5)*8
        c = "0" if t == 0 else "v[16:19]"
        A(f"v_mfma_f32_16x16x32_bf16 v[16:19], v[{b+4}:{b+7}], v[{b}:{b+3}], {c}")
        if t+4 < 14: q_issue(t+4)
    A("v_lshlrev_b32 v12, 14, v7")
    A("v_lshl_add_u32 v12, v8, 4, v12")
    A(f"s_lshl_b32 {sSO}, {sP}, 6")
    A(f"s_add_u32 {sSO}, {sSO}, {WS_Q}")
    A("s_nop 3")
    A("v_cvt_pk_bf16_f32 v16, v16, v17")
    A("v_cvt_pk_bf16_f32 v17, v18, v19")
    A(f"v_mov_b32 v18, {sTAG0}\nv_mov_b32 v19, {sTAG1}")
    A("s_mov_b32 exec_lo, 0x00ff00ff\ns_mov_b32 exec_hi, 0x00ff00ff")
    A(f"buffer_store_dwordx4 v[16:19], v12, {srd(WS_)}, {sSO} offen sc1")
    A("s_mov_b64 exec, -1")
    lds_set(4, 20)
    stamp(2)
    A(f"s_lshl_b32 {sSO}, {sB}, 14")
    A(f"s_lshl_b32 {sT0}, {sHKV}, 11")
    A(f"s_add_u32 {sSO}, {sSO}, {sT0}")
    A(f"s_add_u32 {sSO}, {sSO}, {WS_Q}")
    A("v_lshlrev_b32 v12, 4, v0")
    A(f"s_mov_b32 {sCNT}, 0")
    A("L_qpoll:")
    A(f"buffer_load_dwordx4 v[24:27], v12, {srd(WS_)}, {sSO} offen sc1")
    A(f"buffer_load_dwordx4 v[28:31], v12, {srd(WS_)}, {sSO} offen offset:1024 sc1")
    A(f"s_add_u32 {sCNT}, {sCNT}, 1")
    A(f"s_cmp_gt_u32 {sCNT}, {SPIN}")
    A("s_cbranch_scc1 L_qpoll_x")
    A("s_waitcnt vmcnt(0)")
    A(f"v_cmp_ne_u64 vcc, {sTAG}, v[26:27]")
    A(f"v_cmp_ne_u64 s[56:57], {sTAG}, v[30:31]")
    A("s_or_b64 vcc, vcc, s[56:57]")
    A("s_and_b64 exec, exec, vcc")
    A("s_cbranch_execnz L_qpoll")
    A("L_qpoll_x:")
    A("s_mov_b64 exec, -1")
    A("s_waitcnt vmcnt(0)")
    stamp(4)
    A("v_lshlrev_b32 v12, 3, v0")
    A(f"v_add_u32 v12, {Q_LDS}, v12")
    A("ds_write_b64 v12, v[24:25]")
    A("ds_write_b64 v12, v[28:29] offset:512")
    lds_set(0, 12)
    A("s_branch L_helper_end")

    A("L_wostage:")
    A(f"s_sub_u32 {sT0}, {sWV}, 2")
    A(f"s_mul_i32 {sT1}, {sT0}, 57344")
    A(f"s_mul_i32 {sT0}, {sT0}, 229376")
    A("v_lshlrev_b32 v12, 4, v0")
    A(f"v_add_u32 v13, {sT1}, v12")
    for i in range(14): A(f"s_add_u32 s{64+i}, {sT0}, {i*4096}")
    for i in range(56):
        d = 32 + i*4
        A(f"buffer_load_dwordx4 v[{d}:{d+3}], v12, {srd(WO_)}, s{64+i//4} offen offset:{(i%4)*1024} {WOF}")
        if i % opts.get("woburst", 14) == opts.get("woburst", 14)-1: A("s_nop 0")
    stamp(2)
    for c in range(7):
        A(f"s_waitcnt vmcnt({48-8*c})")
        for i in range(8*c, 8*c+8):
            d = 32 + i*4
            A(f"ds_write_b128 v13, v[{d}:{d+3}] offset:{WO_LDS + i*1024}")
        A("s_waitcnt lgkmcnt(4)")
    lds_inc(20, 12)
    stamp(4)

    A("L_helper_end:")
    if opts.get("norole"): A("s_branch L_fin")
    lds_wait_ge(20, 2, 12, sleep=8)
    A(f"s_mul_i32 {sT0}, {sWV}, 224")
    A(f"v_add_u32 v12, {sT0}, v10")
    A(f"v_add_u32 v13, 57344, v12")
    for tl in range(7):
        for t in range(4):
            b = 128 + (tl*4+t)*4
            va = 12 if t < 2 else 13
            off = WO_LDS + (t % 2)*32*896 + tl*32
            A(f"ds_read_b64_tr_b16 v[{b}:{b+1}], v{va} offset:{off}")
            A(f"ds_read_b64_tr_b16 v[{b+2}:{b+3}], v{va} offset:{off+4*896}")
        A("s_waitcnt lgkmcnt(4)")
    stamp(5)
    def gather(prefix, nload, last_half, base_s, pstride, vb, sleep):
        A("v_lshrrev_b32 v20, 3, v0")
        A(f"v_mul_u32_u24 v20, {pstride}, v20")
        A("v_and_b32 v21, 7, v0")
        A("v_lshl_add_u32 v20, v21, 4, v20")
        for i in range(1, 4): A(f"v_add_u32 v{20+i}, {i*8*pstride}, v20")
        if last_half:
            A("v_cmp_gt_u32 vcc, 32, v0")
            A("s_nop 1")
            A("v_cndmask_b32 v23, v22, v23, vcc")
        A(f"s_mov_b32 {sCNT}, 0")
        A("s_mov_b32 s58, 0xaaaaaaaa\ns_mov_b32 s59, 0xaaaaaaaa")
        A(f"L_{prefix}poll:")
        for i in range(3): A(f"buffer_load_dwordx4 v[{vb+4*i}:{vb+3+4*i}], v{20+i}, {srd(WS_)}, {base_s} offen sc1")
        A(f"buffer_load_dwordx4 v[{vb+12}:{vb+15}], v23, {srd(WS_)}, {base_s} offen sc1")
        A(f"s_add_u32 {sCNT}, {sCNT}, 1")
        A(f"s_cmp_gt_u32 {sCNT}, {SPIN}")
        A(f"s_cbranch_scc1 L_{prefix}poll_x")
        for i in range(4):
            b = vb+4*i
            A(f"s_waitcnt vmcnt({3-i})")
            A(f"v_cndmask_b32 v40, v{b}, v{b+2}, s[58:59]")
            A(f"v_cndmask_b32 v41, v{b+1}, v{b+3}, s[58:59]")
            if i == 0: A(f"v_cmp_ne_u64 s[56:57], {sTAG}, v[40:41]")
            else:
                A(f"v_cmp_ne_u64 vcc, {sTAG}, v[40:41]")
                A("s_or_b64 s[56:57], s[56:57], vcc")
        A("s_and_b64 exec, exec, s[56:57]")
        A(f"s_cbranch_execz L_{prefix}poll_x")
        if sleep: A(f"s_sleep {sleep}")
        A(f"s_branch L_{prefix}poll")
        A(f"L_{prefix}poll_x:")
        A("s_mov_b64 exec, -1")
        A("s_waitcnt vmcnt(0)")
        for i in range(4):
            b = vb+4*i
            A(f"v_cndmask_b32 v{40+2*i}, v{b+2}, v{b}, s[58:59]")
            A(f"v_cndmask_b32 v{41+2*i}, v{b+3}, v{b+1}, s[58:59]")
        if last_half: A("v_cmp_gt_u32 vcc, 32, v0")
        A("v_add_f32 v40, v40, v42\nv_add_f32 v41, v41, v43")
        if last_half: A("v_cndmask_b32 v46, 0, v46, vcc\nv_cndmask_b32 v47, 0, v47, vcc")
        A("v_add_f32 v44, v44, v46\nv_add_f32 v45, v45, v47")
        A("v_add_f32 v40, v40, v44\nv_add_f32 v41, v41, v45")
        A("s_nop 1")
        A("v_add_f32_dpp v40, v40, v40 row_ror:8 row_mask:0xf bank_mask:0xf")
        A("v_add_f32_dpp v41, v41, v41 row_ror:8 row_mask:0xf bank_mask:0xf")
        xreduce2(40, 41, 42, 43)
    A(f"s_cmp_eq_u32 {sWV}, 3")
    A("s_cbranch_scc0 L_nofg")
    A(f"s_cmp_lt_u32 {sHKV}, 7")
    A("s_cbranch_scc0 L_nofg")
    lds_wait_ge(16, opts.get("fthresh", 56), 12, sleep=16)
    A(f"s_mul_i32 {sSO2}, {sB}, 896")
    A(f"s_lshl_b32 {sT0}, {sCS}, 5")
    A(f"s_add_u32 {sSO2}, {sSO2}, {sT0}")
    A("v_and_b32 v14, 7, v0")
    A("v_lshlrev_b32 v14, 2, v14")
    A(f"buffer_load_dword v19, v14, {srd(X_)}, {sSO2} offen")
    A(f"s_mul_i32 {sSO}, {sB}, 3584")
    A(f"s_lshl_b32 {sT0}, {sCS}, 7")
    A(f"s_add_u32 {sSO}, {sSO}, {sT0}")
    A(f"s_add_u32 {sSO}, {sSO}, {WS_FP}")
    gather("f", 4, True, sSO, 8*3584, 24, 8)
    A("v_cvt_pk_bf16_f32 v42, v40, v41")
    A("v_lshlrev_b32 v40, 16, v42\nv_and_b32 v41, 0xffff0000, v42")
    for r in range(2): A(f"v_mul_f32 v{42+r}, 0x{f2u(-math.log2(math.e)):08x}, v{40+r}")
    for r in range(2): A(f"v_exp_f32 v{42+r}, v{42+r}")
    A("s_nop 0")
    for r in range(2): A(f"v_add_f32 v{42+r}, 1.0, v{42+r}")
    for r in range(2): A(f"v_rcp_f32 v{42+r}, v{42+r}")
    A("s_nop 0")
    for r in range(2): A(f"v_mul_f32 v{40+r}, v{40+r}, v{42+r}")
    A("v_cvt_pk_bf16_f32 v42, v40, v41")
    A("v_lshlrev_b32 v16, 16, v42\nv_and_b32 v17, 0xffff0000, v42")
    A("v_lshlrev_b32 v18, 16, v19\nv_and_b32 v19, 0xffff0000, v19")
    stamp(6)
    A("L_nofg:")
    A(f"s_lshl_b32 {sT0}, {sB}, 5")
    A(f"s_add_u32 {sT0}, {sT0}, {sCS}")
    A(f"s_mul_i32 {sSO2}, {sT0}, 3584")
    A(f"s_mul_i32 {sT0}, {sWV}, 896")
    A(f"s_add_u32 {sSO2}, {sSO2}, {sT0}")
    A(f"s_add_u32 {sSO2}, {sSO2}, {WS_SP}")
    A("v_and_b32 v11, 1, v0")
    A("v_lshlrev_b32 v11, 4, v11")
    A("v_lshl_add_u32 v11, v8, 5, v11")
    A(f"v_lshlrev_b32 v9, 4, v8")
    A(f"v_add_u32 v9, {O_LDS}, v9")
    A(f"s_cmp_eq_u32 {sWV}, 0")
    A("s_cbranch_scc0 L_wait_o")
    lds_wait_ge(16, THRESH, 12, sleep=8)
    stamp(7)
    A("v_lshlrev_b32 v12, 10, v8")
    A("v_lshl_add_u32 v12, v7, 4, v12")
    A(f"s_lshl_b32 {sT0}, {sSPL}, 8")
    A(f"v_add_u32 v12, {sT0}, v12")
    A("v_lshlrev_b32 v13, 4, v8")
    A(f"s_and_b32 {sT0}, {sSLOT}, 0xfc")
    A(f"s_mul_i32 {sSO}, {sT0}, {OP_STR}")
    A(f"s_add_u32 {sSO}, {sSO}, {WS_OP}")
    for s_ in range(4): A(f"s_add_u32 s{64+s_}, {sSO}, {s_*OP_STR}")
    if opts.get("gwarm", 1):
        A("s_mov_b32 exec_hi, 0")
        for s_ in range(4): A(f"buffer_load_dwordx4 v[{48+4*s_}:{51+4*s_}], v12, {srd(WS_)}, s{64+s_} offen sc1")
        for s_ in range(4): A(f"buffer_load_dwordx4 v[{64+4*s_}:{67+4*s_}], v13, {srd(WS_)}, s{64+s_} offen offset:2048 sc1")
        A("s_mov_b32 exec_hi, -1")
        lds_wait_ge(8, 4, 82, sleep=1)
    A(f"s_mov_b32 {sCNT}, 0")
    A("s_mov_b32 exec_hi, 0")
    A("L_gpoll:")
    for s_ in range(4): A(f"buffer_load_dwordx4 v[{48+4*s_}:{51+4*s_}], v12, {srd(WS_)}, s{64+s_} offen sc1")
    for s_ in range(4): A(f"buffer_load_dwordx4 v[{64+4*s_}:{67+4*s_}], v13, {srd(WS_)}, s{64+s_} offen offset:2048 sc1")
    A(f"s_add_u32 {sCNT}, {sCNT}, 1")
    A(f"s_cmp_gt_u32 {sCNT}, {SPIN}")
    A("s_cbranch_scc1 L_gpoll_x")
    for i in range(8):
        A(f"s_waitcnt vmcnt({7-i})")
        if i == 0: A(f"v_cmp_ne_u64 s[56:57], {sTAG}, v[50:51]")
        else:
            A(f"v_cmp_ne_u64 vcc, {sTAG}, v[{50+4*i}:{51+4*i}]")
            A("s_or_b64 s[56:57], s[56:57], vcc")
    A("s_cmp_lg_u64 s[56:57], 0")
    A("s_cbranch_scc0 L_gpoll_x")
    if opts.get("gsleep", 1): A(f"s_sleep {opts.get('gsleep', 1)}")
    A("s_branch L_gpoll")
    A("L_gpoll_x:")
    A("s_waitcnt vmcnt(0)")
    stamp(8)
    A("v_max3_f32 v80, v64, v68, v72")
    A("v_max_f32 v80, v80, v76")
    for s_ in range(4): A(f"v_sub_f32 v{64+4*s_}, v{64+4*s_}, v80")
    for s_ in range(4): A(f"v_exp_f32 v{64+4*s_}, v{64+4*s_}")
    for s_ in range(4):
        A(f"v_lshlrev_b32 v{84+4*s_}, 16, v{48+4*s_}")
        A(f"v_and_b32 v{85+4*s_}, 0xffff0000, v{48+4*s_}")
        A(f"v_lshlrev_b32 v{86+4*s_}, 16, v{49+4*s_}")
        A(f"v_and_b32 v{87+4*s_}, 0xffff0000, v{49+4*s_}")
    A("v_mul_f32 v81, v64, v65")
    for s_ in range(1, 4): A(f"v_fmac_f32 v81, v{64+4*s_}, v{65+4*s_}")
    A("v_rcp_f32 v81, v81")
    for e in range(4): A(f"v_mul_f32 v{84+e}, v64, v{84+e}")
    for s_ in range(1, 4):
        for e in range(4): A(f"v_fmac_f32 v{84+e}, v{64+4*s_}, v{84+4*s_+e}")
    for e in range(4): A(f"v_mul_f32 v{84+e}, v{84+e}, v81")
    A("v_cvt_pk_bf16_f32 v84, v84, v85")
    A("v_cvt_pk_bf16_f32 v85, v86, v87")
    A("v_lshlrev_b32 v12, 3, v0")
    A(f"v_add_u32 v12, {O_LDS}, v12")
    A("ds_write_b64 v12, v[84:85]")
    A("s_mov_b64 exec, -1")
    lds_set(12, 12)
    A("s_branch L_gemv")
    A("L_wait_o:")
    lds_wait_ge(16, THRESH, 12, sleep=8)
    lds_wait_ge(8, 4, 12, sleep=2)
    lds_wait_ge(12, 1, 12, sleep=opts.get("osleep", 1))
    A("L_gemv:")
    for t in range(4): A(f"ds_read_b128 v[{48+4*t}:{51+4*t}], v9 offset:{t*64}")
    A("s_mov_b32 s58, 0xaaaaaaaa\ns_mov_b32 s59, 0xaaaaaaaa")
    DB = 64
    A(f"v_mov_b32 v92, {sTAG0}\nv_mov_b32 v93, {sTAG1}")
    A("s_mov_b32 s56, 0x00030003\ns_mov_b32 s57, 0x00030003")
    A(f"s_waitcnt lgkmcnt(0)")
    def gstore(tl):
        d = DB + 4*tl; o = 96 + 4*tl
        A(f"v_cndmask_b32 v{o}, v92, v{d+2}, s[58:59]")
        A(f"v_cndmask_b32 v{o+1}, v93, v{d+3}, s[58:59]")
        A(f"v_cndmask_b32 v{o+2}, v{d}, v92, s[58:59]")
        A(f"v_cndmask_b32 v{o+3}, v{d+1}, v93, s[58:59]")
        A("s_mov_b64 exec, s[56:57]")
        A(f"buffer_store_dwordx4 v[{o}:{o+3}], v11, {srd(WS_)}, {sSO2} offen offset:{tl*128} sc1")
        A("s_mov_b64 exec, -1")
    for tl in range(7):
        for t in range(4):
            d = DB + 4*tl
            c = "0" if t == 0 else f"v[{d}:{d+3}]"
            b = 128 + (tl*4+t)*4
            A(f"v_mfma_f32_16x16x32_bf16 v[{d}:{d+3}], v[{b}:{b+3}], v[{48+4*t}:{51+4*t}], {c}")
        if tl >= 2: gstore(tl-2)
    gstore(5)
    A("s_nop 0")
    gstore(6)
    stamp(10)
    A(f"s_cmp_eq_u32 {sWV}, 3")
    A("s_cbranch_scc0 L_fin")
    A(f"s_cmp_lt_u32 {sHKV}, 7")
    A("s_cbranch_scc0 L_fin")
    A(f"s_mul_i32 {sSO}, {sB}, {32*3584}")
    A(f"s_lshl_b32 {sT0}, {sCS}, 7")
    A(f"s_add_u32 {sSO}, {sSO}, {sT0}")
    A(f"s_add_u32 {sSO}, {sSO}, {WS_SP}")
    A(f"s_mul_i32 {sSO2}, {sB}, 896")
    A(f"s_lshl_b32 {sT0}, {sCS}, 5")
    A(f"s_add_u32 {sSO2}, {sSO2}, {sT0}")
    gather("s", 4, False, sSO, 3584, 24, opts.get("ssleep", 1))
    stamp(12)
    A("v_cvt_pk_bf16_f32 v42, v40, v41")
    A("v_lshlrev_b32 v40, 16, v42\nv_and_b32 v41, 0xffff0000, v42")
    A("v_mul_f32 v40, v40, v16\nv_mul_f32 v41, v41, v17")
    A("v_cvt_pk_bf16_f32 v42, v40, v41")
    A("v_lshlrev_b32 v40, 16, v42\nv_and_b32 v41, 0xffff0000, v42")
    A("v_add_f32 v40, v18, v40\nv_add_f32 v41, v19, v41")
    A("v_cvt_pk_bf16_f32 v42, v40, v41")
    A("s_mov_b64 exec, 0xff")
    A(f"buffer_store_dword v42, v14, {srd(OUT_)}, {sSO2} offen")
    A("s_mov_b64 exec, -1")
    A(f"s_cmp_eq_u32 {sWG}, 0")
    A("s_cbranch_scc0 L_fin")
    A(f"v_mov_b32 v24, {sTAG0}\nv_mov_b32 v25, {sTAG1}\nv_mov_b32 v22, {WS_EP}")
    A("s_mov_b64 exec, 1")
    A(f"buffer_store_dwordx2 v[24:25], v22, {srd(WS_)}, 0 offen sc1")
    A("s_mov_b64 exec, -1")
    A("s_branch L_fin")

    A("L_stream:")
    A("s_setprio 1")
    if not NPRE:
        kloads("A", sT3)
        A("s_nop 0")
    A(f"s_add_u32 {sT2}, {sT3}, 32768")
    vloads("A", sT3)
    A("s_nop 0")
    kloads("B", sT2)
    A("s_nop 0")
    vloads("B", sT2)
    stamp(5)
    lds_wait_ge(0, 1, 12)
    A("v_lshrrev_b32 v13, 3, v7")
    A("v_lshlrev_b32 v13, 9, v13")
    A("v_lshl_add_u32 v13, v8, 4, v13")
    A(f"v_add_u32 v13, {Q_LDS}, v13")
    for i in range(8):
        A(f"ds_read_b128 v[{16+4*i}:{19+4*i}], v13 offset:{i*64}")
    A(f"v_mov_b32 v74, {SY_LDS+16}")
    A("v_mov_b32 v75, 1")
    def grab():
        A("s_mov_b64 exec, 1")
        A("ds_add_rtn_u32 v76, v74, v75")
        A("s_mov_b64 exec, -1")
    grab()
    A(f"v_mov_b32 v68, 0x{f2u(-1e30):08x}")
    A("v_mov_b32 v69, 0")
    for i in range(8): A(f"v_mov_b32 v{52+i}, 0")
    A("v_lshrrev_b32 v78, 1, v8")
    A("v_lshlrev_b32 v78, 10, v78")
    A("v_lshl_add_u32 v78, v7, 5, v78")
    A("v_and_b32 v79, 1, v8")
    A("v_lshl_add_u32 v78, v79, 4, v78")
    A(f"s_and_b32 {sT1}, {sWV}, 3")
    A(f"s_lshl_b32 {sT0}, {sT1}, 11")
    A(f"s_add_u32 {sT0}, {sT0}, {CB_LDS}")
    A(f"v_add_u32 v78, {sT0}, v78")
    A("v_lshrrev_b32 v79, 3, v7")
    A("v_lshlrev_b32 v79, 5, v79")
    A(f"s_lshl_b32 {sT0}, {sT1}, 3")
    A(f"s_add_u32 {sT0}, {sT0}, {ST_LDS}")
    A(f"v_add_u32 v79, {sT0}, v79")
    A("s_waitcnt lgkmcnt(0)")
    A(f"v_readfirstlane_b32 {sNX}, v76")
    stamp(6)
    A(f"s_cmp_lt_u32 {sNX}, 64")
    A("s_cbranch_scc0 L_noref_A")
    def ands(st, r):
        for i in range(4): A(f"v_and_b32 v{60+4*st+i}, v{48+r}, v{3+i}")
    def proc(sl, kind):
        o = "B" if sl == "A" else "A"
        base = SLOT[sl]
        A(f"L_{kind}_{sl}:")
        if kind == "full":
            grab()
            A(f"s_lshl_b32 {sSO}, {sNX}, 13")
        if kind == "noref":
            lds_wait_ge(24, 1, 70)
        A(f"s_waitcnt vmcnt({8 if kind == 'last' else 24})")
        for i in range(8):
            c = "0" if i == 0 else "v[48:51]"
            A(f"v_mfma_f32_16x16x32_bf16 v[48:51], v[{base+4*i}:{base+4*i+3}], v[{16+4*i}:{19+4*i}], {c}")
        if kind == "full": kloads(sl, sSO)
        else: A("s_nop 7")
        A("v_max3_f32 v70, v48, v49, v50")
        A("v_max_f32 v70, v70, v51")
        xreduce(70, 71, "v_max_f32")
        A(f"v_mul_f32 v70, {sC}, v70")
        A("v_max_f32 v70, v70, v68")
        A("v_sub_f32 v72, v68, v70")
        A("v_exp_f32 v72, v72")
        A("v_mov_b32 v68, v70")
        for r in range(4): A(f"v_fma_f32 v{48+r}, v{48+r}, {sC}, -v70")
        for r in range(4): A(f"v_exp_f32 v{48+r}, v{48+r}")
        A("v_mov_b32_dpp v73, v72 row_ror:8 row_mask:0xf bank_mask:0xf")
        A("v_mul_f32 v69, v69, v72")
        A(f"v_cndmask_b32 v73, v73, v72, {sAM}")
        for r in range(4):
            A(f"v_add_f32 v69, v69, v{48+r}")
            A(f"v_cvt_pk_bf16_f32 v{48+r}, v{48+r}, v{48+r}")
        for i in range(8): A(f"v_mul_f32 v{52+i}, v{52+i}, v73")
        ands(0, 0); ands(1, 1)
        if kind == "last":
            xreduce(69, 71, "v_add_f32")
            A("ds_write_b64 v79, v[68:69]")
        A(f"s_waitcnt vmcnt({ {'full':24,'noref':16,'last':0}[kind] })")
        def pv(st, r):
            for hf in range(2):
                vb = base + 32 + (r*2+hf)*4
                A(f"v_mfma_f32_16x16x32_bf16 v[{52+4*hf}:{55+4*hf}], v[{60+4*st}:{63+4*st}], v[{vb}:{vb+3}], v[{52+4*hf}:{55+4*hf}]")
        pv(0, 0); ands(0, 2); pv(1, 1); ands(1, 3); pv(0, 2); pv(1, 3)
        if kind == "full":
            vloads(sl, sSO)
            A("s_waitcnt lgkmcnt(0)")
            A(f"v_readfirstlane_b32 {sNX}, v76")
            A(f"s_cmp_lt_u32 {sNX}, 64")
            A(f"s_cbranch_scc0 L_noref_{o}")
            if sl == "B": A("s_branch L_full_A")
        elif kind == "last":
            if sl == "B": A("s_branch L_done")
    proc("A", "full"); proc("B", "full")
    proc("A", "noref"); proc("B", "last")
    proc("B", "noref"); proc("A", "last")
    A("L_done:")
    stamp(8)
    A("s_setprio 3")
    A(f"v_mov_b32 v20, {SY_LDS+8}")
    A("v_mov_b32 v21, 1")
    A("v_lshlrev_b32 v18, 4, v0")
    A(f"v_add_u32 v19, {CB_LDS}, v18")
    A(f"v_mov_b32 v17, {ST_LDS}")
    A("s_nop 2")
    A("ds_write_b128 v78, v[52:55]")
    A("ds_write_b128 v78, v[56:59] offset:512")
    A("s_mov_b64 exec, 1")
    A("s_waitcnt lgkmcnt(0)")
    A("ds_add_rtn_u32 v21, v20, v21")
    A("s_mov_b64 exec, -1")
    A(f"s_mul_i32 {sSO}, {sSLOT}, {OP_STR}")
    A(f"s_add_u32 {sSO}, {sSO}, {WS_OP}")
    A(f"v_mov_b32 v46, {sTAG0}\nv_mov_b32 v47, {sTAG1}\nv_mov_b32 v50, {sTAG0}\nv_mov_b32 v51, {sTAG1}")
    A(f"v_mov_b32 v54, {sTAG0}\nv_mov_b32 v55, {sTAG1}")
    A("s_waitcnt lgkmcnt(0)")
    A(f"v_readfirstlane_b32 {sARR}, v21")
    A(f"s_cmp_eq_u32 {sARR}, 3")
    A("s_cbranch_scc0 L_fin")
    for i in range(4): A(f"ds_read_b128 v[{20+4*i}:{23+4*i}], v17 offset:{16*i}")
    CBR = 96
    for w in range(4):
        A(f"ds_read_b128 v[{CBR+8*w}:{CBR+8*w+3}], v19 offset:{2048*w}")
        A(f"ds_read_b128 v[{CBR+8*w+4}:{CBR+8*w+7}], v19 offset:{2048*w+1024}")
    A("s_waitcnt lgkmcnt(8)")
    A("v_max3_f32 v60, v20, v22, v24")
    A("v_max3_f32 v62, v28, v30, v32")
    A("v_max_f32 v60, v60, v26")
    A("v_max_f32 v62, v62, v34")
    for w in range(4):
        A(f"v_sub_f32 v{20+2*w}, v{20+2*w}, v60")
        A(f"v_sub_f32 v{28+2*w}, v{28+2*w}, v62")
    for w in range(8): A(f"v_exp_f32 v{20+2*w}, v{20+2*w}")
    A("v_cmp_eq_u32 vcc, 1, v0")
    A("v_mul_f32 v61, v20, v21")
    A("v_mul_f32 v63, v28, v29")
    for w in range(1, 4):
        A(f"v_fmac_f32 v61, v{20+2*w}, v{21+2*w}")
        A(f"v_fmac_f32 v63, v{28+2*w}, v{29+2*w}")
    A("v_cndmask_b32 v52, v60, v62, vcc")
    A("v_cndmask_b32 v53, v61, v63, vcc")
    A("s_mov_b64 exec, 3")
    A(f"buffer_store_dwordx4 v[52:55], v18, {srd(WS_)}, {sSO} offen offset:2048 sc1")
    A("s_mov_b64 exec, -1")
    for w in range(4):
        A(f"s_waitcnt lgkmcnt({2*(3-w)})")
        for e in range(8):
            sc = 20 + 2*w + (8 if e >= 4 else 0)
            if w == 0: A(f"v_mul_f32 v{36+e}, v{sc}, v{CBR+e}")
            else: A(f"v_fmac_f32 v{36+e}, v{sc}, v{CBR+8*w+e}")
    A("v_cvt_pk_bf16_f32 v44, v36, v37")
    A("v_cvt_pk_bf16_f32 v45, v38, v39")
    A("v_cvt_pk_bf16_f32 v48, v40, v41")
    A("v_cvt_pk_bf16_f32 v49, v42, v43")
    A(f"buffer_store_dwordx4 v[44:47], v18, {srd(WS_)}, {sSO} offen sc1")
    A(f"buffer_store_dwordx4 v[48:51], v18, {srd(WS_)}, {sSO} offen offset:1024 sc1")
    stamp(9)
    A("L_fin:")
    if TS:
        stamp(14)
        A(f"v_writelane_b32 v15, s62, 15")
        A(f"s_lshl_b32 {sT0}, {sWG}, 3")
        A(f"s_add_u32 {sT0}, {sT0}, {sWV}")
        A(f"s_lshl_b32 {sSO}, {sT0}, 6")
        A(f"s_add_u32 {sSO}, {sSO}, {WS_TS}")
        A("v_lshlrev_b32 v21, 2, v0")
        A("s_mov_b64 exec, 0xffff")
        A(f"buffer_store_dword v15, v21, {srd(WS_)}, {sSO} offen")
    A("L_end:")
    A("s_endpgm")

    hdr = open("recurrent_scan__gqa_block_cached__dense_activation_relu__decode.s.ref").read().split("; Override launch geometry")[0]
    out = hdr
    out += f"; @launch grid=(256,1,1) block=(512,1,1) lds={LDS_TOTAL}\n"
    out += '.amdgcn_target "amdgcn-amd-amdhsa--gfx950"\n.text\n'
    out += f".globl {NAME}\n.p2align 8\n.type {NAME},@function\n{NAME}:\n"
    out += "\n".join(g.L) + "\n"
    out += f""".section .rodata,"a"
.p2align 6
.amdhsa_kernel {NAME}
  .amdhsa_next_free_vgpr 256
  .amdhsa_next_free_sgpr 102
  .amdhsa_accum_offset 256
  .amdhsa_group_segment_fixed_size 0
  .amdhsa_kernarg_size 88
  .amdhsa_user_sgpr_count 2
  .amdhsa_user_sgpr_kernarg_segment_ptr 1
  .amdhsa_system_sgpr_workgroup_id_x 1
.end_amdhsa_kernel
"""
    return out, LDS_TOTAL

if __name__ == "__main__":
    opts = {}
    outp = "recurrent_scan__gqa_block_cached__dense_activation_relu__decode.s"
    for a in sys.argv[1:]:
        if a.startswith("-o="): outp = a[3:]
        else:
            k, v = a.split("=")
            opts[k] = int(v) if v.lstrip("-").isdigit() else v.replace("_", " ")
    s, lds = build(opts)
    open(outp, "w").write(s)
    print("wrote", outp, "lds", lds)
```

```python
import sys, math, struct

NAME = "recurrent_scan__gqa_block_cached__dense_activation_relu__decode_kernel"
def f2u(f): return struct.unpack("<I", struct.pack("<f", f))[0]

class Gen:
    def __init__(self):
        self.L = []; self.uid = 0
    def A(self, s):
        for line in s.split("\n"):
            t = line.strip()
            self.L.append(t if t.endswith(":") else "  " + t)
    def lab(self, p):
        self.uid += 1
        return f"L_{p}_{self.uid}"

def build(opts):
    TS = opts.get("ts", 0)
    KVF = opts.get("kvflags", "nt")
    WF = opts.get("wflags", "nt")
    WOF = opts.get("woflags", WF)
    SPIN = opts.get("spin", 200000)
    NPRE = opts.get("npre", 1)
    THRESH = opts.get("thresh", 66)
    g = Gen(); A = g.A

    WO_LDS = 0
    XN_LDS = 114688
    XN_STR = 912
    Q_LDS = XN_LDS + 8*XN_STR
    H_LDS = Q_LDS + 1024
    H_STR = 144
    ST_LDS = H_LDS + 2304
    O_LDS = ST_LDS + 128
    SY_LDS = O_LDS + 256
    CB_LDS = SY_LDS + 64
    H2_LDS = CB_LDS + 16384
    LDS_TOTAL = H2_LDS + 8*XN_STR
    assert LDS_TOTAL <= 163840 and CB_LDS % 16 == 0
    WS_EP = 0
    WS_Q = 0x1000
    WS_FP = 0x40000
    WS_H = 0x80000
    WS_OP = 0x110000
    OP_STR = 2176
    WS_SP = 0x1A0000
    WS_TS = 0x300000
    WS_SIZE = 0x400000

    CSC = math.log2(math.e) / 16.0
    sWG, sWV, sHKV, sIDX, sB, sSPL = "s2", "s3", "s4", "s5", "s6", "s7"
    K_, V_, X_, WQ_, W1_, W2_, WO_, WS_, OUT_ = 8, 12, 16, 20, 24, 28, 32, 36, 44
    def srd(n): return f"s[{n}:{n+3}]"
    sP, sHS, sFC, sFV, sCS, sSLOT, sC = "s86", "s87", "s88", "s89", "s90", "s91", "s93"
    sTAG = "s[94:95]"; sTAG0, sTAG1 = "s94", "s95"
    sT0, sT1, sT2, sT3 = "s48", "s49", "s50", "s51"
    sSO = "s52"; sSO2 = "s53"; sCNT = "s54"; sNX = "s55"; sARR = "s92"
    sAM = "s[96:97]"
    sKQ = "s98"; sSTR = "s99"

    def stamp(i):
        if not TS: return
        A(f"s_memrealtime s[60:61]")
        A("s_waitcnt lgkmcnt(0)")
        A(f"v_writelane_b32 v15, s60, {i}")
    def xreduce(v, t, op="v_add_f32"):
        A(f"v_mov_b32 v{t}, v{v}")
        A("s_nop 1")
        A(f"v_permlane16_swap_b32 v{v}, v{t}")
        A("s_nop 1")
        A(f"{op} v{v}, v{v}, v{t}")
        A(f"v_mov_b32 v{t}, v{v}")
        A("s_nop 1")
        A(f"v_permlane32_swap_b32 v{v}, v{t}")
        A("s_nop 1")
        A(f"{op} v{v}, v{v}, v{t}")
    def xreduce2(v0_, v1_, t0, t1, op="v_add_f32"):
        for sw in ["v_permlane16_swap_b32", "v_permlane32_swap_b32"]:
            A(f"v_mov_b32 v{t0}, v{v0_}")
            A(f"v_mov_b32 v{t1}, v{v1_}")
            A("s_nop 0")
            A(f"{sw} v{v0_}, v{t0}")
            A(f"{sw} v{v1_}, v{t1}")
            A("s_nop 0")
            A(f"{op} v{v0_}, v{v0_}, v{t0}")
            A(f"{op} v{v1_}, v{v1_}, v{t1}")
    def allreduce(v, t, op="v_add_f32"):
        for mode in ["quad_perm:[1,0,3,2]", "quad_perm:[2,3,0,1]", "row_half_mirror", "row_mirror"]:
            A("s_nop 1")
            A(f"{op}_dpp v{v}, v{v}, v{v} {mode} row_mask:0xf bank_mask:0xf")
        xreduce(v, t, op)
    def lds_wait_ge(off, val, vt, sleep=2):
        l0 = g.lab("lw"); l1 = g.lab("lwx")
        A(f"v_mov_b32 v{vt}, {SY_LDS+off}")
        A(f"s_mov_b32 {sCNT}, 0")
        A(f"{l0}:")
        A(f"ds_read_b32 v{vt+1}, v{vt}")
        A(f"s_add_u32 {sCNT}, {sCNT}, 1")
        A(f"s_cmp_gt_u32 {sCNT}, {SPIN}")
        A(f"s_cbranch_scc1 {l1}")
        A("s_waitcnt lgkmcnt(0)")
        A(f"v_cmp_le_u32 vcc, {val}, v{vt+1}")
        A(f"s_cbranch_vccnz {l1}")
        if sleep: A(f"s_sleep {sleep}")
        A(f"s_branch {l0}")
        A(f"{l1}:")
        A("s_waitcnt lgkmcnt(0)")
    def lds_set(off, vt):
        A(f"v_mov_b32 v{vt}, {SY_LDS+off}")
        A(f"v_mov_b32 v{vt+1}, 1")
        A("s_waitcnt lgkmcnt(0)")
        A(f"ds_write_b32 v{vt}, v{vt+1}")
    def lds_inc(off, vt, ret=None):
        A(f"v_mov_b32 v{vt}, {SY_LDS+off}")
        A(f"v_mov_b32 v{vt+1}, 1")
        A("s_mov_b64 exec, 1")
        A("s_waitcnt lgkmcnt(0)")
        if ret:
            A(f"ds_add_rtn_u32 v{vt+1}, v{vt}, v{vt+1}")
            A("s_mov_b64 exec, -1")
            A("s_waitcnt lgkmcnt(0)")
            A(f"v_readfirstlane_b32 {ret}, v{vt+1}")
        else:
            A(f"ds_add_u32 v{vt}, v{vt+1}")
            A("s_mov_b64 exec, -1")

    SLOT = {"A": 128, "B": 192}
    def kloads(sl, so):
        for i in range(8):
            d = SLOT[sl] + i*4
            A(f"buffer_load_dwordx4 v[{d}:{d+3}], v1, {srd(K_)}, {so} offen offset:{i*64} {KVF}")
    def vloads(sl, so):
        for i in range(8):
            d = SLOT[sl] + 32 + i*4
            A(f"buffer_load_dwordx4 v[{d}:{d+3}], v2, {srd(V_)}, {so} offen offset:{(i//2)*512+(i%2)*256} {KVF}")

    A(f"s_cmp_ge_u32 {sWG}, 256")
    A("s_cbranch_scc1 L_end")
    A("s_setprio 3")
    A("s_load_dwordx16 s[64:79], s[0:1], 0")
    A("s_load_dwordx4 s[80:83], s[0:1], 64")
    A("s_load_dwordx2 s[84:85], s[0:1], 80")
    if TS:
        A("v_mov_b32 v15, 0")
        A("s_memrealtime s[62:63]")
    A("v_lshrrev_b32 v1, 6, v0")
    A("v_and_b32 v0, 63, v0")
    A(f"s_and_b32 {sHKV}, {sWG}, 7")
    A(f"v_readfirstlane_b32 {sWV}, v1")
    A(f"s_lshr_b32 {sIDX}, {sWG}, 3")
    A(f"s_and_b32 {sB}, {sIDX}, 7")
    A(f"s_lshr_b32 {sSPL}, {sIDX}, 3")
    A(f"s_lshl_b32 {sP}, {sHKV}, 5")
    A(f"s_add_u32 {sP}, {sP}, {sIDX}")
    A(f"s_lshl_b32 {sSLOT}, {sB}, 3")
    A(f"s_add_u32 {sSLOT}, {sSLOT}, {sHKV}")
    A(f"s_lshl_b32 {sSLOT}, {sSLOT}, 2")
    A(f"s_add_u32 {sSLOT}, {sSLOT}, {sSPL}")
    A(f"s_lshl_b32 {sT2}, {sSLOT}, 19")
    A("v_and_b32 v7, 15, v0")
    A("v_lshrrev_b32 v8, 4, v0")
    A(f"s_mul_i32 {sT3}, {sWV}, 896")
    A(f"v_lshlrev_b32 v9, 4, v0")
    A(f"v_add_u32 v9, {sT3}, v9")
    A("v_mov_b32 v10, 0x7fffff00")
    A("v_cmp_gt_u32 vcc, 56, v0")
    A("v_lshrrev_b32 v11, 1, v0")
    A("v_lshlrev_b32 v11, 13, v11")
    A("v_cndmask_b32 v9, v10, v9, vcc")
    A("v_and_b32 v12, 1, v0")
    A("v_lshl_add_u32 v11, v12, 4, v11")
    A("v_lshlrev_b32 v1, 9, v7")
    A("v_lshl_add_u32 v1, v8, 4, v1")
    A(f"s_lshl_b32 {sT0}, {sP}, 5")
    A(f"s_lshl_b32 {sSO}, {sWV}, 18")
    A(f"s_add_u32 {sSO2}, {sSO}, {8<<18}")
    A(f"s_mov_b32 s{X_+2}, 7168\ns_mov_b32 s{X_+3}, 0x20000")
    A(f"s_sub_u32 s{WQ_+2}, 3670016, {sT0}\ns_mov_b32 s{WQ_+3}, 0x20000")
    A(f"s_mov_b32 s{K_+2}, 0x80000\ns_mov_b32 s{K_+3}, 0x20000")
    A(f"s_and_b32 {sT3}, {sWV}, 3")
    A(f"s_lshl_b32 {sT3}, {sT3}, 13")
    A("s_waitcnt lgkmcnt(0)")
    A(f"s_mov_b32 s{X_}, s64\ns_mov_b32 s{X_+1}, s65")
    A(f"s_add_u32 s{WQ_}, s70, {sT0}\ns_addc_u32 s{WQ_+1}, s71, 0")
    A(f"buffer_load_dwordx4 v[16:19], v9, {srd(X_)}, 0 offen")
    A(f"buffer_load_dwordx4 v[64:67], v11, {srd(WQ_)}, {sSO} offen {WF}")
    A(f"buffer_load_dwordx4 v[68:71], v11, {srd(WQ_)}, {sSO2} offen {WF}")
    A(f"s_load_dwordx2 {sTAG}, s[84:85], {WS_EP}")
    A(f"s_add_u32 s{K_}, s66, {sT2}\ns_addc_u32 s{K_+1}, s67, 0")
    if NPRE:
        A(f"s_cmp_lt_u32 {sWV}, 4")
        A("s_cbranch_scc1 L_front_noload")
        A("s_setprio 1")
        kloads("A", sT3)
        A("L_front_noload:")
    A(f"s_add_u32 s{V_}, s68, {sT2}\ns_addc_u32 s{V_+1}, s69, 0\ns_mov_b32 s{V_+2}, 0x80000\ns_mov_b32 s{V_+3}, 0x20000")
    A(f"s_lshr_b32 {sHS}, {sSLOT}, 2")
    A(f"s_and_b32 {sT0}, {sHS}, 3")
    A(f"s_cmp_eq_u32 {sT0}, {sSPL}")
    A(f"s_cselect_b32 {sFV}, 1, 0")
    A(f"s_cmp_lt_u32 {sHS}, {0 if opts.get('noffn') else 56}")
    A(f"s_cselect_b32 {sFV}, {sFV}, 0")
    A(f"s_cmp_ge_u32 {sHS}, 28")
    A(f"s_cselect_b32 {sT0}, 1, 0")
    A(f"s_lshl_b32 {sFV}, {sFV}, {sT0}")
    A(f"s_sub_u32 {sT1}, {sHS}, 28")
    A(f"s_and_b32 {sT1}, {sT1}, 31")
    A(f"s_mul_i32 {sT0}, {sT1}, 37")
    A(f"s_lshr_b32 {sKQ}, {sT0}, 8")
    A(f"s_mul_i32 {sT0}, {sKQ}, 7")
    A(f"s_sub_u32 {sFC}, {sT1}, {sT0}")
    A(f"s_lshl_b32 {sCS}, {sHKV}, 2")
    A(f"s_add_u32 {sCS}, {sCS}, {sSPL}")
    A(f"s_mov_b32 {sC}, 0x{f2u(CSC):08x}")
    A(f"s_lshl_b32 {sT0}, {sHS}, 7")
    A(f"s_mul_i32 {sT1}, {sKQ}, 401408")
    A(f"s_lshl_b32 s{W2_}, {sFC}, 7")
    A(f"s_add_u32 {sT1}, {sT1}, s{W2_}")
    A(f"s_cmp_eq_u32 {sFV}, 2")
    A(f"s_cselect_b32 {sT0}, {sT1}, {sT0}")
    A(f"s_cselect_b32 s{W2_}, s78, s76")
    A(f"s_cselect_b32 s{W2_+1}, s79, s77")
    A(f"s_movk_i32 {sSTR}, 3584")
    A(f"s_cselect_b32 {sSTR}, 896, {sSTR}")
    A(f"s_add_u32 s{W1_}, s{W2_}, {sT0}\ns_addc_u32 s{W1_+1}, s{W2_+1}, 0\ns_sub_u32 {sT1}, 1605632, {sT0}")
    A(f"s_cmp_eq_u32 {sFV}, 0\ns_cselect_b32 s{W1_+2}, 0, {sT1}\ns_mov_b32 s{W1_+3}, 0x20000")
    A(f"s_mul_i32 {sT0}, {sHKV}, 458752\ns_mul_i32 {sT1}, {sSPL}, 57344\ns_add_u32 {sT0}, {sT0}, {sT1}")
    A(f"s_add_u32 s{WO_}, s72, {sT0}\ns_addc_u32 s{WO_+1}, s73, 0\ns_sub_u32 s{WO_+2}, {0 if opts.get('nowo') else 3670016}, {0 if opts.get('nowo') else sT0}\ns_mov_b32 s{WO_+3}, 0x20000")
    A(f"s_mov_b32 s{WS_}, s84\ns_mov_b32 s{WS_+1}, s85\ns_mov_b32 s{WS_+2}, {WS_SIZE}\ns_mov_b32 s{WS_+3}, 0x20000")
    A(f"s_mov_b32 s{OUT_}, s80\ns_mov_b32 s{OUT_+1}, s81\ns_mov_b32 s{OUT_+2}, 7168\ns_mov_b32 s{OUT_+3}, 0x20000")
    A("s_mov_b32 s96, 0x00ff00ff\ns_mov_b32 s97, 0xff00ff00")
    A("v_lshlrev_b32 v2, 11, v8")
    A("v_lshl_add_u32 v2, v7, 4, v2")
    A("v_and_b32 v9, 1, v0")
    A("v_lshlrev_b32 v9, 4, v9")
    A("v_mov_b32 v10, 0xffff")
    A("v_lshlrev_b32 v9, v9, v10")
    A("v_bfe_u32 v10, v0, 1, 2")
    for i in range(4):
        A(f"v_cmp_eq_u32 vcc, {i}, v10")
        A("s_nop 1")
        A(f"v_cndmask_b32 v{3+i}, 0, v9, vcc")
    A(f"v_mov_b32 v20, {SY_LDS}\nv_mov_b32 v24, 0\nv_mov_b32 v25, 0\nv_mov_b32 v26, 0\nv_mov_b32 v27, 0\nv_mov_b32 v28, 8\nv_mov_b32 v29, 0\nv_mov_b32 v30, 0\nv_mov_b32 v31, 0")
    A("ds_write_b128 v20, v[24:27]")
    A("ds_write_b128 v20, v[28:31] offset:16")
    if NPRE:
        A(f"s_cmp_lt_u32 {sWV}, 4")
        A("s_cbranch_scc1 L_wx0")
        A(f"s_waitcnt vmcnt(10)")
        A("s_branch L_front_ln")
        A("L_wx0:")
    A(f"s_waitcnt vmcnt(2)")
    A("L_front_ln:")
    stamp(0)
    for i in range(4):
        A(f"v_lshlrev_b32 v{24+2*i}, 16, v{16+i}")
        A(f"v_and_b32 v{25+2*i}, 0xffff0000, v{16+i}")
    A("v_add_f32 v32, v24, v25\nv_add_f32 v33, v26, v27\nv_add_f32 v34, v28, v29\nv_add_f32 v35, v30, v31")
    A("v_add_f32 v32, v32, v33\nv_add_f32 v34, v34, v35\nv_add_f32 v32, v32, v34")
    allreduce(32, 33)
    A(f"v_mul_f32 v32, 0x{f2u(1.0/448):08x}, v32")
    for i in range(8): A(f"v_sub_f32 v{36+i}, v{24+i}, v32")
    A("v_mul_f32 v34, v36, v36")
    for i in range(1, 8): A(f"v_fmac_f32 v34, v{36+i}, v{36+i}")
    A("v_cmp_gt_u32 vcc, 56, v0")
    A("s_nop 1")
    A("v_cndmask_b32 v34, 0, v34, vcc")
    allreduce(34, 33)
    A(f"v_mul_f32 v34, 0x{f2u(1.0/448):08x}, v34")
    A("v_cvt_pk_bf16_f32 v33, v32, v34")
    A("v_lshlrev_b32 v32, 16, v33")
    A("v_and_b32 v34, 0xffff0000, v33")
    A(f"v_add_f32 v34, 0x{f2u(1e-5):08x}, v34")
    A("v_cvt_pk_bf16_f32 v34, v34, v34")
    A("v_lshlrev_b32 v34, 16, v34")
    A("v_sqrt_f32 v34, v34")
    A("s_nop 0")
    A("v_cvt_pk_bf16_f32 v34, v34, v34")
    A("v_lshlrev_b32 v34, 16, v34")
    A("v_rcp_f32 v34, v34")
    for i in range(8): A(f"v_sub_f32 v{36+i}, v{24+i}, v32")
    for i in range(4): A(f"v_cvt_pk_bf16_f32 v{44+i}, v{36+2*i}, v{37+2*i}")
    for i in range(4):
        A(f"v_lshlrev_b32 v{36+2*i}, 16, v{44+i}")
        A(f"v_and_b32 v{37+2*i}, 0xffff0000, v{44+i}")
    for i in range(8): A(f"v_mul_f32 v{36+i}, v{36+i}, v34")
    for i in range(4): A(f"v_cvt_pk_bf16_f32 v{44+i}, v{36+2*i}, v{37+2*i}")
    A(f"s_mul_i32 {sT0}, {sWV}, {XN_STR}")
    A(f"s_add_u32 {sT0}, {sT0}, {XN_LDS}")
    A(f"v_lshlrev_b32 v9, 4, v0")
    A(f"v_add_u32 v9, {sT0}, v9")
    A("s_mov_b32 exec_lo, -1\ns_mov_b32 exec_hi, 0x00ffffff")
    A("ds_write_b128 v9, v[44:47]")
    A("s_mov_b64 exec, -1")
    A("v_and_b32 v9, 7, v0")
    A(f"v_mul_u32_u24 v9, {XN_STR}, v9")
    A("v_lshl_add_u32 v9, v8, 4, v9")
    A(f"v_add_u32 v9, {XN_LDS}, v9")
    A("v_lshrrev_b32 v10, 2, v7")
    A("v_lshl_add_u32 v10, v8, 3, v10")
    A("v_and_b32 v12, 3, v7")
    A("v_lshlrev_b32 v12, 3, v12")
    A("v_lshl_add_u32 v11, v10, 7, v12")
    A(f"v_add_u32 v11, {CB_LDS}, v11")
    A("v_lshl_add_u32 v14, v10, 5, v12")
    A(f"v_add_u32 v14, {CB_LDS}, v14")
    A("v_mul_u32_u24 v10, 896, v10")
    A("v_add_u32 v10, v10, v12")
    A(f"s_lshl_b32 {sT0}, {sWV}, 10")
    A(f"s_add_u32 {sT0}, {sT0}, {CB_LDS}")
    A("v_lshlrev_b32 v13, 4, v0")
    A(f"v_add_u32 v13, {sT0}, v13")
    if NPRE:
        A(f"s_cmp_lt_u32 {sWV}, 4")
        A("s_cbranch_scc1 L_b1_01")
        A(f"s_waitcnt vmcnt(8)")
        A("s_branch L_b1")
        A("L_b1_01:")
    A(f"s_waitcnt vmcnt(0)")
    A("L_b1:")
    A(f"ds_write_b128 v13, v[64:67]")
    A(f"ds_write_b128 v13, v[68:71] offset:8192")
    A(f"s_waitcnt lgkmcnt(0)")
    A(f"s_add_u32 {sTAG0}, {sTAG0}, 1")
    A("s_barrier")
    stamp(1)
    A(f"s_cmp_ge_u32 {sWV}, 4")
    A(f"s_cbranch_scc1 L_stream")
    A(f"s_cmp_eq_u32 {sWV}, 0")
    A("s_cbranch_scc1 L_svc")
    A("s_setprio 2")
    A(f"s_cmp_eq_u32 {sWV}, 1")
    A(f"s_cbranch_scc0 L_wostage")
    A(f"s_cmp_eq_u32 {sFV}, 0")
    A("s_cbranch_scc1 L_ffn_done")
    A("v_lshrrev_b32 v14, 3, v0")
    A("v_and_b32 v13, 7, v0")
    A("v_lshlrev_b32 v13, 4, v13")
    A(f"v_mul_u32_u24 v12, {sSTR}, v14")
    A("v_add_u32 v12, v12, v13")
    A("v_lshlrev_b32 v14, 4, v0")
    A(f"v_add_u32 v14, {CB_LDS}, v14")
    A(f"s_lshl_b32 {sSTR}, {sSTR}, 3")
    def wburst(lo, hi):
        for i in range(lo, hi):
            A(f"s_mul_i32 s{64+i-lo}, {sSTR}, {i}")
        for i in range(lo, hi):
            d = 96 + (i % 40)*4
            A(f"buffer_load_dwordx4 v[{d}:{d+3}], v12, {srd(W1_)}, s{64+i-lo} offen {WF}")
    wburst(0, 20); wburst(20, 40)
    stamp(2)
    A(f"s_cmp_eq_u32 {sFV}, 2")
    A("s_cbranch_scc0 L_ffn_act_ok")
    A(f"s_mul_i32 {sT0}, {sKQ}, 1792")
    A(f"s_add_u32 {sT0}, {sT0}, {WS_H}")
    for b_ in range(8): A(f"s_add_u32 s{64+b_}, {sT0}, {b_*7168}")
    A("v_lshlrev_b32 v13, 4, v0")
    A(f"s_mov_b32 {sCNT}, 0")
    A("s_mov_b32 exec_hi, 0x00ffffff")
    A("L_hpoll:")
    for b_ in range(8):
        for hf in range(2):
            d = 16 + (b_*2+hf)*4
            A(f"buffer_load_dwordx4 v[{d}:{d+3}], v13, {srd(WS_)}, s{64+b_} offen offset:{hf*896} sc1")
    A(f"s_add_u32 {sCNT}, {sCNT}, 1")
    A(f"s_cmp_gt_u32 {sCNT}, {SPIN}")
    A("s_cbranch_scc1 L_hpoll_x")
    A("s_waitcnt vmcnt(0)")
    for i in range(16):
        d = 16 + i*4
        if i == 0: A(f"v_cmp_ne_u64 s[56:57], {sTAG}, v[{d+2}:{d+3}]")
        else:
            A(f"v_cmp_ne_u64 vcc, {sTAG}, v[{d+2}:{d+3}]")
            A("s_or_b64 s[56:57], s[56:57], vcc")
    A("s_and_b64 exec, exec, s[56:57]")
    A("s_cbranch_execz L_hpoll_x")
    A("s_sleep 16")
    A("s_branch L_hpoll")
    A("L_hpoll_x:")
    A("s_mov_b32 exec_lo, -1\ns_mov_b32 exec_hi, 0x00ffffff")
    A("s_waitcnt vmcnt(0)")
    A("v_lshlrev_b32 v13, 3, v0")
    A(f"v_add_u32 v13, {H2_LDS}, v13")
    for b_ in range(8):
        for hf in range(2):
            d = 16 + (b_*2+hf)*4
            A(f"ds_write_b64 v13, v[{d}:{d+1}] offset:{b_*XN_STR + hf*448}")
        if b_ % 4 == 3: A("s_waitcnt lgkmcnt(0)")
    A("s_mov_b64 exec, -1")
    A(f"v_add_u32 v9, {H2_LDS - XN_LDS}, v9")
    A("L_ffn_act_ok:")
    lds_wait_ge(4, 1, 72)
    def ffn_issue(t, tl):
        b = 32 + (t % 2)*20
        A(f"ds_read_b128 v[{b}:{b+3}], v9 offset:{t*64}")
        for ct in range(4):
            A(f"ds_read_b64_tr_b16 v[{b+4+ct*4}:{b+5+ct*4}], v11 offset:{tl*4096+ct*32}")
            A(f"ds_read_b64_tr_b16 v[{b+6+ct*4}:{b+7+ct*4}], v11 offset:{tl*4096+ct*32+512}")
    issued = 40
    for (lo, hi) in [(0,16),(16,32),(32,48),(48,56)]:
        A(f"s_waitcnt vmcnt({issued - hi})")
        for i in range(lo, hi):
            d = 96 + (i % 40)*4
            A(f"ds_write_b128 v14, v[{d}:{d+3}] offset:{(i-lo)*1024}")
            if (i-lo) % 8 == 7: A("s_waitcnt lgkmcnt(4)")
        A("s_waitcnt lgkmcnt(0)")
        nxt = min(56, hi + 40)
        if nxt > issued:
            wburst(issued, nxt); issued = nxt
        t0 = lo // 4; nt = (hi-lo)//4
        ffn_issue(t0, 0)
        for tl in range(nt):
            t = t0 + tl
            if tl+1 < nt:
                A("s_waitcnt lgkmcnt(4)")
                ffn_issue(t+1, tl+1)
                A("s_waitcnt lgkmcnt(9)")
            else:
                A("s_waitcnt lgkmcnt(0)")
            b = 32 + (t % 2)*20
            for ct in range(4):
                c = "0" if t == 0 else f"v[{16+ct*4}:{19+ct*4}]"
                A(f"v_mfma_f32_16x16x32_bf16 v[{16+ct*4}:{19+ct*4}], v[{b+4+ct*4}:{b+7+ct*4}], v[{b}:{b+3}], {c}")
    stamp(3)
    A(f"v_mov_b32 v92, {sTAG0}\nv_mov_b32 v93, {sTAG1}")
    A("v_and_b32 v12, 7, v0")
    A("v_bfe_u32 v13, v0, 3, 1")
    A("s_mov_b32 s58, 0xff00ff00\ns_mov_b32 s59, 0xff00ff00")
    A(f"s_cmp_eq_u32 {sFV}, 2")
    A("s_cbranch_scc1 L_ffn_out2")
    A("v_mul_u32_u24 v12, 7168, v12")
    A("v_lshl_add_u32 v12, v8, 4, v12")
    A("v_lshl_add_u32 v12, v13, 6, v12")
    A(f"s_lshl_b32 {sSO}, {sHS}, 8")
    A(f"s_add_u32 {sSO}, {sSO}, {WS_H}")
    for ct in range(4):
        for r in range(4): A(f"v_max_f32 v{16+ct*4+r}, 0, v{16+ct*4+r}")
        A(f"v_cvt_pk_bf16_f32 v{16+ct*4}, v{16+ct*4}, v{17+ct*4}")
        A(f"v_cvt_pk_bf16_f32 v{17+ct*4}, v{18+ct*4}, v{19+ct*4}")
    for cp in range(2):
        o = 96 + 4*cp
        A(f"v_cndmask_b32 v{o}, v{16+cp*8}, v{20+cp*8}, s[58:59]")
        A(f"v_cndmask_b32 v{o+1}, v{17+cp*8}, v{21+cp*8}, s[58:59]")
        A(f"v_mov_b32 v{o+2}, v92\nv_mov_b32 v{o+3}, v93")
    for cp in range(2):
        o = 96 + 4*cp
        A(f"buffer_store_dwordx4 v[{o}:{o+3}], v12, {srd(WS_)}, {sSO} offen offset:{cp*128} sc1")
    A("s_branch L_ffn_done")
    A("L_ffn_out2:")
    A("v_mul_u32_u24 v12, 3584, v12")
    A("v_lshl_add_u32 v12, v8, 5, v12")
    A("v_lshl_add_u32 v12, v13, 4, v12")
    A(f"s_mul_i32 {sSO}, {sKQ}, {8*3584}")
    A(f"s_lshl_b32 {sT0}, {sFC}, 9")
    A(f"s_add_u32 {sSO}, {sSO}, {sT0}")
    A(f"s_add_u32 {sSO}, {sSO}, {WS_FP}")
    for ct in range(4):
        d = 16 + 4*ct; o = 96 + 4*ct
        A(f"v_cndmask_b32 v{o}, v92, v{d+2}, s[58:59]")
        A(f"v_cndmask_b32 v{o+1}, v93, v{d+3}, s[58:59]")
        A(f"v_cndmask_b32 v{o+2}, v{d}, v92, s[58:59]")
        A(f"v_cndmask_b32 v{o+3}, v{d+1}, v93, s[58:59]")
    for ct in range(4):
        o = 96 + 4*ct
        A(f"buffer_store_dwordx4 v[{o}:{o+3}], v12, {srd(WS_)}, {sSO} offen offset:{ct*128} sc1")
    A("L_ffn_done:")
    lds_set(24, 12)
    stamp(4)
    A("s_branch L_helper_end")

    A("L_svc:")
    def q_issue(t):
        b = 24 + (t % 5)*8
        A(f"ds_read_b128 v[{b}:{b+3}], v9 offset:{t*64}")
        A(f"ds_read_b64_tr_b16 v[{b+4}:{b+5}], v14 offset:{t*1024}")
        A(f"ds_read_b64_tr_b16 v[{b+6}:{b+7}], v14 offset:{t*1024+128}")
    for t in range(4): q_issue(t)
    for t in range(14):
        rem = min(13, t+3) - t
        A(f"s_waitcnt lgkmcnt({rem*3})")
        b = 24 + (t % 5)*8
        c = "0" if t == 0 else "v[16:19]"
        A(f"v_mfma_f32_16x16x32_bf16 v[16:19], v[{b+4}:{b+7}], v[{b}:{b+3}], {c}")
        if t+4 < 14: q_issue(t+4)
    A("v_lshlrev_b32 v12, 14, v7")
    A("v_lshl_add_u32 v12, v8, 4, v12")
    A(f"s_lshl_b32 {sSO}, {sP}, 6")
    A(f"s_add_u32 {sSO}, {sSO}, {WS_Q}")
    A("s_nop 3")
    A("v_cvt_pk_bf16_f32 v16, v16, v17")
    A("v_cvt_pk_bf16_f32 v17, v18, v19")
    A(f"v_mov_b32 v18, {sTAG0}\nv_mov_b32 v19, {sTAG1}")
    A("s_mov_b32 exec_lo, 0x00ff00ff\ns_mov_b32 exec_hi, 0x00ff00ff")
    A(f"buffer_store_dwordx4 v[16:19], v12, {srd(WS_)}, {sSO} offen sc1")
    A("s_mov_b64 exec, -1")
    lds_set(4, 20)
    stamp(2)
    A(f"s_lshl_b32 {sSO}, {sB}, 14")
    A(f"s_lshl_b32 {sT0}, {sHKV}, 11")
    A(f"s_add_u32 {sSO}, {sSO}, {sT0}")
    A(f"s_add_u32 {sSO}, {sSO}, {WS_Q}")
    A("v_lshlrev_b32 v12, 4, v0")
    A(f"s_mov_b32 {sCNT}, 0")
    A("L_qpoll:")
    A(f"buffer_load_dwordx4 v[24:27], v12, {srd(WS_)}, {sSO} offen sc1")
    A(f"buffer_load_dwordx4 v[28:31], v12, {srd(WS_)}, {sSO} offen offset:1024 sc1")
    A(f"s_add_u32 {sCNT}, {sCNT}, 1")
    A(f"s_cmp_gt_u32 {sCNT}, {SPIN}")
    A("s_cbranch_scc1 L_qpoll_x")
    A("s_waitcnt vmcnt(0)")
    A(f"v_cmp_ne_u64 vcc, {sTAG}, v[26:27]")
    A(f"v_cmp_ne_u64 s[56:57], {sTAG}, v[30:31]")
    A("s_or_b64 vcc, vcc, s[56:57]")
    A("s_and_b64 exec, exec, vcc")
    A("s_cbranch_execnz L_qpoll")
    A("L_qpoll_x:")
    A("s_mov_b64 exec, -1")
    A("s_waitcnt vmcnt(0)")
    stamp(4)
    A("v_lshlrev_b32 v12, 3, v0")
    A(f"v_add_u32 v12, {Q_LDS}, v12")
    A("ds_write_b64 v12, v[24:25]")
    A("ds_write_b64 v12, v[28:29] offset:512")
    lds_set(0, 12)
    A("s_branch L_helper_end")

    A("L_wostage:")
    A(f"s_sub_u32 {sT0}, {sWV}, 2")
    A(f"s_mul_i32 {sT1}, {sT0}, 57344")
    A(f"s_mul_i32 {sT0}, {sT0}, 229376")
    A("v_lshlrev_b32 v12, 4, v0")
    A(f"v_add_u32 v13, {sT1}, v12")
    for i in range(14): A(f"s_add_u32 s{64+i}, {sT0}, {i*4096}")
    for i in range(56):
        d = 32 + i*4
        A(f"buffer_load_dwordx4 v[{d}:{d+3}], v12, {srd(WO_)}, s{64+i//4} offen offset:{(i%4)*1024} {WOF}")
        if i % opts.get("woburst", 14) == opts.get("woburst", 14)-1: A("s_nop 0")
    stamp(2)
    for c in range(7):
        A(f"s_waitcnt vmcnt({48-8*c})")
        for i in range(8*c, 8*c+8):
            d = 32 + i*4
            A(f"ds_write_b128 v13, v[{d}:{d+3}] offset:{WO_LDS + i*1024}")
        A("s_waitcnt lgkmcnt(4)")
    lds_inc(20, 12)
    stamp(4)

    A("L_helper_end:")
    if opts.get("norole"): A("s_branch L_fin")
    lds_wait_ge(20, 2, 12, sleep=8)
    A(f"s_mul_i32 {sT0}, {sWV}, 224")
    A(f"v_add_u32 v12, {sT0}, v10")
    A(f"v_add_u32 v13, 57344, v12")
    for tl in range(7):
        for t in range(4):
            b = 128 + (tl*4+t)*4
            va = 12 if t < 2 else 13
            off = WO_LDS + (t % 2)*32*896 + tl*32
            A(f"ds_read_b64_tr_b16 v[{b}:{b+1}], v{va} offset:{off}")
            A(f"ds_read_b64_tr_b16 v[{b+2}:{b+3}], v{va} offset:{off+4*896}")
        A("s_waitcnt lgkmcnt(4)")
    stamp(5)
    if opts.get("hprio") is not None: A(f"s_setprio {opts['hprio']}")
    if opts.get("stop") == 1: A("s_branch L_fin")
    if opts.get("stop") == 2:
        lds_wait_ge(16, THRESH, 12, sleep=8)
        lds_wait_ge(8, 4, 12, sleep=2)
        A("s_branch L_fin")
    def gather(prefix, nload, last_half, base_s, pstride, vb, sleep):
        A("v_lshrrev_b32 v20, 3, v0")
        A(f"v_mul_u32_u24 v20, {pstride}, v20")
        A("v_and_b32 v21, 7, v0")
        A("v_lshl_add_u32 v20, v21, 4, v20")
        for i in range(1, 4): A(f"v_add_u32 v{20+i}, {i*8*pstride}, v20")
        if last_half:
            A("v_cmp_gt_u32 vcc, 32, v0")
            A("s_nop 1")
            A("v_cndmask_b32 v23, v22, v23, vcc")
        A(f"s_mov_b32 {sCNT}, 0")
        A("s_mov_b32 s58, 0xaaaaaaaa\ns_mov_b32 s59, 0xaaaaaaaa")
        A(f"L_{prefix}poll:")
        for i in range(3): A(f"buffer_load_dwordx4 v[{vb+4*i}:{vb+3+4*i}], v{20+i}, {srd(WS_)}, {base_s} offen sc1")
        A(f"buffer_load_dwordx4 v[{vb+12}:{vb+15}], v23, {srd(WS_)}, {base_s} offen sc1")
        A(f"s_add_u32 {sCNT}, {sCNT}, 1")
        A(f"s_cmp_gt_u32 {sCNT}, {SPIN}")
        A(f"s_cbranch_scc1 L_{prefix}poll_x")
        for i in range(4):
            b = vb+4*i
            A(f"s_waitcnt vmcnt({3-i})")
            A(f"v_cndmask_b32 v40, v{b}, v{b+2}, s[58:59]")
            A(f"v_cndmask_b32 v41, v{b+1}, v{b+3}, s[58:59]")
            if i == 0: A(f"v_cmp_ne_u64 s[56:57], {sTAG}, v[40:41]")
            else:
                A(f"v_cmp_ne_u64 vcc, {sTAG}, v[40:41]")
                A("s_or_b64 s[56:57], s[56:57], vcc")
        A("s_and_b64 exec, exec, s[56:57]")
        A(f"s_cbranch_execz L_{prefix}poll_x")
        if sleep: A(f"s_sleep {sleep}")
        A(f"s_branch L_{prefix}poll")
        A(f"L_{prefix}poll_x:")
        A("s_mov_b64 exec, -1")
        A("s_waitcnt vmcnt(0)")
        for i in range(4):
            b = vb+4*i
            A(f"v_cndmask_b32 v{40+2*i}, v{b+2}, v{b}, s[58:59]")
            A(f"v_cndmask_b32 v{41+2*i}, v{b+3}, v{b+1}, s[58:59]")
        if last_half: A("v_cmp_gt_u32 vcc, 32, v0")
        A("v_add_f32 v40, v40, v42\nv_add_f32 v41, v41, v43")
        if last_half: A("v_cndmask_b32 v46, 0, v46, vcc\nv_cndmask_b32 v47, 0, v47, vcc")
        A("v_add_f32 v44, v44, v46\nv_add_f32 v45, v45, v47")
        A("v_add_f32 v40, v40, v44\nv_add_f32 v41, v41, v45")
        A("s_nop 1")
        A("v_add_f32_dpp v40, v40, v40 row_ror:8 row_mask:0xf bank_mask:0xf")
        A("v_add_f32_dpp v41, v41, v41 row_ror:8 row_mask:0xf bank_mask:0xf")
        xreduce2(40, 41, 42, 43)
    A(f"s_cmp_eq_u32 {sWV}, 3")
    A("s_cbranch_scc0 L_nofg")
    A(f"s_cmp_lt_u32 {sHKV}, 7")
    A("s_cbranch_scc0 L_nofg")
    lds_wait_ge(16, opts.get("fthresh", 56), 12, sleep=16)
    A(f"s_mul_i32 {sSO2}, {sB}, 896")
    A(f"s_lshl_b32 {sT0}, {sCS}, 5")
    A(f"s_add_u32 {sSO2}, {sSO2}, {sT0}")
    A("v_and_b32 v14, 7, v0")
    A("v_lshlrev_b32 v14, 2, v14")
    A(f"buffer_load_dword v19, v14, {srd(X_)}, {sSO2} offen")
    A(f"s_mul_i32 {sSO}, {sB}, 3584")
    A(f"s_lshl_b32 {sT0}, {sCS}, 7")
    A(f"s_add_u32 {sSO}, {sSO}, {sT0}")
    A(f"s_add_u32 {sSO}, {sSO}, {WS_FP}")
    A("v_bfe_u32 v20, v0, 3, 2")
    A(f"v_mul_u32_u24 v20, {8*3584}, v20")
    A("v_and_b32 v21, 7, v0")
    A("v_lshl_add_u32 v20, v21, 4, v20")
    A(f"s_mov_b32 {sCNT}, 0")
    A("s_mov_b32 s58, 0xaaaaaaaa\ns_mov_b32 s59, 0xaaaaaaaa")
    A("L_fpoll:")
    A(f"buffer_load_dwordx4 v[24:27], v20, {srd(WS_)}, {sSO} offen sc1")
    A(f"s_add_u32 {sCNT}, {sCNT}, 1")
    A(f"s_cmp_gt_u32 {sCNT}, {SPIN}")
    A("s_cbranch_scc1 L_fpoll_x")
    A("s_waitcnt vmcnt(0)")
    A("v_cndmask_b32 v40, v24, v26, s[58:59]")
    A("v_cndmask_b32 v41, v25, v27, s[58:59]")
    A(f"v_cmp_ne_u64 vcc, {sTAG}, v[40:41]")
    A("s_cbranch_vccz L_fpoll_x")
    A("s_sleep 8")
    A("s_branch L_fpoll")
    A("L_fpoll_x:")
    A("s_waitcnt vmcnt(0)")
    A("v_cndmask_b32 v40, v26, v24, s[58:59]")
    A("v_cndmask_b32 v41, v27, v25, s[58:59]")
    A("s_nop 1")
    A("v_add_f32_dpp v40, v40, v40 row_ror:8 row_mask:0xf bank_mask:0xf")
    A("v_add_f32_dpp v41, v41, v41 row_ror:8 row_mask:0xf bank_mask:0xf")
    A("v_mov_b32 v42, v40\nv_mov_b32 v43, v41")
    A("s_nop 0")
    A("v_permlane16_swap_b32 v40, v42")
    A("v_permlane16_swap_b32 v41, v43")
    A("s_nop 0")
    A("v_add_f32 v40, v40, v42\nv_add_f32 v41, v41, v43")
    A("v_cvt_pk_bf16_f32 v42, v40, v41")
    A("v_lshlrev_b32 v40, 16, v42\nv_and_b32 v41, 0xffff0000, v42")
    for r in range(2): A(f"v_mul_f32 v{42+r}, 0x{f2u(-math.log2(math.e)):08x}, v{40+r}")
    for r in range(2): A(f"v_exp_f32 v{42+r}, v{42+r}")
    A("s_nop 0")
    for r in range(2): A(f"v_add_f32 v{42+r}, 1.0, v{42+r}")
    for r in range(2): A(f"v_rcp_f32 v{42+r}, v{42+r}")
    A("s_nop 0")
    for r in range(2): A(f"v_mul_f32 v{40+r}, v{40+r}, v{42+r}")
    A("v_cvt_pk_bf16_f32 v42, v40, v41")
    A("v_lshlrev_b32 v16, 16, v42\nv_and_b32 v17, 0xffff0000, v42")
    A("v_lshlrev_b32 v18, 16, v19\nv_and_b32 v19, 0xffff0000, v19")
    stamp(6)
    A("L_nofg:")
    A(f"s_lshl_b32 {sT0}, {sB}, 5")
    A(f"s_add_u32 {sT0}, {sT0}, {sCS}")
    A(f"s_mul_i32 {sSO2}, {sT0}, 3584")
    A(f"s_mul_i32 {sT0}, {sWV}, 896")
    A(f"s_add_u32 {sSO2}, {sSO2}, {sT0}")
    A(f"s_add_u32 {sSO2}, {sSO2}, {WS_SP}")
    A("v_and_b32 v11, 1, v0")
    A("v_lshlrev_b32 v11, 4, v11")
    A("v_lshl_add_u32 v11, v8, 5, v11")
    A(f"v_lshlrev_b32 v9, 4, v8")
    A(f"v_add_u32 v9, {O_LDS}, v9")
    A(f"s_cmp_eq_u32 {sWV}, 0")
    A("s_cbranch_scc0 L_wait_o")
    lds_wait_ge(16, THRESH, 12, sleep=8)
    stamp(7)
    A("v_lshlrev_b32 v12, 10, v8")
    A("v_lshl_add_u32 v12, v7, 4, v12")
    A(f"s_lshl_b32 {sT0}, {sSPL}, 8")
    A(f"v_add_u32 v12, {sT0}, v12")
    A("v_lshlrev_b32 v13, 4, v8")
    A(f"s_and_b32 {sT0}, {sSLOT}, 0xfc")
    A(f"s_mul_i32 {sSO}, {sT0}, {OP_STR}")
    A(f"s_add_u32 {sSO}, {sSO}, {WS_OP}")
    for s_ in range(4): A(f"s_add_u32 s{64+s_}, {sSO}, {s_*OP_STR}")
    if opts.get("gwarm", 1):
        A("s_mov_b32 exec_hi, 0")
        for s_ in range(4): A(f"buffer_load_dwordx4 v[{48+4*s_}:{51+4*s_}], v12, {srd(WS_)}, s{64+s_} offen sc1")
        for s_ in range(4): A(f"buffer_load_dwordx4 v[{64+4*s_}:{67+4*s_}], v13, {srd(WS_)}, s{64+s_} offen offset:2048 sc1")
        A("s_mov_b32 exec_hi, -1")
        lds_wait_ge(8, 4, 82, sleep=1)
    A(f"s_mov_b32 {sCNT}, 0")
    A("s_mov_b32 exec_hi, 0")
    A("L_gpoll:")
    for s_ in range(4): A(f"buffer_load_dwordx4 v[{48+4*s_}:{51+4*s_}], v12, {srd(WS_)}, s{64+s_} offen sc1")
    for s_ in range(4): A(f"buffer_load_dwordx4 v[{64+4*s_}:{67+4*s_}], v13, {srd(WS_)}, s{64+s_} offen offset:2048 sc1")
    A(f"s_add_u32 {sCNT}, {sCNT}, 1")
    A(f"s_cmp_gt_u32 {sCNT}, {SPIN}")
    A("s_cbranch_scc1 L_gpoll_x")
    for i in range(8):
        A(f"s_waitcnt vmcnt({7-i})")
        if i == 0: A(f"v_cmp_ne_u64 s[56:57], {sTAG}, v[50:51]")
        else:
            A(f"v_cmp_ne_u64 vcc, {sTAG}, v[{50+4*i}:{51+4*i}]")
            A("s_or_b64 s[56:57], s[56:57], vcc")
    A("s_cmp_lg_u64 s[56:57], 0")
    A("s_cbranch_scc0 L_gpoll_x")
    if opts.get("gsleep", 1): A(f"s_sleep {opts.get('gsleep', 1)}")
    A("s_branch L_gpoll")
    A("L_gpoll_x:")
    A("s_waitcnt vmcnt(0)")
    stamp(8)
    A("v_max3_f32 v80, v64, v68, v72")
    A("v_max_f32 v80, v80, v76")
    for s_ in range(4): A(f"v_sub_f32 v{64+4*s_}, v{64+4*s_}, v80")
    for s_ in range(4): A(f"v_exp_f32 v{64+4*s_}, v{64+4*s_}")
    for s_ in range(4):
        A(f"v_lshlrev_b32 v{84+4*s_}, 16, v{48+4*s_}")
        A(f"v_and_b32 v{85+4*s_}, 0xffff0000, v{48+4*s_}")
        A(f"v_lshlrev_b32 v{86+4*s_}, 16, v{49+4*s_}")
        A(f"v_and_b32 v{87+4*s_}, 0xffff0000, v{49+4*s_}")
    A("v_mul_f32 v81, v64, v65")
    for s_ in range(1, 4): A(f"v_fmac_f32 v81, v{64+4*s_}, v{65+4*s_}")
    A("v_rcp_f32 v81, v81")
    for e in range(4): A(f"v_mul_f32 v{84+e}, v64, v{84+e}")
    for s_ in range(1, 4):
        for e in range(4): A(f"v_fmac_f32 v{84+e}, v{64+4*s_}, v{84+4*s_+e}")
    for e in range(4): A(f"v_mul_f32 v{84+e}, v{84+e}, v81")
    A("v_cvt_pk_bf16_f32 v84, v84, v85")
    A("v_cvt_pk_bf16_f32 v85, v86, v87")
    A("v_lshlrev_b32 v12, 3, v0")
    A(f"v_add_u32 v12, {O_LDS}, v12")
    A("ds_write_b64 v12, v[84:85]")
    A("s_mov_b64 exec, -1")
    lds_set(12, 12)
    A("s_branch L_gemv")
    A("L_wait_o:")
    lds_wait_ge(16, THRESH, 12, sleep=8)
    lds_wait_ge(8, 4, 12, sleep=2)
    lds_wait_ge(12, 1, 12, sleep=opts.get("osleep", 1))
    A("L_gemv:")
    for t in range(4): A(f"ds_read_b128 v[{48+4*t}:{51+4*t}], v9 offset:{t*64}")
    A("s_mov_b32 s58, 0xaaaaaaaa\ns_mov_b32 s59, 0xaaaaaaaa")
    DB = 64
    A(f"v_mov_b32 v92, {sTAG0}\nv_mov_b32 v93, {sTAG1}")
    A("s_mov_b32 s56, 0x00030003\ns_mov_b32 s57, 0x00030003")
    A(f"s_waitcnt lgkmcnt(0)")
    def gstore(tl):
        d = DB + 4*tl; o = 96 + 4*tl
        A(f"v_cndmask_b32 v{o}, v92, v{d+2}, s[58:59]")
        A(f"v_cndmask_b32 v{o+1}, v93, v{d+3}, s[58:59]")
        A(f"v_cndmask_b32 v{o+2}, v{d}, v92, s[58:59]")
        A(f"v_cndmask_b32 v{o+3}, v{d+1}, v93, s[58:59]")
        A("s_mov_b64 exec, s[56:57]")
        A(f"buffer_store_dwordx4 v[{o}:{o+3}], v11, {srd(WS_)}, {sSO2} offen offset:{tl*128} sc1")
        A("s_mov_b64 exec, -1")
    for tl in range(7):
        for t in range(4):
            d = DB + 4*tl
            c = "0" if t == 0 else f"v[{d}:{d+3}]"
            b = 128 + (tl*4+t)*4
            A(f"v_mfma_f32_16x16x32_bf16 v[{d}:{d+3}], v[{b}:{b+3}], v[{48+4*t}:{51+4*t}], {c}")
        if tl >= 2: gstore(tl-2)
    gstore(5)
    A("s_nop 0")
    gstore(6)
    stamp(10)
    if opts.get("stop") == 3: A("s_branch L_fin")
    A(f"s_cmp_eq_u32 {sWV}, 3")
    A("s_cbranch_scc0 L_fin")
    A(f"s_cmp_lt_u32 {sHKV}, 7")
    A("s_cbranch_scc0 L_fin")
    A(f"s_mul_i32 {sSO}, {sB}, {32*3584}")
    A(f"s_lshl_b32 {sT0}, {sCS}, 7")
    A(f"s_add_u32 {sSO}, {sSO}, {sT0}")
    A(f"s_add_u32 {sSO}, {sSO}, {WS_SP}")
    A(f"s_mul_i32 {sSO2}, {sB}, 896")
    A(f"s_lshl_b32 {sT0}, {sCS}, 5")
    A(f"s_add_u32 {sSO2}, {sSO2}, {sT0}")
    gather("s", 4, False, sSO, 3584, 24, opts.get("ssleep", 1))
    stamp(12)
    A("v_cvt_pk_bf16_f32 v42, v40, v41")
    A("v_lshlrev_b32 v40, 16, v42\nv_and_b32 v41, 0xffff0000, v42")
    A("v_mul_f32 v40, v40, v16\nv_mul_f32 v41, v41, v17")
    A("v_cvt_pk_bf16_f32 v42, v40, v41")
    A("v_lshlrev_b32 v40, 16, v42\nv_and_b32 v41, 0xffff0000, v42")
    A("v_add_f32 v40, v18, v40\nv_add_f32 v41, v19, v41")
    A("v_cvt_pk_bf16_f32 v42, v40, v41")
    A("s_mov_b64 exec, 0xff")
    A(f"buffer_store_dword v42, v14, {srd(OUT_)}, {sSO2} offen")
    A("s_mov_b64 exec, -1")
    A(f"s_cmp_eq_u32 {sWG}, 0")
    A("s_cbranch_scc0 L_fin")
    A(f"v_mov_b32 v24, {sTAG0}\nv_mov_b32 v25, {sTAG1}\nv_mov_b32 v22, {WS_EP}")
    A("s_mov_b64 exec, 1")
    A(f"buffer_store_dwordx2 v[24:25], v22, {srd(WS_)}, 0 offen sc1")
    A("s_mov_b64 exec, -1")
    A("s_branch L_fin")

    A("L_stream:")
    A("s_setprio 1")
    if not NPRE:
        kloads("A", sT3)
        A("s_nop 0")
    A(f"s_add_u32 {sT2}, {sT3}, 32768")
    vloads("A", sT3)
    A("s_nop 0")
    kloads("B", sT2)
    A("s_nop 0")
    vloads("B", sT2)
    stamp(5)
    lds_wait_ge(0, 1, 12)
    A("v_lshrrev_b32 v13, 3, v7")
    A("v_lshlrev_b32 v13, 9, v13")
    A("v_lshl_add_u32 v13, v8, 4, v13")
    A(f"v_add_u32 v13, {Q_LDS}, v13")
    for i in range(8):
        A(f"ds_read_b128 v[{16+4*i}:{19+4*i}], v13 offset:{i*64}")
    A(f"v_mov_b32 v74, {SY_LDS+16}")
    A("v_mov_b32 v75, 1")
    def grab():
        A("s_mov_b64 exec, 1")
        A("ds_add_rtn_u32 v76, v74, v75")
        A("s_mov_b64 exec, -1")
    grab()
    A(f"v_mov_b32 v68, 0x{f2u(-1e30):08x}")
    A("v_mov_b32 v69, 0")
    for i in range(8): A(f"v_mov_b32 v{52+i}, 0")
    A("v_lshrrev_b32 v78, 1, v8")
    A("v_lshlrev_b32 v78, 10, v78")
    A("v_lshl_add_u32 v78, v7, 5, v78")
    A("v_and_b32 v79, 1, v8")
    A("v_lshl_add_u32 v78, v79, 4, v78")
    A(f"s_and_b32 {sT1}, {sWV}, 3")
    A(f"s_lshl_b32 {sT0}, {sT1}, 11")
    A(f"s_add_u32 {sT0}, {sT0}, {CB_LDS}")
    A(f"v_add_u32 v78, {sT0}, v78")
    A("v_lshrrev_b32 v79, 3, v7")
    A("v_lshlrev_b32 v79, 5, v79")
    A(f"s_lshl_b32 {sT0}, {sT1}, 3")
    A(f"s_add_u32 {sT0}, {sT0}, {ST_LDS}")
    A(f"v_add_u32 v79, {sT0}, v79")
    A("s_waitcnt lgkmcnt(0)")
    A(f"v_readfirstlane_b32 {sNX}, v76")
    stamp(6)
    A(f"s_cmp_lt_u32 {sNX}, 64")
    A("s_cbranch_scc0 L_noref_A")
    def ands(st, r):
        for i in range(4): A(f"v_and_b32 v{60+4*st+i}, v{48+r}, v{3+i}")
    def proc(sl, kind):
        o = "B" if sl == "A" else "A"
        base = SLOT[sl]
        A(f"L_{kind}_{sl}:")
        if kind == "full":
            grab()
            A(f"s_lshl_b32 {sSO}, {sNX}, 13")
        if kind == "noref":
            lds_wait_ge(24, 1, 70)
        A(f"s_waitcnt vmcnt({8 if kind == 'last' else 24})")
        for i in range(8):
            c = "0" if i == 0 else "v[48:51]"
            A(f"v_mfma_f32_16x16x32_bf16 v[48:51], v[{base+4*i}:{base+4*i+3}], v[{16+4*i}:{19+4*i}], {c}")
        if kind == "full": kloads(sl, sSO)
        else: A("s_nop 7")
        A("v_max3_f32 v70, v48, v49, v50")
        A("v_max_f32 v70, v70, v51")
        xreduce(70, 71, "v_max_f32")
        A(f"v_mul_f32 v70, {sC}, v70")
        A("v_max_f32 v70, v70, v68")
        A("v_sub_f32 v72, v68, v70")
        A("v_exp_f32 v72, v72")
        A("v_mov_b32 v68, v70")
        for r in range(4): A(f"v_fma_f32 v{48+r}, v{48+r}, {sC}, -v70")
        for r in range(4): A(f"v_exp_f32 v{48+r}, v{48+r}")
        A("v_mov_b32_dpp v73, v72 row_ror:8 row_mask:0xf bank_mask:0xf")
        A("v_mul_f32 v69, v69, v72")
        A(f"v_cndmask_b32 v73, v73, v72, {sAM}")
        for r in range(4):
            A(f"v_add_f32 v69, v69, v{48+r}")
            A(f"v_cvt_pk_bf16_f32 v{48+r}, v{48+r}, v{48+r}")
        for i in range(8): A(f"v_mul_f32 v{52+i}, v{52+i}, v73")
        ands(0, 0); ands(1, 1)
        if kind == "last":
            xreduce(69, 71, "v_add_f32")
            A("ds_write_b64 v79, v[68:69]")
        A(f"s_waitcnt vmcnt({ {'full':24,'noref':16,'last':0}[kind] })")
        def pv(st, r):
            for hf in range(2):
                vb = base + 32 + (r*2+hf)*4
                A(f"v_mfma_f32_16x16x32_bf16 v[{52+4*hf}:{55+4*hf}], v[{60+4*st}:{63+4*st}], v[{vb}:{vb+3}], v[{52+4*hf}:{55+4*hf}]")
        pv(0, 0); ands(0, 2); pv(1, 1); ands(1, 3); pv(0, 2); pv(1, 3)
        if kind == "full":
            vloads(sl, sSO)
            A("s_waitcnt lgkmcnt(0)")
            A(f"v_readfirstlane_b32 {sNX}, v76")
            A(f"s_cmp_lt_u32 {sNX}, 64")
            A(f"s_cbranch_scc0 L_noref_{o}")
            if sl == "B": A("s_branch L_full_A")
        elif kind == "last":
            if sl == "B": A("s_branch L_done")
    proc("A", "full"); proc("B", "full")
    proc("A", "noref"); proc("B", "last")
    proc("B", "noref"); proc("A", "last")
    A("L_done:")
    stamp(8)
    A("s_setprio 3")
    A(f"v_mov_b32 v20, {SY_LDS+8}")
    A("v_mov_b32 v21, 1")
    A("v_lshlrev_b32 v18, 4, v0")
    A(f"v_add_u32 v19, {CB_LDS}, v18")
    A(f"v_mov_b32 v17, {ST_LDS}")
    A("s_nop 2")
    A("ds_write_b128 v78, v[52:55]")
    A("ds_write_b128 v78, v[56:59] offset:512")
    A("s_mov_b64 exec, 1")
    A("s_waitcnt lgkmcnt(0)")
    A("ds_add_rtn_u32 v21, v20, v21")
    A("s_mov_b64 exec, -1")
    A(f"s_mul_i32 {sSO}, {sSLOT}, {OP_STR}")
    A(f"s_add_u32 {sSO}, {sSO}, {WS_OP}")
    A(f"v_mov_b32 v46, {sTAG0}\nv_mov_b32 v47, {sTAG1}\nv_mov_b32 v50, {sTAG0}\nv_mov_b32 v51, {sTAG1}")
    A(f"v_mov_b32 v54, {sTAG0}\nv_mov_b32 v55, {sTAG1}")
    A("s_waitcnt lgkmcnt(0)")
    A(f"v_readfirstlane_b32 {sARR}, v21")
    A(f"s_cmp_eq_u32 {sARR}, 3")
    A("s_cbranch_scc0 L_fin")
    for i in range(4): A(f"ds_read_b128 v[{20+4*i}:{23+4*i}], v17 offset:{16*i}")
    CBR = 96
    for w in range(4):
        A(f"ds_read_b128 v[{CBR+8*w}:{CBR+8*w+3}], v19 offset:{2048*w}")
        A(f"ds_read_b128 v[{CBR+8*w+4}:{CBR+8*w+7}], v19 offset:{2048*w+1024}")
    A("s_waitcnt lgkmcnt(8)")
    A("v_max3_f32 v60, v20, v22, v24")
    A("v_max3_f32 v62, v28, v30, v32")
    A("v_max_f32 v60, v60, v26")
    A("v_max_f32 v62, v62, v34")
    for w in range(4):
        A(f"v_sub_f32 v{20+2*w}, v{20+2*w}, v60")
        A(f"v_sub_f32 v{28+2*w}, v{28+2*w}, v62")
    for w in range(8): A(f"v_exp_f32 v{20+2*w}, v{20+2*w}")
    A("v_cmp_eq_u32 vcc, 1, v0")
    A("v_mul_f32 v61, v20, v21")
    A("v_mul_f32 v63, v28, v29")
    for w in range(1, 4):
        A(f"v_fmac_f32 v61, v{20+2*w}, v{21+2*w}")
        A(f"v_fmac_f32 v63, v{28+2*w}, v{29+2*w}")
    A("v_cndmask_b32 v52, v60, v62, vcc")
    A("v_cndmask_b32 v53, v61, v63, vcc")
    A("s_mov_b64 exec, 3")
    A(f"buffer_store_dwordx4 v[52:55], v18, {srd(WS_)}, {sSO} offen offset:2048 sc1")
    A("s_mov_b64 exec, -1")
    for w in range(4):
        A(f"s_waitcnt lgkmcnt({2*(3-w)})")
        for e in range(8):
            sc = 20 + 2*w + (8 if e >= 4 else 0)
            if w == 0: A(f"v_mul_f32 v{36+e}, v{sc}, v{CBR+e}")
            else: A(f"v_fmac_f32 v{36+e}, v{sc}, v{CBR+8*w+e}")
    A("v_cvt_pk_bf16_f32 v44, v36, v37")
    A("v_cvt_pk_bf16_f32 v45, v38, v39")
    A("v_cvt_pk_bf16_f32 v48, v40, v41")
    A("v_cvt_pk_bf16_f32 v49, v42, v43")
    A(f"buffer_store_dwordx4 v[44:47], v18, {srd(WS_)}, {sSO} offen sc1")
    A(f"buffer_store_dwordx4 v[48:51], v18, {srd(WS_)}, {sSO} offen offset:1024 sc1")
    stamp(9)
    A("L_fin:")
    if TS:
        stamp(14)
        A(f"v_writelane_b32 v15, s62, 15")
        A(f"s_lshl_b32 {sT0}, {sWG}, 3")
        A(f"s_add_u32 {sT0}, {sT0}, {sWV}")
        A(f"s_lshl_b32 {sSO}, {sT0}, 6")
        A(f"s_add_u32 {sSO}, {sSO}, {WS_TS}")
        A("v_lshlrev_b32 v21, 2, v0")
        A("s_mov_b64 exec, 0xffff")
        A(f"buffer_store_dword v15, v21, {srd(WS_)}, {sSO} offen")
    A("L_end:")
    A("s_endpgm")

    hdr = open("recurrent_scan__gqa_block_cached__dense_activation_relu__decode.s.ref").read().split("; Override launch geometry")[0]
    out = hdr
    out += f"; @launch grid=(256,1,1) block=(512,1,1) lds={LDS_TOTAL}\n"
    out += '.amdgcn_target "amdgcn-amd-amdhsa--gfx950"\n.text\n'
    out += f".globl {NAME}\n.p2align 8\n.type {NAME},@function\n{NAME}:\n"
    out += "\n".join(g.L) + "\n"
    out += f""".section .rodata,"a"
.p2align 6
.amdhsa_kernel {NAME}
  .amdhsa_next_free_vgpr 256
  .amdhsa_next_free_sgpr 102
  .amdhsa_accum_offset 256
  .amdhsa_group_segment_fixed_size 0
  .amdhsa_kernarg_size 88
  .amdhsa_user_sgpr_count 2
  .amdhsa_user_sgpr_kernarg_segment_ptr 1
  .amdhsa_system_sgpr_workgroup_id_x 1
.end_amdhsa_kernel
"""
    return out, LDS_TOTAL

if __name__ == "__main__":
    opts = {}
    outp = "recurrent_scan__gqa_block_cached__dense_activation_relu__decode.s"
    for a in sys.argv[1:]:
        if a.startswith("-o="): outp = a[3:]
        else:
            k, v = a.split("=")
            opts[k] = int(v) if v.lstrip("-").isdigit() else v.replace("_", " ")
    s, lds = build(opts)
    open(outp, "w").write(s)
    print("wrote", outp, "lds", lds)
```

```python
import sys, math, struct

NAME = "recurrent_scan__gqa_block_cached__dense_activation_relu__decode_kernel"
def f2u(f): return struct.unpack("<I", struct.pack("<f", f))[0]

class Gen:
    def __init__(self):
        self.L = []; self.uid = 0
    def A(self, s):
        for line in s.split("\n"):
            t = line.strip()
            self.L.append(t if t.endswith(":") else "  " + t)
    def lab(self, p):
        self.uid += 1
        return f"L_{p}_{self.uid}"

def build(opts):
    TS = opts.get("ts", 0)
    KVF = opts.get("kvflags", "nt")
    KF = opts.get("kflags", KVF); VF = opts.get("vflags", KVF)
    WF = opts.get("wflags", "nt")
    WOF = opts.get("woflags", WF)
    SPIN = opts.get("spin", 200000)
    NPRE = opts.get("npre", 1)
    THRESH = opts.get("thresh", 66)
    g = Gen(); A = g.A

    WO_LDS = 0
    XN_LDS = 114688
    XN_STR = 912
    Q_LDS = XN_LDS + 8*XN_STR
    H_LDS = Q_LDS + 1024
    H_STR = 144
    ST_LDS = H_LDS + 2304
    O_LDS = ST_LDS + 128
    SY_LDS = O_LDS + 256
    CB_LDS = SY_LDS + 128
    H2_LDS = CB_LDS + 16384
    LDS_TOTAL = H2_LDS + 8*XN_STR
    assert LDS_TOTAL <= 163840 and CB_LDS % 16 == 0
    WS_EP = 0
    WS_Q = 0x1000
    WS_FP = 0x40000
    WS_H = 0x80000
    WS_OP = 0x110000
    OP_STR = 2176
    WS_SP = 0x1A0000
    WS_GC = 0x290000
    WS_TS = 0x300000
    WS_SIZE = 0x400000

    CSC = math.log2(math.e) / 16.0
    sWG, sWV, sHKV, sIDX, sB, sSPL = "s2", "s3", "s4", "s5", "s6", "s7"
    K_, V_, X_, WQ_, W1_, W2_, WO_, WS_, OUT_ = 8, 12, 16, 20, 24, 28, 32, 36, 44
    def srd(n): return f"s[{n}:{n+3}]"
    sP, sHS, sFC, sFV, sCS, sSLOT, sC = "s86", "s87", "s88", "s89", "s90", "s91", "s93"
    sTAG = "s[94:95]"; sTAG0, sTAG1 = "s94", "s95"
    sT0, sT1, sT2, sT3 = "s48", "s49", "s50", "s51"
    sSO = "s52"; sSO2 = "s53"; sCNT = "s54"; sNX = "s55"; sARR = "s92"
    sAM = "s[96:97]"
    sKQ = "s98"; sSTR = "s99"
    sMODE = "s100"; sSEQ = "s101"; sLB = "s40"
    NLOC = opts.get("nloc", 48); DLIM = opts.get("dlim", 36)

    def stamp(i):
        if not TS: return
        A(f"s_memrealtime s[60:61]")
        A("s_waitcnt lgkmcnt(0)")
        A(f"v_writelane_b32 v15, s60, {i}")
    def xreduce(v, t, op="v_add_f32"):
        A(f"v_mov_b32 v{t}, v{v}")
        A("s_nop 1")
        A(f"v_permlane16_swap_b32 v{v}, v{t}")
        A("s_nop 1")
        A(f"{op} v{v}, v{v}, v{t}")
        A(f"v_mov_b32 v{t}, v{v}")
        A("s_nop 1")
        A(f"v_permlane32_swap_b32 v{v}, v{t}")
        A("s_nop 1")
        A(f"{op} v{v}, v{v}, v{t}")
    def xreduce2(v0_, v1_, t0, t1, op="v_add_f32"):
        for sw in ["v_permlane16_swap_b32", "v_permlane32_swap_b32"]:
            A(f"v_mov_b32 v{t0}, v{v0_}")
            A(f"v_mov_b32 v{t1}, v{v1_}")
            A("s_nop 0")
            A(f"{sw} v{v0_}, v{t0}")
            A(f"{sw} v{v1_}, v{t1}")
            A("s_nop 0")
            A(f"{op} v{v0_}, v{v0_}, v{t0}")
            A(f"{op} v{v1_}, v{v1_}, v{t1}")
    def allreduce(v, t, op="v_add_f32"):
        for mode in ["quad_perm:[1,0,3,2]", "quad_perm:[2,3,0,1]", "row_half_mirror", "row_mirror"]:
            A("s_nop 1")
            A(f"{op}_dpp v{v}, v{v}, v{v} {mode} row_mask:0xf bank_mask:0xf")
        xreduce(v, t, op)
    def lds_wait_ge(off, val, vt, sleep=2):
        l0 = g.lab("lw"); l1 = g.lab("lwx")
        A(f"v_mov_b32 v{vt}, {SY_LDS+off}")
        A(f"s_mov_b32 {sCNT}, 0")
        A(f"{l0}:")
        A(f"ds_read_b32 v{vt+1}, v{vt}")
        A(f"s_add_u32 {sCNT}, {sCNT}, 1")
        A(f"s_cmp_gt_u32 {sCNT}, {SPIN}")
        A(f"s_cbranch_scc1 {l1}")
        A("s_waitcnt lgkmcnt(0)")
        A(f"v_cmp_le_u32 vcc, {val}, v{vt+1}")
        A(f"s_cbranch_vccnz {l1}")
        if sleep: A(f"s_sleep {sleep}")
        A(f"s_branch {l0}")
        A(f"{l1}:")
        A("s_waitcnt lgkmcnt(0)")
    def lds_set(off, vt):
        A(f"v_mov_b32 v{vt}, {SY_LDS+off}")
        A(f"v_mov_b32 v{vt+1}, 1")
        A("s_waitcnt lgkmcnt(0)")
        A(f"ds_write_b32 v{vt}, v{vt+1}")
    def lds_inc(off, vt, ret=None):
        A(f"v_mov_b32 v{vt}, {SY_LDS+off}")
        A(f"v_mov_b32 v{vt+1}, 1")
        A("s_mov_b64 exec, 1")
        A("s_waitcnt lgkmcnt(0)")
        if ret:
            A(f"ds_add_rtn_u32 v{vt+1}, v{vt}, v{vt+1}")
            A("s_mov_b64 exec, -1")
            A("s_waitcnt lgkmcnt(0)")
            A(f"v_readfirstlane_b32 {ret}, v{vt+1}")
        else:
            A(f"ds_add_u32 v{vt}, v{vt+1}")
            A("s_mov_b64 exec, -1")

    SLOT = {"A": 128, "B": 192}
    def kloads(sl, so):
        for i in range(8):
            d = SLOT[sl] + i*4
            A(f"buffer_load_dwordx4 v[{d}:{d+3}], v1, {srd(K_)}, {so} offen offset:{i*64} {KF}")
    def vloads(sl, so):
        for i in range(8):
            d = SLOT[sl] + 32 + i*4
            A(f"buffer_load_dwordx4 v[{d}:{d+3}], v2, {srd(V_)}, {so} offen offset:{(i//2)*512+(i%2)*256} {VF}")

    A(f"s_cmp_ge_u32 {sWG}, 256")
    A("s_cbranch_scc1 L_end")
    A("s_setprio 3")
    A("s_load_dwordx16 s[64:79], s[0:1], 0")
    A("s_load_dwordx4 s[80:83], s[0:1], 64")
    A("s_load_dwordx2 s[84:85], s[0:1], 80")
    if TS:
        A("v_mov_b32 v15, 0")
        A("s_memrealtime s[62:63]")
    A("v_lshrrev_b32 v1, 6, v0")
    A("v_and_b32 v0, 63, v0")
    A(f"s_and_b32 {sHKV}, {sWG}, 7")
    A(f"v_readfirstlane_b32 {sWV}, v1")
    A(f"s_lshr_b32 {sIDX}, {sWG}, 3")
    A(f"s_and_b32 {sB}, {sIDX}, 7")
    A(f"s_lshr_b32 {sSPL}, {sIDX}, 3")
    A(f"s_lshl_b32 {sP}, {sHKV}, 5")
    A(f"s_add_u32 {sP}, {sP}, {sIDX}")
    A(f"s_lshl_b32 {sSLOT}, {sB}, 3")
    A(f"s_add_u32 {sSLOT}, {sSLOT}, {sHKV}")
    A(f"s_lshl_b32 {sSLOT}, {sSLOT}, 2")
    A(f"s_add_u32 {sSLOT}, {sSLOT}, {sSPL}")
    A(f"s_lshr_b32 {sT2}, {sSLOT}, 2")
    A(f"s_lshl_b32 {sT2}, {sT2}, 21")
    A(f"s_lshl_b32 {sLB}, {sSPL}, 6")
    A("v_and_b32 v7, 15, v0")
    A("v_lshrrev_b32 v8, 4, v0")
    A(f"s_cmp_lt_u32 {sWV}, 4")
    A("s_cbranch_scc0 L_front_s")
    A(f"s_mul_i32 {sT3}, {sWV}, 1792")
    A("v_lshrrev_b32 v9, 5, v0")
    A("v_mul_u32_u24 v9, 896, v9")
    A("v_and_b32 v10, 31, v0")
    A("v_lshl_add_u32 v9, v10, 5, v9")
    A(f"v_add_u32 v9, {sT3}, v9")
    A("v_cmp_gt_u32 vcc, 28, v10")
    A("v_mov_b32 v10, 0x7fffff00")
    A("v_lshrrev_b32 v11, 1, v0")
    A("v_lshlrev_b32 v11, 13, v11")
    A("v_cndmask_b32 v9, v10, v9, vcc")
    A("v_and_b32 v12, 1, v0")
    A("v_lshl_add_u32 v11, v12, 4, v11")
    A(f"s_lshl_b32 {sT0}, {sP}, 5")
    A(f"s_lshl_b32 s56, {sWV}, 20")
    A(f"s_add_u32 s57, s56, {1<<18}\ns_add_u32 s58, s56, {2<<18}\ns_add_u32 s59, s56, {3<<18}")
    A(f"s_mov_b32 s{X_+2}, 7168\ns_mov_b32 s{X_+3}, 0x20000")
    A(f"s_sub_u32 s{WQ_+2}, 3670016, {sT0}\ns_mov_b32 s{WQ_+3}, 0x20000")
    A(f"v_mov_b32 v20, {SY_LDS}\nv_mov_b32 v24, 0\nv_mov_b32 v25, 0\nv_mov_b32 v26, 0\nv_mov_b32 v27, 0\nv_mov_b32 v28, 8\nv_mov_b32 v29, 0\nv_mov_b32 v30, 0\nv_mov_b32 v31, 0")
    A("ds_write_b128 v20, v[24:27]")
    A("ds_write_b128 v20, v[28:31] offset:16")
    for o in (32, 64, 80): A(f"ds_write_b128 v20, v[24:27] offset:{o}")
    A("s_waitcnt lgkmcnt(0)")
    A(f"s_mov_b32 s{X_}, s64\ns_mov_b32 s{X_+1}, s65")
    A(f"s_add_u32 s{WQ_}, s70, {sT0}\ns_addc_u32 s{WQ_+1}, s71, 0")
    A(f"buffer_load_dwordx4 v[16:19], v9, {srd(X_)}, 0 offen")
    A(f"buffer_load_dwordx4 v[20:23], v9, {srd(X_)}, 0 offen offset:16")
    for i in range(4): A(f"buffer_load_dwordx4 v[{64+4*i}:{67+4*i}], v11, {srd(WQ_)}, s{56+i} offen {WF}")
    A(f"s_load_dwordx2 {sTAG}, s[84:85], {WS_EP}")
    A("s_barrier")
    A("s_branch L_front_h")
    A("L_front_s:")
    A("v_lshlrev_b32 v1, 9, v7")
    A("v_lshl_add_u32 v1, v8, 4, v1")
    A("v_lshlrev_b32 v2, 11, v8")
    A("v_lshl_add_u32 v2, v7, 4, v2")
    A(f"s_mov_b32 s{K_+2}, 0x200000\ns_mov_b32 s{K_+3}, 0x20000")
    A(f"s_mov_b32 s{V_+2}, 0x200000\ns_mov_b32 s{V_+3}, 0x20000")
    A(f"s_and_b32 {sT3}, {sWV}, 3")
    A(f"s_add_u32 {sT3}, {sT3}, {sLB}")
    A(f"s_lshl_b32 {sT3}, {sT3}, 13")
    A("s_setprio 1")
    A("s_waitcnt lgkmcnt(0)")
    A(f"s_add_u32 s{K_}, s66, {sT2}\ns_addc_u32 s{K_+1}, s67, 0")
    A(f"s_add_u32 s{V_}, s68, {sT2}\ns_addc_u32 s{V_+1}, s69, 0")
    kloads("A", sT3)
    A(f"s_load_dwordx2 {sTAG}, s[84:85], {WS_EP}")
    A(f"s_mov_b32 s{WS_}, s84\ns_mov_b32 s{WS_+1}, s85\ns_mov_b32 s{WS_+2}, {WS_SIZE}\ns_mov_b32 s{WS_+3}, 0x20000")
    A("s_barrier")
    A("s_branch L_stream")
    A("L_front_h:")
    A(f"s_lshr_b32 {sHS}, {sSLOT}, 2")
    A(f"s_and_b32 {sT0}, {sHS}, 3")
    A(f"s_cmp_eq_u32 {sT0}, {sSPL}")
    A(f"s_cselect_b32 {sFV}, 1, 0")
    A(f"s_cmp_lt_u32 {sHS}, {0 if opts.get('noffn') else 56}")
    A(f"s_cselect_b32 {sFV}, {sFV}, 0")
    A(f"s_cmp_ge_u32 {sHS}, 28")
    A(f"s_cselect_b32 {sT0}, 1, 0")
    A(f"s_lshl_b32 {sFV}, {sFV}, {sT0}")
    A(f"s_sub_u32 {sT1}, {sHS}, 28")
    A(f"s_and_b32 {sT1}, {sT1}, 31")
    A(f"s_mul_i32 {sT0}, {sT1}, 37")
    A(f"s_lshr_b32 {sKQ}, {sT0}, 8")
    A(f"s_mul_i32 {sT0}, {sKQ}, 7")
    A(f"s_sub_u32 {sFC}, {sT1}, {sT0}")
    A(f"s_lshl_b32 {sCS}, {sHKV}, 2")
    A(f"s_add_u32 {sCS}, {sCS}, {sSPL}")
    A(f"s_mov_b32 {sC}, 0x{f2u(CSC):08x}")
    A(f"s_lshl_b32 {sT0}, {sHS}, 7")
    A(f"s_mul_i32 {sT1}, {sKQ}, 401408")
    A(f"s_lshl_b32 s{W2_}, {sFC}, 7")
    A(f"s_add_u32 {sT1}, {sT1}, s{W2_}")
    A(f"s_cmp_eq_u32 {sFV}, 2")
    A(f"s_cselect_b32 {sT0}, {sT1}, {sT0}")
    A(f"s_cselect_b32 s{W2_}, s78, s76")
    A(f"s_cselect_b32 s{W2_+1}, s79, s77")
    A(f"s_movk_i32 {sSTR}, 3584")
    A(f"s_cselect_b32 {sSTR}, 896, {sSTR}")
    A(f"s_add_u32 s{W1_}, s{W2_}, {sT0}\ns_addc_u32 s{W1_+1}, s{W2_+1}, 0\ns_sub_u32 {sT1}, 1605632, {sT0}")
    A(f"s_cmp_eq_u32 {sFV}, 0\ns_cselect_b32 s{W1_+2}, 0, {sT1}\ns_mov_b32 s{W1_+3}, 0x20000")
    A(f"s_mul_i32 {sT0}, {sHKV}, 458752\ns_mul_i32 {sT1}, {sSPL}, 57344\ns_add_u32 {sT0}, {sT0}, {sT1}")
    A(f"s_add_u32 s{WO_}, s72, {sT0}\ns_addc_u32 s{WO_+1}, s73, 0\ns_sub_u32 s{WO_+2}, {0 if opts.get('nowo') else 3670016}, {0 if opts.get('nowo') else sT0}\ns_mov_b32 s{WO_+3}, 0x20000")
    A(f"s_mov_b32 s{WS_}, s84\ns_mov_b32 s{WS_+1}, s85\ns_mov_b32 s{WS_+2}, {WS_SIZE}\ns_mov_b32 s{WS_+3}, 0x20000")
    A(f"s_mov_b32 s{OUT_}, s80\ns_mov_b32 s{OUT_+1}, s81\ns_mov_b32 s{OUT_+2}, 7168\ns_mov_b32 s{OUT_+3}, 0x20000")
    A(f"s_waitcnt vmcnt(4)")
    stamp(0)
    for i in range(8):
        A(f"v_lshlrev_b32 v{24+2*i}, 16, v{16+i}")
        A(f"v_and_b32 v{25+2*i}, 0xffff0000, v{16+i}")
    for i in range(8): A(f"v_add_f32 v{40+i}, v{24+2*i}, v{25+2*i}")
    for i in range(4): A(f"v_add_f32 v{40+i}, v{40+i}, v{44+i}")
    A("v_add_f32 v40, v40, v42\nv_add_f32 v41, v41, v43\nv_add_f32 v40, v40, v41")
    def halfreduce(v, t, op="v_add_f32"):
        for mode in ["quad_perm:[1,0,3,2]", "quad_perm:[2,3,0,1]", "row_half_mirror", "row_mirror"]:
            A("s_nop 1")
            A(f"{op}_dpp v{v}, v{v}, v{v} {mode} row_mask:0xf bank_mask:0xf")
        A(f"v_mov_b32 v{t}, v{v}")
        A("s_nop 1")
        A(f"v_permlane16_swap_b32 v{v}, v{t}")
        A("s_nop 1")
        A(f"{op} v{v}, v{v}, v{t}")
    halfreduce(40, 41)
    A(f"v_mul_f32 v40, 0x{f2u(1.0/448):08x}, v40")
    for i in range(16): A(f"v_sub_f32 v{44+i}, v{24+i}, v40")
    A("v_mul_f32 v42, v44, v44")
    A("v_mul_f32 v43, v45, v45")
    for i in range(2, 16): A(f"v_fmac_f32 v{42+(i&1)}, v{44+i}, v{44+i}")
    A("s_mov_b32 s56, 0x0fffffff\ns_mov_b32 s57, 0x0fffffff")
    A("v_add_f32 v42, v42, v43")
    A("v_cndmask_b32 v42, 0, v42, s[56:57]")
    halfreduce(42, 41)
    A(f"v_mul_f32 v42, 0x{f2u(1.0/448):08x}, v42")
    A("v_cvt_pk_bf16_f32 v41, v40, v42")
    A("v_lshlrev_b32 v40, 16, v41")
    A("v_and_b32 v42, 0xffff0000, v41")
    A(f"v_add_f32 v42, 0x{f2u(1e-5):08x}, v42")
    A("v_cvt_pk_bf16_f32 v42, v42, v42")
    A("v_lshlrev_b32 v42, 16, v42")
    A("v_sqrt_f32 v42, v42")
    A("s_nop 0")
    A("v_cvt_pk_bf16_f32 v42, v42, v42")
    A("v_lshlrev_b32 v42, 16, v42")
    A("v_rcp_f32 v42, v42")
    for i in range(16): A(f"v_sub_f32 v{44+i}, v{24+i}, v40")
    for i in range(8): A(f"v_cvt_pk_bf16_f32 v{16+i}, v{44+2*i}, v{45+2*i}")
    for i in range(8):
        A(f"v_lshlrev_b32 v{44+2*i}, 16, v{16+i}")
        A(f"v_and_b32 v{45+2*i}, 0xffff0000, v{16+i}")
    for i in range(16): A(f"v_mul_f32 v{44+i}, v{44+i}, v42")
    for i in range(8): A(f"v_cvt_pk_bf16_f32 v{16+i}, v{44+2*i}, v{45+2*i}")
    A(f"s_mul_i32 {sT0}, {sWV}, {2*XN_STR}")
    A(f"s_add_u32 {sT0}, {sT0}, {XN_LDS}")
    A("v_lshrrev_b32 v9, 5, v0")
    A(f"v_mul_u32_u24 v9, {XN_STR}, v9")
    A("v_and_b32 v10, 31, v0")
    A("v_lshl_add_u32 v9, v10, 5, v9")
    A(f"v_add_u32 v9, {sT0}, v9")
    A("s_mov_b64 exec, s[56:57]")
    A("ds_write_b128 v9, v[16:19]")
    A("ds_write_b128 v9, v[20:23] offset:16")
    A("s_mov_b64 exec, -1")
    A("v_and_b32 v9, 7, v0")
    A(f"v_mul_u32_u24 v9, {XN_STR}, v9")
    A("v_lshl_add_u32 v9, v8, 4, v9")
    A(f"v_add_u32 v9, {XN_LDS}, v9")
    A("v_lshrrev_b32 v10, 2, v7")
    A("v_lshl_add_u32 v10, v8, 3, v10")
    A("v_and_b32 v12, 3, v7")
    A("v_lshlrev_b32 v12, 3, v12")
    A("v_lshl_add_u32 v11, v10, 7, v12")
    A(f"v_add_u32 v11, {CB_LDS}, v11")
    A("v_lshl_add_u32 v14, v10, 5, v12")
    A(f"v_add_u32 v14, {CB_LDS}, v14")
    A("v_mul_u32_u24 v10, 896, v10")
    A("v_add_u32 v10, v10, v12")
    A(f"s_lshl_b32 {sT0}, {sWV}, 12")
    A(f"s_add_u32 {sT0}, {sT0}, {CB_LDS}")
    A("v_lshlrev_b32 v13, 4, v0")
    A(f"v_add_u32 v13, {sT0}, v13")
    A(f"s_waitcnt vmcnt(0)")
    for i in range(4): A(f"ds_write_b128 v13, v[{64+4*i}:{67+4*i}] offset:{i*1024}")
    lds_inc(28, 12)
    A(f"s_add_u32 {sTAG0}, {sTAG0}, 1")
    stamp(1)
    A(f"s_cmp_eq_u32 {sWV}, 0")
    A("s_cbranch_scc1 L_svc")
    A("s_setprio 2")
    A(f"s_cmp_eq_u32 {sWV}, 1")
    A(f"s_cbranch_scc0 L_wostage")
    A(f"s_cmp_eq_u32 {sFV}, 0")
    A("s_cbranch_scc1 L_ffn_done")
    A("v_lshrrev_b32 v14, 3, v0")
    A("v_and_b32 v13, 7, v0")
    A("v_lshlrev_b32 v13, 4, v13")
    A(f"v_mul_u32_u24 v12, {sSTR}, v14")
    A("v_add_u32 v12, v12, v13")
    A("v_lshlrev_b32 v14, 4, v0")
    A(f"v_add_u32 v14, {CB_LDS}, v14")
    A(f"s_lshl_b32 {sSTR}, {sSTR}, 3")
    def wburst(lo, hi):
        for i in range(lo, hi):
            A(f"s_mul_i32 s{64+i-lo}, {sSTR}, {i}")
        for i in range(lo, hi):
            d = 96 + (i % 40)*4
            A(f"buffer_load_dwordx4 v[{d}:{d+3}], v12, {srd(W1_)}, s{64+i-lo} offen {WF}")
    wburst(0, 20); wburst(20, 40)
    stamp(2)
    A(f"s_cmp_eq_u32 {sFV}, 2")
    A("s_cbranch_scc0 L_ffn_act_ok")
    if opts.get("h2wait", 22): lds_wait_ge(16, opts.get("h2wait", 22), 72, sleep=16)
    A(f"s_mul_i32 {sT0}, {sKQ}, 1792")
    A(f"s_add_u32 {sT0}, {sT0}, {WS_H}")
    for b_ in range(8): A(f"s_add_u32 s{64+b_}, {sT0}, {b_*7168}")
    A("v_lshlrev_b32 v13, 4, v0")
    A(f"s_mov_b32 {sCNT}, 0")
    A("s_mov_b32 exec_hi, 0x00ffffff")
    A("L_hpoll:")
    for b_ in range(8):
        for hf in range(2):
            d = 16 + (b_*2+hf)*4
            A(f"buffer_load_dwordx4 v[{d}:{d+3}], v13, {srd(WS_)}, s{64+b_} offen offset:{hf*896} sc1")
    A(f"s_add_u32 {sCNT}, {sCNT}, 1")
    A(f"s_cmp_gt_u32 {sCNT}, {SPIN}")
    A("s_cbranch_scc1 L_hpoll_x")
    A("s_waitcnt vmcnt(0)")
    for i in range(16):
        d = 16 + i*4
        if i == 0: A(f"v_cmp_ne_u64 s[56:57], {sTAG}, v[{d+2}:{d+3}]")
        else:
            A(f"v_cmp_ne_u64 vcc, {sTAG}, v[{d+2}:{d+3}]")
            A("s_or_b64 s[56:57], s[56:57], vcc")
    A("s_and_b64 exec, exec, s[56:57]")
    A("s_cbranch_execz L_hpoll_x")
    A("s_sleep 16")
    A("s_branch L_hpoll")
    A("L_hpoll_x:")
    A("s_mov_b32 exec_lo, -1\ns_mov_b32 exec_hi, 0x00ffffff")
    A("s_waitcnt vmcnt(0)")
    A("v_lshlrev_b32 v13, 3, v0")
    A(f"v_add_u32 v13, {H2_LDS}, v13")
    for b_ in range(8):
        for hf in range(2):
            d = 16 + (b_*2+hf)*4
            A(f"ds_write_b64 v13, v[{d}:{d+1}] offset:{b_*XN_STR + hf*448}")
        if b_ % 4 == 3: A("s_waitcnt lgkmcnt(0)")
    A("s_mov_b64 exec, -1")
    A(f"v_add_u32 v9, {H2_LDS - XN_LDS}, v9")
    A("L_ffn_act_ok:")
    lds_wait_ge(4, 1, 72)
    def ffn_issue(t, tl):
        b = 32 + (t % 2)*20
        A(f"ds_read_b128 v[{b}:{b+3}], v9 offset:{t*64}")
        for ct in range(4):
            A(f"ds_read_b64_tr_b16 v[{b+4+ct*4}:{b+5+ct*4}], v11 offset:{tl*4096+ct*32}")
            A(f"ds_read_b64_tr_b16 v[{b+6+ct*4}:{b+7+ct*4}], v11 offset:{tl*4096+ct*32+512}")
    issued = 40
    for (lo, hi) in [(0,16),(16,32),(32,48),(48,56)]:
        A(f"s_waitcnt vmcnt({issued - hi})")
        for i in range(lo, hi):
            d = 96 + (i % 40)*4
            A(f"ds_write_b128 v14, v[{d}:{d+3}] offset:{(i-lo)*1024}")
            if (i-lo) % 8 == 7: A("s_waitcnt lgkmcnt(4)")
        A("s_waitcnt lgkmcnt(0)")
        nxt = min(56, hi + 40)
        if nxt > issued:
            wburst(issued, nxt); issued = nxt
        t0 = lo // 4; nt = (hi-lo)//4
        ffn_issue(t0, 0)
        for tl in range(nt):
            t = t0 + tl
            if tl+1 < nt:
                A("s_waitcnt lgkmcnt(4)")
                ffn_issue(t+1, tl+1)
                A("s_waitcnt lgkmcnt(9)")
            else:
                A("s_waitcnt lgkmcnt(0)")
            b = 32 + (t % 2)*20
            for ct in range(4):
                c = "0" if t == 0 else f"v[{16+ct*4}:{19+ct*4}]"
                A(f"v_mfma_f32_16x16x32_bf16 v[{16+ct*4}:{19+ct*4}], v[{b+4+ct*4}:{b+7+ct*4}], v[{b}:{b+3}], {c}")
    stamp(3)
    A(f"v_mov_b32 v92, {sTAG0}\nv_mov_b32 v93, {sTAG1}")
    A("v_and_b32 v12, 7, v0")
    A("v_bfe_u32 v13, v0, 3, 1")
    A("s_mov_b32 s58, 0xff00ff00\ns_mov_b32 s59, 0xff00ff00")
    A(f"s_cmp_eq_u32 {sFV}, 2")
    A("s_cbranch_scc1 L_ffn_out2")
    A("v_mul_u32_u24 v12, 7168, v12")
    A("v_lshl_add_u32 v12, v8, 4, v12")
    A("v_lshl_add_u32 v12, v13, 6, v12")
    A(f"s_lshl_b32 {sSO}, {sHS}, 8")
    A(f"s_add_u32 {sSO}, {sSO}, {WS_H}")
    for ct in range(4):
        for r in range(4): A(f"v_max_f32 v{16+ct*4+r}, 0, v{16+ct*4+r}")
        A(f"v_cvt_pk_bf16_f32 v{16+ct*4}, v{16+ct*4}, v{17+ct*4}")
        A(f"v_cvt_pk_bf16_f32 v{17+ct*4}, v{18+ct*4}, v{19+ct*4}")
    for cp in range(2):
        o = 96 + 4*cp
        A(f"v_cndmask_b32 v{o}, v{16+cp*8}, v{20+cp*8}, s[58:59]")
        A(f"v_cndmask_b32 v{o+1}, v{17+cp*8}, v{21+cp*8}, s[58:59]")
        A(f"v_mov_b32 v{o+2}, v92\nv_mov_b32 v{o+3}, v93")
    for cp in range(2):
        o = 96 + 4*cp
        A(f"buffer_store_dwordx4 v[{o}:{o+3}], v12, {srd(WS_)}, {sSO} offen offset:{cp*128} sc1")
    A("s_branch L_ffn_done")
    A("L_ffn_out2:")
    A("v_mul_u32_u24 v12, 3584, v12")
    A("v_lshl_add_u32 v12, v8, 5, v12")
    A("v_lshl_add_u32 v12, v13, 4, v12")
    A(f"s_mul_i32 {sSO}, {sKQ}, {8*3584}")
    A(f"s_lshl_b32 {sT0}, {sFC}, 9")
    A(f"s_add_u32 {sSO}, {sSO}, {sT0}")
    A(f"s_add_u32 {sSO}, {sSO}, {WS_FP}")
    for ct in range(4):
        d = 16 + 4*ct; o = 96 + 4*ct
        A(f"v_cndmask_b32 v{o}, v92, v{d+2}, s[58:59]")
        A(f"v_cndmask_b32 v{o+1}, v93, v{d+3}, s[58:59]")
        A(f"v_cndmask_b32 v{o+2}, v{d}, v92, s[58:59]")
        A(f"v_cndmask_b32 v{o+3}, v{d+1}, v93, s[58:59]")
    for ct in range(4):
        o = 96 + 4*ct
        A(f"buffer_store_dwordx4 v[{o}:{o+3}], v12, {srd(WS_)}, {sSO} offen offset:{ct*128} sc1")
    A("L_ffn_done:")
    lds_set(24, 12)
    stamp(4)
    A("s_branch L_helper_end")

    A("L_svc:")
    lds_wait_ge(28, 4, 12, sleep=0)
    def q_issue(t):
        b = 24 + (t % 5)*8
        A(f"ds_read_b128 v[{b}:{b+3}], v9 offset:{t*64}")
        A(f"ds_read_b64_tr_b16 v[{b+4}:{b+5}], v14 offset:{t*1024}")
        A(f"ds_read_b64_tr_b16 v[{b+6}:{b+7}], v14 offset:{t*1024+128}")
    for t in range(4): q_issue(t)
    for t in range(14):
        rem = min(13, t+3) - t
        A(f"s_waitcnt lgkmcnt({rem*3})")
        b = 24 + (t % 5)*8
        c = "0" if t == 0 else "v[16:19]"
        A(f"v_mfma_f32_16x16x32_bf16 v[16:19], v[{b+4}:{b+7}], v[{b}:{b+3}], {c}")
        if t+4 < 14: q_issue(t+4)
    A("v_lshlrev_b32 v12, 14, v7")
    A("v_lshl_add_u32 v12, v8, 4, v12")
    A(f"s_lshl_b32 {sSO}, {sP}, 6")
    A(f"s_add_u32 {sSO}, {sSO}, {WS_Q}")
    A("s_nop 3")
    A("v_cvt_pk_bf16_f32 v16, v16, v17")
    A("v_cvt_pk_bf16_f32 v17, v18, v19")
    A(f"v_mov_b32 v18, {sTAG0}\nv_mov_b32 v19, {sTAG1}")
    A("s_mov_b32 exec_lo, 0x00ff00ff\ns_mov_b32 exec_hi, 0x00ff00ff")
    A(f"buffer_store_dwordx4 v[16:19], v12, {srd(WS_)}, {sSO} offen sc1")
    A("s_mov_b64 exec, -1")
    lds_set(4, 20)
    stamp(2)
    A(f"s_lshl_b32 {sSO}, {sB}, 14")
    A(f"s_lshl_b32 {sT0}, {sHKV}, 11")
    A(f"s_add_u32 {sSO}, {sSO}, {sT0}")
    A(f"s_add_u32 {sSO}, {sSO}, {WS_Q}")
    A("v_lshlrev_b32 v12, 4, v0")
    A(f"s_mov_b32 {sCNT}, 0")
    A("L_qpoll:")
    A(f"buffer_load_dwordx4 v[24:27], v12, {srd(WS_)}, {sSO} offen sc1")
    A(f"buffer_load_dwordx4 v[28:31], v12, {srd(WS_)}, {sSO} offen offset:1024 sc1")
    A(f"s_add_u32 {sCNT}, {sCNT}, 1")
    A(f"s_cmp_gt_u32 {sCNT}, {SPIN}")
    A("s_cbranch_scc1 L_qpoll_x")
    A("s_waitcnt vmcnt(0)")
    A(f"v_cmp_ne_u64 vcc, {sTAG}, v[26:27]")
    A(f"v_cmp_ne_u64 s[56:57], {sTAG}, v[30:31]")
    A("s_or_b64 vcc, vcc, s[56:57]")
    A("s_and_b64 exec, exec, vcc")
    A("s_cbranch_execnz L_qpoll")
    A("L_qpoll_x:")
    A("s_mov_b64 exec, -1")
    A("s_waitcnt vmcnt(0)")
    stamp(4)
    A("v_lshlrev_b32 v12, 3, v0")
    A(f"v_add_u32 v12, {Q_LDS}, v12")
    A("ds_write_b64 v12, v[24:25]")
    A("ds_write_b64 v12, v[28:29] offset:512")
    lds_set(0, 12)
    A("s_branch L_helper_end")

    A("L_wostage:")
    A(f"s_cmp_eq_u32 {sWV}, 2")
    A("s_cbranch_scc0 L_nogc")
    A(f"s_cmp_eq_u32 {sSPL}, 0")
    A("s_cbranch_scc0 L_nogc")
    A(f"v_mov_b32 v16, 0\nv_mov_b32 v17, 0\nv_mov_b32 v18, {sTAG0}\nv_mov_b32 v19, {sTAG1}")
    A(f"s_lshl_b32 {sSO}, {sHS}, 7")
    A(f"s_add_u32 {sSO}, {sSO}, {WS_GC}")
    A("s_mov_b64 exec, 1")
    A(f"buffer_store_dwordx4 v[16:19], v16, {srd(WS_)}, {sSO} offen sc1")
    A("s_mov_b64 exec, -1")
    A("L_nogc:")
    A(f"s_sub_u32 {sT0}, {sWV}, 2")
    A(f"s_mul_i32 {sT1}, {sT0}, 57344")
    A(f"s_mul_i32 {sT0}, {sT0}, 229376")
    A("v_lshlrev_b32 v12, 4, v0")
    A(f"v_add_u32 v13, {sT1}, v12")
    for i in range(14): A(f"s_add_u32 s{64+i}, {sT0}, {i*4096}")
    for i in range(56):
        d = 32 + i*4
        A(f"buffer_load_dwordx4 v[{d}:{d+3}], v12, {srd(WO_)}, s{64+i//4} offen offset:{(i%4)*1024} {WOF}")
        if i % opts.get("woburst", 14) == opts.get("woburst", 14)-1: A("s_nop 0")
    stamp(2)
    for c in range(7):
        A(f"s_waitcnt vmcnt({48-8*c})")
        for i in range(8*c, 8*c+8):
            d = 32 + i*4
            A(f"ds_write_b128 v13, v[{d}:{d+3}] offset:{WO_LDS + i*1024}")
        A("s_waitcnt lgkmcnt(4)")
    lds_inc(20, 12)
    stamp(4)

    A("L_helper_end:")
    lds_wait_ge(20, 2, 12, sleep=8)
    A(f"s_mul_i32 {sT0}, {sWV}, 224")
    A(f"v_add_u32 v12, {sT0}, v10")
    A(f"v_add_u32 v13, 57344, v12")
    for tl in range(7):
        for t in range(4):
            b = 128 + (tl*4+t)*4
            va = 12 if t < 2 else 13
            off = WO_LDS + (t % 2)*32*896 + tl*32
            A(f"ds_read_b64_tr_b16 v[{b}:{b+1}], v{va} offset:{off}")
            A(f"ds_read_b64_tr_b16 v[{b+2}:{b+3}], v{va} offset:{off+4*896}")
        A("s_waitcnt lgkmcnt(4)")
    stamp(5)
    if opts.get("hprio") is not None: A(f"s_setprio {opts['hprio']}")
    if opts.get("stop") == 1: A("s_branch L_fin")
    if opts.get("stop") == 2:
        lds_wait_ge(16, THRESH, 12, sleep=8)
        lds_wait_ge(8, 4, 12, sleep=2)
        A("s_branch L_fin")
    A(f"s_lshl_b32 {sT0}, {sWV}, 2")
    A(f"s_add_u32 {sT0}, {sT0}, {SY_LDS+32}")
    A(f"v_mov_b32 v16, {sT0}")
    A(f"s_lshl_b32 {sT0}, {sWV}, 3")
    A(f"s_add_u32 {sT0}, {sT0}, {SY_LDS+64}")
    A(f"v_mov_b32 v17, {sT0}")
    A(f"v_mov_b32 v18, {SY_LDS+16}")
    A("v_mov_b32 v19, 0")
    A(f"s_lshl_b32 {sSO}, {sHS}, 7")
    A(f"s_add_u32 {sSO}, {sSO}, {WS_GC}")
    A(f"s_mov_b32 {sSEQ}, 0")
    A(f"s_mov_b32 {sMODE}, 0")
    A("s_mov_b64 exec, 1")
    A("L_serve:")
    A(f"s_add_u32 {sSEQ}, {sSEQ}, 1")
    A(f"s_mov_b32 {sCNT}, 0")
    A("L_serve_w:")
    A("ds_read_b32 v20, v16")
    A(f"s_add_u32 {sCNT}, {sCNT}, 1")
    A(f"s_cmp_gt_u32 {sCNT}, {SPIN}")
    A("s_cbranch_scc1 L_serve_x")
    A("s_waitcnt lgkmcnt(0)")
    A(f"v_cmp_le_u32 vcc, {sSEQ}, v20")
    A("s_cbranch_vccnz L_serve_go")
    A(f"s_sleep {opts.get('svsleep', 2)}")
    A("s_branch L_serve_w")
    A("L_serve_go:")
    A("v_mov_b32 v21, 1")
    A(f"s_cmp_eq_u32 {sMODE}, 0")
    A("s_cbranch_scc0 L_serve_g2")
    A("ds_add_rtn_u32 v21, v18, v21")
    A("s_waitcnt lgkmcnt(0)")
    A(f"v_readfirstlane_b32 {sT0}, v21")
    A(f"s_add_u32 {sT1}, {sT0}, {sLB}")
    A(f"s_cmp_lt_u32 {sT0}, {NLOC}")
    A("s_cbranch_scc1 L_serve_resp")
    A(f"s_mov_b32 {sCNT}, 0")
    A("L_serve_gt:")
    A(f"buffer_load_dwordx4 v[24:27], v19, {srd(WS_)}, {sSO} offen sc1")
    A(f"s_add_u32 {sCNT}, {sCNT}, 1")
    A(f"s_cmp_gt_u32 {sCNT}, {SPIN}")
    A("s_cbranch_scc1 L_serve_g1")
    A("s_waitcnt vmcnt(0)")
    A(f"v_cmp_ne_u64 vcc, {sTAG}, v[26:27]")
    A("s_cbranch_vccnz L_serve_gt")
    A("L_serve_g1:")
    A(f"s_mov_b32 {sMODE}, 1")
    A("v_mov_b32 v21, 1")
    A("L_serve_g2:")
    A(f"buffer_atomic_add v21, v19, {srd(WS_)}, {sSO} offen sc0 sc1")
    A("s_waitcnt vmcnt(0)")
    A(f"v_readfirstlane_b32 {sT0}, v21")
    A(f"s_and_b32 {sT1}, {sT0}, 3")
    A(f"s_lshl_b32 {sT1}, {sT1}, 6")
    A(f"s_lshr_b32 {sT2}, {sT0}, 2")
    A(f"s_add_u32 {sT1}, {sT1}, {sT2}")
    A(f"s_add_u32 {sT1}, {sT1}, {NLOC}")
    A(f"s_cmp_lt_u32 {sT0}, {4*(64-NLOC)}")
    A(f"s_cselect_b32 {sT1}, {sT1}, 0xffff")
    A("L_serve_resp:")
    A(f"v_mov_b32 v22, {sSEQ}")
    A(f"v_mov_b32 v23, {sT1}")
    A("ds_write_b64 v17, v[22:23]")
    A(f"s_cmp_lt_u32 {sT1}, 256")
    A("s_cbranch_scc1 L_serve")
    A("L_serve_x:")
    A("s_mov_b64 exec, -1")
    A("s_waitcnt lgkmcnt(0)")
    stamp(7)
    def gather(prefix, nload, last_half, base_s, pstride, vb, sleep):
        A("v_lshrrev_b32 v20, 3, v0")
        A(f"v_mul_u32_u24 v20, {pstride}, v20")
        A("v_and_b32 v21, 7, v0")
        A("v_lshl_add_u32 v20, v21, 4, v20")
        for i in range(1, 4): A(f"v_add_u32 v{20+i}, {i*8*pstride}, v20")
        if last_half:
            A("v_cmp_gt_u32 vcc, 32, v0")
            A("s_nop 1")
            A("v_cndmask_b32 v23, v22, v23, vcc")
        A(f"s_mov_b32 {sCNT}, 0")
        A("s_mov_b32 s58, 0xaaaaaaaa\ns_mov_b32 s59, 0xaaaaaaaa")
        A(f"L_{prefix}poll:")
        for i in range(3): A(f"buffer_load_dwordx4 v[{vb+4*i}:{vb+3+4*i}], v{20+i}, {srd(WS_)}, {base_s} offen sc1")
        A(f"buffer_load_dwordx4 v[{vb+12}:{vb+15}], v23, {srd(WS_)}, {base_s} offen sc1")
        A(f"s_add_u32 {sCNT}, {sCNT}, 1")
        A(f"s_cmp_gt_u32 {sCNT}, {SPIN}")
        A(f"s_cbranch_scc1 L_{prefix}poll_x")
        for i in range(4):
            b = vb+4*i
            A(f"s_waitcnt vmcnt({3-i})")
            A(f"v_cndmask_b32 v40, v{b}, v{b+2}, s[58:59]")
            A(f"v_cndmask_b32 v41, v{b+1}, v{b+3}, s[58:59]")
            if i == 0: A(f"v_cmp_ne_u64 s[56:57], {sTAG}, v[40:41]")
            else:
                A(f"v_cmp_ne_u64 vcc, {sTAG}, v[40:41]")
                A("s_or_b64 s[56:57], s[56:57], vcc")
        A("s_and_b64 exec, exec, s[56:57]")
        A(f"s_cbranch_execz L_{prefix}poll_x")
        if sleep: A(f"s_sleep {sleep}")
        A(f"s_branch L_{prefix}poll")
        A(f"L_{prefix}poll_x:")
        A("s_mov_b64 exec, -1")
        A("s_waitcnt vmcnt(0)")
        for i in range(4):
            b = vb+4*i
            A(f"v_cndmask_b32 v{40+2*i}, v{b+2}, v{b}, s[58:59]")
            A(f"v_cndmask_b32 v{41+2*i}, v{b+3}, v{b+1}, s[58:59]")
        if last_half: A("v_cmp_gt_u32 vcc, 32, v0")
        A("v_add_f32 v40, v40, v42\nv_add_f32 v41, v41, v43")
        if last_half: A("v_cndmask_b32 v46, 0, v46, vcc\nv_cndmask_b32 v47, 0, v47, vcc")
        A("v_add_f32 v44, v44, v46\nv_add_f32 v45, v45, v47")
        A("v_add_f32 v40, v40, v44\nv_add_f32 v41, v41, v45")
        A("s_nop 1")
        A("v_add_f32_dpp v40, v40, v40 row_ror:8 row_mask:0xf bank_mask:0xf")
        A("v_add_f32_dpp v41, v41, v41 row_ror:8 row_mask:0xf bank_mask:0xf")
        xreduce2(40, 41, 42, 43)
    A(f"s_cmp_eq_u32 {sWV}, 3")
    A("s_cbranch_scc0 L_nofg")
    A(f"s_cmp_lt_u32 {sHKV}, 7")
    A("s_cbranch_scc0 L_nofg")
    A(f"s_mul_i32 {sSO2}, {sB}, 896")
    A(f"s_lshl_b32 {sT0}, {sCS}, 5")
    A(f"s_add_u32 {sSO2}, {sSO2}, {sT0}")
    A("v_and_b32 v14, 7, v0")
    A("v_lshlrev_b32 v14, 2, v14")
    A(f"buffer_load_dword v19, v14, {srd(X_)}, {sSO2} offen")
    A(f"s_mul_i32 {sSO}, {sB}, 3584")
    A(f"s_lshl_b32 {sT0}, {sCS}, 7")
    A(f"s_add_u32 {sSO}, {sSO}, {sT0}")
    A(f"s_add_u32 {sSO}, {sSO}, {WS_FP}")
    A("v_bfe_u32 v20, v0, 3, 2")
    A(f"v_mul_u32_u24 v20, {8*3584}, v20")
    A("v_and_b32 v21, 7, v0")
    A("v_lshl_add_u32 v20, v21, 4, v20")
    A(f"s_mov_b32 {sCNT}, 0")
    A("s_mov_b32 s58, 0xaaaaaaaa\ns_mov_b32 s59, 0xaaaaaaaa")
    A("L_fpoll:")
    A(f"buffer_load_dwordx4 v[24:27], v20, {srd(WS_)}, {sSO} offen sc1")
    A(f"s_add_u32 {sCNT}, {sCNT}, 1")
    A(f"s_cmp_gt_u32 {sCNT}, {SPIN}")
    A("s_cbranch_scc1 L_fpoll_x")
    A("s_waitcnt vmcnt(0)")
    A("v_cndmask_b32 v40, v24, v26, s[58:59]")
    A("v_cndmask_b32 v41, v25, v27, s[58:59]")
    A(f"v_cmp_ne_u64 vcc, {sTAG}, v[40:41]")
    A("s_cbranch_vccz L_fpoll_x")
    A("s_sleep 8")
    A("s_branch L_fpoll")
    A("L_fpoll_x:")
    A("s_waitcnt vmcnt(0)")
    A("v_cndmask_b32 v40, v26, v24, s[58:59]")
    A("v_cndmask_b32 v41, v27, v25, s[58:59]")
    A("s_nop 1")
    A("v_add_f32_dpp v40, v40, v40 row_ror:8 row_mask:0xf bank_mask:0xf")
    A("v_add_f32_dpp v41, v41, v41 row_ror:8 row_mask:0xf bank_mask:0xf")
    A("v_mov_b32 v42, v40\nv_mov_b32 v43, v41")
    A("s_nop 0")
    A("v_permlane16_swap_b32 v40, v42")
    A("v_permlane16_swap_b32 v41, v43")
    A("s_nop 0")
    A("v_add_f32 v40, v40, v42\nv_add_f32 v41, v41, v43")
    A("v_cvt_pk_bf16_f32 v42, v40, v41")
    A("v_lshlrev_b32 v40, 16, v42\nv_and_b32 v41, 0xffff0000, v42")
    for r in range(2): A(f"v_mul_f32 v{42+r}, 0x{f2u(-math.log2(math.e)):08x}, v{40+r}")
    for r in range(2): A(f"v_exp_f32 v{42+r}, v{42+r}")
    A("s_nop 0")
    for r in range(2): A(f"v_add_f32 v{42+r}, 1.0, v{42+r}")
    for r in range(2): A(f"v_rcp_f32 v{42+r}, v{42+r}")
    A("s_nop 0")
    for r in range(2): A(f"v_mul_f32 v{40+r}, v{40+r}, v{42+r}")
    A("v_cvt_pk_bf16_f32 v42, v40, v41")
    A("v_lshlrev_b32 v16, 16, v42\nv_and_b32 v17, 0xffff0000, v42")
    A("v_lshlrev_b32 v18, 16, v19\nv_and_b32 v19, 0xffff0000, v19")
    stamp(6)
    A("L_nofg:")
    A(f"s_lshl_b32 {sT0}, {sB}, 5")
    A(f"s_add_u32 {sT0}, {sT0}, {sCS}")
    A(f"s_mul_i32 {sSO2}, {sT0}, 3584")
    A(f"s_mul_i32 {sT0}, {sWV}, 896")
    A(f"s_add_u32 {sSO2}, {sSO2}, {sT0}")
    A(f"s_add_u32 {sSO2}, {sSO2}, {WS_SP}")
    A("v_and_b32 v11, 1, v0")
    A("v_lshlrev_b32 v11, 4, v11")
    A("v_lshl_add_u32 v11, v8, 5, v11")
    A(f"v_lshlrev_b32 v9, 4, v8")
    A(f"v_add_u32 v9, {O_LDS}, v9")
    A(f"s_cmp_eq_u32 {sWV}, 0")
    A("s_cbranch_scc0 L_wait_o")
    A("v_lshlrev_b32 v12, 10, v8")
    A("v_lshl_add_u32 v12, v7, 4, v12")
    A(f"s_lshl_b32 {sT0}, {sSPL}, 8")
    A(f"v_add_u32 v12, {sT0}, v12")
    A("v_lshlrev_b32 v13, 4, v8")
    A(f"s_and_b32 {sT0}, {sSLOT}, 0xfc")
    A(f"s_mul_i32 {sSO}, {sT0}, {OP_STR}")
    A(f"s_add_u32 {sSO}, {sSO}, {WS_OP}")
    for s_ in range(4): A(f"s_add_u32 s{64+s_}, {sSO}, {s_*OP_STR}")
    if opts.get("gwarm", 1):
        A("s_mov_b32 exec_hi, 0")
        for s_ in range(4): A(f"buffer_load_dwordx4 v[{48+4*s_}:{51+4*s_}], v12, {srd(WS_)}, s{64+s_} offen sc1")
        for s_ in range(4): A(f"buffer_load_dwordx4 v[{64+4*s_}:{67+4*s_}], v13, {srd(WS_)}, s{64+s_} offen offset:2048 sc1")
        A("s_mov_b32 exec_hi, -1")
        lds_wait_ge(8, 4, 82, sleep=1)
    A(f"s_mov_b32 {sCNT}, 0")
    A("s_mov_b32 exec_hi, 0")
    A("L_gpoll:")
    for s_ in range(4): A(f"buffer_load_dwordx4 v[{48+4*s_}:{51+4*s_}], v12, {srd(WS_)}, s{64+s_} offen sc1")
    for s_ in range(4): A(f"buffer_load_dwordx4 v[{64+4*s_}:{67+4*s_}], v13, {srd(WS_)}, s{64+s_} offen offset:2048 sc1")
    A(f"s_add_u32 {sCNT}, {sCNT}, 1")
    A(f"s_cmp_gt_u32 {sCNT}, {SPIN}")
    A("s_cbranch_scc1 L_gpoll_x")
    for i in range(8):
        A(f"s_waitcnt vmcnt({7-i})")
        if i == 0: A(f"v_cmp_ne_u64 s[56:57], {sTAG}, v[50:51]")
        else:
            A(f"v_cmp_ne_u64 vcc, {sTAG}, v[{50+4*i}:{51+4*i}]")
            A("s_or_b64 s[56:57], s[56:57], vcc")
    A("s_cmp_lg_u64 s[56:57], 0")
    A("s_cbranch_scc0 L_gpoll_x")
    if opts.get("gsleep", 1): A(f"s_sleep {opts.get('gsleep', 1)}")
    A("s_branch L_gpoll")
    A("L_gpoll_x:")
    A("s_waitcnt vmcnt(0)")
    stamp(8)
    A("v_max3_f32 v80, v64, v68, v72")
    A("v_max_f32 v80, v80, v76")
    for s_ in range(4): A(f"v_sub_f32 v{64+4*s_}, v{64+4*s_}, v80")
    for s_ in range(4): A(f"v_exp_f32 v{64+4*s_}, v{64+4*s_}")
    for s_ in range(4):
        A(f"v_lshlrev_b32 v{84+4*s_}, 16, v{48+4*s_}")
        A(f"v_and_b32 v{85+4*s_}, 0xffff0000, v{48+4*s_}")
        A(f"v_lshlrev_b32 v{86+4*s_}, 16, v{49+4*s_}")
        A(f"v_and_b32 v{87+4*s_}, 0xffff0000, v{49+4*s_}")
    A("v_mul_f32 v81, v64, v65")
    for s_ in range(1, 4): A(f"v_fmac_f32 v81, v{64+4*s_}, v{65+4*s_}")
    A("v_rcp_f32 v81, v81")
    for e in range(4): A(f"v_mul_f32 v{84+e}, v64, v{84+e}")
    for s_ in range(1, 4):
        for e in range(4): A(f"v_fmac_f32 v{84+e}, v{64+4*s_}, v{84+4*s_+e}")
    for e in range(4): A(f"v_mul_f32 v{84+e}, v{84+e}, v81")
    A("v_cvt_pk_bf16_f32 v84, v84, v85")
    A("v_cvt_pk_bf16_f32 v85, v86, v87")
    A("v_lshlrev_b32 v12, 3, v0")
    A(f"v_add_u32 v12, {O_LDS}, v12")
    A("ds_write_b64 v12, v[84:85]")
    A("s_mov_b64 exec, -1")
    lds_set(12, 12)
    A("s_branch L_gemv")
    A("L_wait_o:")
    lds_wait_ge(8, 4, 12, sleep=2)
    lds_wait_ge(12, 1, 12, sleep=opts.get("osleep", 1))
    A("L_gemv:")
    for t in range(4): A(f"ds_read_b128 v[{48+4*t}:{51+4*t}], v9 offset:{t*64}")
    A("s_mov_b32 s58, 0xaaaaaaaa\ns_mov_b32 s59, 0xaaaaaaaa")
    DB = 64
    A(f"v_mov_b32 v92, {sTAG0}\nv_mov_b32 v93, {sTAG1}")
    A("s_mov_b32 s56, 0x00030003\ns_mov_b32 s57, 0x00030003")
    A(f"s_waitcnt lgkmcnt(0)")
    def gstore(tl):
        d = DB + 4*tl; o = 96 + 4*tl
        A(f"v_cndmask_b32 v{o}, v92, v{d+2}, s[58:59]")
        A(f"v_cndmask_b32 v{o+1}, v93, v{d+3}, s[58:59]")
        A(f"v_cndmask_b32 v{o+2}, v{d}, v92, s[58:59]")
        A(f"v_cndmask_b32 v{o+3}, v{d+1}, v93, s[58:59]")
        A("s_mov_b64 exec, s[56:57]")
        A(f"buffer_store_dwordx4 v[{o}:{o+3}], v11, {srd(WS_)}, {sSO2} offen offset:{tl*128} sc1")
        A("s_mov_b64 exec, -1")
    for tl in range(7):
        for t in range(4):
            d = DB + 4*tl
            c = "0" if t == 0 else f"v[{d}:{d+3}]"
            b = 128 + (tl*4+t)*4
            A(f"v_mfma_f32_16x16x32_bf16 v[{d}:{d+3}], v[{b}:{b+3}], v[{48+4*t}:{51+4*t}], {c}")
        if tl >= 2: gstore(tl-2)
    gstore(5)
    A("s_nop 0")
    gstore(6)
    stamp(10)
    if opts.get("stop") == 3: A("s_branch L_fin")
    A(f"s_cmp_eq_u32 {sWV}, 3")
    A("s_cbranch_scc0 L_fin")
    A(f"s_cmp_lt_u32 {sHKV}, 7")
    A("s_cbranch_scc0 L_fin")
    A(f"s_mul_i32 {sSO}, {sB}, {32*3584}")
    A(f"s_lshl_b32 {sT0}, {sCS}, 7")
    A(f"s_add_u32 {sSO}, {sSO}, {sT0}")
    A(f"s_add_u32 {sSO}, {sSO}, {WS_SP}")
    A(f"s_mul_i32 {sSO2}, {sB}, 896")
    A(f"s_lshl_b32 {sT0}, {sCS}, 5")
    A(f"s_add_u32 {sSO2}, {sSO2}, {sT0}")
    gather("s", 4, False, sSO, 3584, 24, opts.get("ssleep", 1))
    stamp(12)
    A("v_cvt_pk_bf16_f32 v42, v40, v41")
    A("v_lshlrev_b32 v40, 16, v42\nv_and_b32 v41, 0xffff0000, v42")
    A("v_mul_f32 v40, v40, v16\nv_mul_f32 v41, v41, v17")
    A("v_cvt_pk_bf16_f32 v42, v40, v41")
    A("v_lshlrev_b32 v40, 16, v42\nv_and_b32 v41, 0xffff0000, v42")
    A("v_add_f32 v40, v18, v40\nv_add_f32 v41, v19, v41")
    A("v_cvt_pk_bf16_f32 v42, v40, v41")
    A("s_mov_b64 exec, 0xff")
    A(f"buffer_store_dword v42, v14, {srd(OUT_)}, {sSO2} offen")
    A("s_mov_b64 exec, -1")
    A(f"s_cmp_eq_u32 {sWG}, 0")
    A("s_cbranch_scc0 L_fin")
    A(f"v_mov_b32 v24, {sTAG0}\nv_mov_b32 v25, {sTAG1}\nv_mov_b32 v22, {WS_EP}")
    A("s_mov_b64 exec, 1")
    A(f"buffer_store_dwordx2 v[24:25], v22, {srd(WS_)}, 0 offen sc1")
    A("s_mov_b64 exec, -1")
    A("s_branch L_fin")

    A("L_stream:")
    A(f"s_add_u32 {sT2}, {sT3}, 32768")
    vloads("A", sT3)
    A("s_nop 0")
    kloads("B", sT2)
    A("s_nop 0")
    vloads("B", sT2)
    A(f"s_mov_b32 {sC}, 0x{f2u(CSC):08x}")
    A("s_mov_b32 s96, 0x00ff00ff\ns_mov_b32 s97, 0xff00ff00")
    A("v_and_b32 v9, 1, v0")
    A("v_lshlrev_b32 v9, 4, v9")
    A("v_mov_b32 v10, 0xffff")
    A("v_lshlrev_b32 v9, v9, v10")
    A("v_bfe_u32 v10, v0, 1, 2")
    for i in range(4):
        A(f"v_cmp_eq_u32 vcc, {i}, v10")
        A("s_nop 1")
        A(f"v_cndmask_b32 v{3+i}, 0, v9, vcc")
    A("s_waitcnt lgkmcnt(0)")
    A(f"s_add_u32 {sTAG0}, {sTAG0}, 1")
    A(f"s_mov_b32 {sMODE}, 0")
    A(f"s_mov_b32 {sSEQ}, 0")
    A(f"s_and_b32 {sT1}, {sWV}, 3")
    A(f"s_lshl_b32 {sT0}, {sT1}, 2")
    A(f"s_add_u32 {sT0}, {sT0}, {SY_LDS+32}")
    A(f"v_mov_b32 v80, {sT0}")
    A(f"s_lshl_b32 {sT0}, {sT1}, 3")
    A(f"s_add_u32 {sT0}, {sT0}, {SY_LDS+64}")
    A(f"v_mov_b32 v81, {sT0}")
    stamp(5)
    if not opts.get("noq"): lds_wait_ge(0, 1, 12)
    A("v_lshrrev_b32 v13, 3, v7")
    A("v_lshlrev_b32 v13, 9, v13")
    A("v_lshl_add_u32 v13, v8, 4, v13")
    A(f"v_add_u32 v13, {Q_LDS}, v13")
    for i in range(8):
        A(f"ds_read_b128 v[{16+4*i}:{19+4*i}], v13 offset:{i*64}")
    A(f"v_mov_b32 v74, {SY_LDS+16}")
    A("v_mov_b32 v75, 1")
    def post():
        A(f"s_add_u32 {sSEQ}, {sSEQ}, 1")
        A(f"v_mov_b32 v82, {sSEQ}")
        A("ds_write_b32 v80, v82")
    def grab():
        l1 = g.lab("gm"); l2 = g.lab("gd")
        A(f"s_cmp_eq_u32 {sMODE}, 0")
        A(f"s_cbranch_scc0 {l1}")
        A("s_mov_b64 exec, 1")
        A("ds_add_rtn_u32 v76, v74, v75")
        A("s_mov_b64 exec, -1")
        A(f"s_branch {l2}")
        A(f"{l1}:")
        post()
        A(f"{l2}:")
    def result(o):
        lm = g.lab("rm"); lw = g.lab("rw"); lh = g.lab("rh"); lx = g.lab("rx")
        A(f"s_cmp_eq_u32 {sMODE}, 0")
        A(f"s_cbranch_scc0 {lm}")
        A("s_waitcnt lgkmcnt(0)")
        A(f"v_readfirstlane_b32 {sT0}, v76")
        A(f"s_add_u32 {sNX}, {sT0}, {sLB}")
        A(f"s_cmp_lt_u32 {sT0}, {DLIM}")
        A(f"s_cbranch_scc1 {lh}")
        A(f"s_mov_b32 {sMODE}, 1")
        A(f"s_cmp_lt_u32 {sT0}, {NLOC}")
        A(f"s_cbranch_scc1 {lh}")
        post()
        A(f"{lm}:")
        A(f"s_mov_b32 {sCNT}, 0")
        A(f"s_mov_b32 {sNX}, 0xffff")
        A(f"{lw}:")
        A("ds_read_b64 v[76:77], v81")
        A(f"s_add_u32 {sCNT}, {sCNT}, 1")
        A(f"s_cmp_gt_u32 {sCNT}, {SPIN}")
        A(f"s_cbranch_scc1 {lx}")
        A("s_waitcnt lgkmcnt(0)")
        A(f"v_readfirstlane_b32 {sT0}, v76")
        A(f"v_readfirstlane_b32 {sNX}, v77")
        A(f"s_cmp_eq_u32 {sT0}, {sSEQ}")
        A(f"s_cbranch_scc1 {lx}")
        A(f"s_mov_b32 {sNX}, 0xffff")
        A("s_sleep 1")
        A(f"s_branch {lw}")
        A(f"{lx}:")
        A("s_waitcnt lgkmcnt(0)")
        A(f"s_cmp_lt_u32 {sNX}, 256")
        A(f"s_cbranch_scc0 L_noref_{o}")
        A(f"{lh}:")
    grab()
    A(f"v_mov_b32 v68, 0x{f2u(-1e30):08x}")
    A("v_mov_b32 v69, 0")
    for i in range(8): A(f"v_mov_b32 v{52+i}, 0")
    A("v_lshrrev_b32 v78, 1, v8")
    A("v_lshlrev_b32 v78, 10, v78")
    A("v_lshl_add_u32 v78, v7, 5, v78")
    A("v_and_b32 v79, 1, v8")
    A("v_lshl_add_u32 v78, v79, 4, v78")
    A(f"s_and_b32 {sT1}, {sWV}, 3")
    A(f"s_lshl_b32 {sT0}, {sT1}, 11")
    A(f"s_add_u32 {sT0}, {sT0}, {CB_LDS}")
    A(f"v_add_u32 v78, {sT0}, v78")
    A("v_lshrrev_b32 v79, 3, v7")
    A("v_lshlrev_b32 v79, 5, v79")
    A(f"s_lshl_b32 {sT0}, {sT1}, 3")
    A(f"s_add_u32 {sT0}, {sT0}, {ST_LDS}")
    A(f"v_add_u32 v79, {sT0}, v79")
    stamp(6)
    result("A")
    def ands(st, r):
        for i in range(4): A(f"v_and_b32 v{60+4*st+i}, v{48+r}, v{3+i}")
    def proc(sl, kind):
        o = "B" if sl == "A" else "A"
        base = SLOT[sl]
        A(f"L_{kind}_{sl}:")
        if kind == "full":
            A(f"s_lshl_b32 {sSO}, {sNX}, 13")
            grab()
        if kind == "noref":
            lds_wait_ge(24, 1, 70)
        A(f"s_waitcnt vmcnt({8 if kind == 'last' else 24})")
        for i in range(8):
            c = "0" if i == 0 else "v[48:51]"
            A(f"v_mfma_f32_16x16x32_bf16 v[48:51], v[{base+4*i}:{base+4*i+3}], v[{16+4*i}:{19+4*i}], {c}")
        if kind == "full": kloads(sl, sSO)
        else: A("s_nop 7")
        A("v_max3_f32 v70, v48, v49, v50")
        A("v_max_f32 v70, v70, v51")
        xreduce(70, 71, "v_max_f32")
        A(f"v_mul_f32 v70, {sC}, v70")
        A("v_max_f32 v70, v70, v68")
        A("v_sub_f32 v72, v68, v70")
        A("v_exp_f32 v72, v72")
        A("v_mov_b32 v68, v70")
        for r in range(4): A(f"v_fma_f32 v{48+r}, v{48+r}, {sC}, -v70")
        for r in range(4): A(f"v_exp_f32 v{48+r}, v{48+r}")
        A("v_mov_b32_dpp v73, v72 row_ror:8 row_mask:0xf bank_mask:0xf")
        A("v_mul_f32 v69, v69, v72")
        A(f"v_cndmask_b32 v73, v73, v72, {sAM}")
        for r in range(4):
            A(f"v_add_f32 v69, v69, v{48+r}")
            A(f"v_cvt_pk_bf16_f32 v{48+r}, v{48+r}, v{48+r}")
        for i in range(8): A(f"v_mul_f32 v{52+i}, v{52+i}, v73")
        ands(0, 0); ands(1, 1)
        if kind == "last":
            xreduce(69, 71, "v_add_f32")
            A("ds_write_b64 v79, v[68:69]")
        A(f"s_waitcnt vmcnt({ {'full':24,'noref':16,'last':0}[kind] })")
        def pv(st, r):
            for hf in range(2):
                vb = base + 32 + (r*2+hf)*4
                A(f"v_mfma_f32_16x16x32_bf16 v[{52+4*hf}:{55+4*hf}], v[{60+4*st}:{63+4*st}], v[{vb}:{vb+3}], v[{52+4*hf}:{55+4*hf}]")
        pv(0, 0); ands(0, 2); pv(1, 1); ands(1, 3); pv(0, 2); pv(1, 3)
        if kind == "full":
            vloads(sl, sSO)
            result(o)
            if sl == "B": A("s_branch L_full_A")
        elif kind == "last":
            if sl == "B": A("s_branch L_done")
    proc("A", "full"); proc("B", "full")
    proc("A", "noref"); proc("B", "last")
    proc("B", "noref"); proc("A", "last")
    A("L_done:")
    stamp(8)
    A("s_setprio 3")
    A(f"v_mov_b32 v20, {SY_LDS+8}")
    A("v_mov_b32 v21, 1")
    A("v_lshlrev_b32 v18, 4, v0")
    A(f"v_add_u32 v19, {CB_LDS}, v18")
    A(f"v_mov_b32 v17, {ST_LDS}")
    A("s_nop 2")
    A("ds_write_b128 v78, v[52:55]")
    A("ds_write_b128 v78, v[56:59] offset:512")
    A("s_mov_b64 exec, 1")
    A("s_waitcnt lgkmcnt(0)")
    A("ds_add_rtn_u32 v21, v20, v21")
    A("s_mov_b64 exec, -1")
    A(f"s_mul_i32 {sSO}, {sSLOT}, {OP_STR}")
    A(f"s_add_u32 {sSO}, {sSO}, {WS_OP}")
    A(f"v_mov_b32 v46, {sTAG0}\nv_mov_b32 v47, {sTAG1}\nv_mov_b32 v50, {sTAG0}\nv_mov_b32 v51, {sTAG1}")
    A(f"v_mov_b32 v54, {sTAG0}\nv_mov_b32 v55, {sTAG1}")
    A("s_waitcnt lgkmcnt(0)")
    A(f"v_readfirstlane_b32 {sARR}, v21")
    A(f"s_cmp_eq_u32 {sARR}, 3")
    A("s_cbranch_scc0 L_fin")
    for i in range(4): A(f"ds_read_b128 v[{20+4*i}:{23+4*i}], v17 offset:{16*i}")
    CBR = 96
    for w in range(4):
        A(f"ds_read_b128 v[{CBR+8*w}:{CBR+8*w+3}], v19 offset:{2048*w}")
        A(f"ds_read_b128 v[{CBR+8*w+4}:{CBR+8*w+7}], v19 offset:{2048*w+1024}")
    A("s_waitcnt lgkmcnt(8)")
    A("v_max3_f32 v60, v20, v22, v24")
    A("v_max3_f32 v62, v28, v30, v32")
    A("v_max_f32 v60, v60, v26")
    A("v_max_f32 v62, v62, v34")
    for w in range(4):
        A(f"v_sub_f32 v{20+2*w}, v{20+2*w}, v60")
        A(f"v_sub_f32 v{28+2*w}, v{28+2*w}, v62")
    for w in range(8): A(f"v_exp_f32 v{20+2*w}, v{20+2*w}")
    A("v_cmp_eq_u32 vcc, 1, v0")
    A("v_mul_f32 v61, v20, v21")
    A("v_mul_f32 v63, v28, v29")
    for w in range(1, 4):
        A(f"v_fmac_f32 v61, v{20+2*w}, v{21+2*w}")
        A(f"v_fmac_f32 v63, v{28+2*w}, v{29+2*w}")
    A("v_cndmask_b32 v52, v60, v62, vcc")
    A("v_cndmask_b32 v53, v61, v63, vcc")
    A("s_mov_b64 exec, 3")
    A(f"buffer_store_dwordx4 v[52:55], v18, {srd(WS_)}, {sSO} offen offset:2048 sc1")
    A("s_mov_b64 exec, -1")
    for w in range(4):
        A(f"s_waitcnt lgkmcnt({2*(3-w)})")
        for e in range(8):
            sc = 20 + 2*w + (8 if e >= 4 else 0)
            if w == 0: A(f"v_mul_f32 v{36+e}, v{sc}, v{CBR+e}")
            else: A(f"v_fmac_f32 v{36+e}, v{sc}, v{CBR+8*w+e}")
    A("v_cvt_pk_bf16_f32 v44, v36, v37")
    A("v_cvt_pk_bf16_f32 v45, v38, v39")
    A("v_cvt_pk_bf16_f32 v48, v40, v41")
    A("v_cvt_pk_bf16_f32 v49, v42, v43")
    A(f"buffer_store_dwordx4 v[44:47], v18, {srd(WS_)}, {sSO} offen sc1")
    A(f"buffer_store_dwordx4 v[48:51], v18, {srd(WS_)}, {sSO} offen offset:1024 sc1")
    stamp(9)
    A("L_fin:")
    if TS:
        stamp(14)
        A(f"v_writelane_b32 v15, s62, 15")
        A(f"s_lshl_b32 {sT0}, {sWG}, 3")
        A(f"s_add_u32 {sT0}, {sT0}, {sWV}")
        A(f"s_lshl_b32 {sSO}, {sT0}, 6")
        A(f"s_add_u32 {sSO}, {sSO}, {WS_TS}")
        A("v_lshlrev_b32 v21, 2, v0")
        A("s_mov_b64 exec, 0xffff")
        A(f"buffer_store_dword v15, v21, {srd(WS_)}, {sSO} offen")
    A("L_end:")
    A("s_endpgm")

    hdr = open("recurrent_scan__gqa_block_cached__dense_activation_relu__decode.s.ref").read().split("; Override launch geometry")[0]
    out = hdr
    out += f"; @launch grid=(256,1,1) block=(512,1,1) lds={LDS_TOTAL}\n"
    out += '.amdgcn_target "amdgcn-amd-amdhsa--gfx950"\n.text\n'
    out += f".globl {NAME}\n.p2align 8\n.type {NAME},@function\n{NAME}:\n"
    out += "\n".join(g.L) + "\n"
    out += f""".section .rodata,"a"
.p2align 6
.amdhsa_kernel {NAME}
  .amdhsa_next_free_vgpr 256
  .amdhsa_next_free_sgpr 102
  .amdhsa_accum_offset 256
  .amdhsa_group_segment_fixed_size 0
  .amdhsa_kernarg_size 88
  .amdhsa_user_sgpr_count 2
  .amdhsa_user_sgpr_kernarg_segment_ptr 1
  .amdhsa_system_sgpr_workgroup_id_x 1
.end_amdhsa_kernel
"""
    return out, LDS_TOTAL

if __name__ == "__main__":
    opts = {}
    outp = "recurrent_scan__gqa_block_cached__dense_activation_relu__decode.s"
    for a in sys.argv[1:]:
        if a.startswith("-o="): outp = a[3:]
        else:
            k, v = a.split("=")
            opts[k] = int(v) if v.lstrip("-").isdigit() else v.replace("_", " ")
    s, lds = build(opts)
    open(outp, "w").write(s)
    print("wrote", outp, "lds", lds)
```

```python
import sys, math, struct

NAME = "recurrent_scan__gqa_block_cached__dense_activation_relu__decode_kernel"
def f2u(f): return struct.unpack("<I", struct.pack("<f", f))[0]

class Gen:
    def __init__(self):
        self.L = []; self.uid = 0
    def A(self, s):
        for line in s.split("\n"):
            t = line.strip()
            self.L.append(t if t.endswith(":") else "  " + t)
    def lab(self, p):
        self.uid += 1
        return f"L_{p}_{self.uid}"

def build(opts):
    TS = opts.get("ts", 0)
    KVF = opts.get("kvflags", "nt")
    KF = opts.get("kflags", KVF); VF = opts.get("vflags", KVF)
    WF = opts.get("wflags", "nt")
    WOF = opts.get("woflags", WF)
    SPIN = opts.get("spin", 200000)
    NPRE = opts.get("npre", 1)
    THRESH = opts.get("thresh", 66)
    g = Gen(); A = g.A

    WO_LDS = 0
    XN_LDS = 114688
    XN_STR = 912
    Q_LDS = XN_LDS + 8*XN_STR
    H_LDS = Q_LDS + 1024
    H_STR = 144
    ST_LDS = H_LDS + 2304
    O_LDS = ST_LDS + 128
    SY_LDS = O_LDS + 256
    CB_LDS = SY_LDS + 128
    H2_LDS = CB_LDS + 16384
    LDS_TOTAL = H2_LDS + 8*XN_STR
    assert LDS_TOTAL <= 163840 and CB_LDS % 16 == 0
    WS_EP = 0
    WS_Q = 0x1000
    WS_FP = 0x40000
    WS_H = 0x80000
    WS_OP = 0x110000
    OP_STR = 2176
    WS_SP = 0x1A0000
    WS_GC = 0x290000
    WS_TS = 0x300000
    WS_SIZE = 0x400000

    CSC = math.log2(math.e) / 16.0
    sWG, sWV, sHKV, sIDX, sB, sSPL = "s2", "s3", "s4", "s5", "s6", "s7"
    K_, V_, X_, WQ_, W1_, W2_, WO_, WS_, OUT_ = 8, 12, 16, 20, 24, 28, 32, 36, 44
    def srd(n): return f"s[{n}:{n+3}]"
    sP, sHS, sFC, sFV, sCS, sSLOT, sC = "s86", "s87", "s88", "s89", "s90", "s91", "s93"
    sTAG = "s[94:95]"; sTAG0, sTAG1 = "s94", "s95"
    sT0, sT1, sT2, sT3 = "s48", "s49", "s50", "s51"
    sSO = "s52"; sSO2 = "s53"; sCNT = "s54"; sNX = "s55"; sARR = "s92"
    sAM = "s[96:97]"
    sKQ = "s98"; sSTR = "s99"
    sMODE = "s100"; sSEQ = "s101"; sLB = "s40"
    NLOC = opts.get("nloc", 56); DLIM = opts.get("dlim", 44)

    def stamp(i):
        if not TS: return
        A(f"s_memrealtime s[60:61]")
        A("s_waitcnt lgkmcnt(0)")
        A(f"v_writelane_b32 v15, s60, {i}")
    def xreduce(v, t, op="v_add_f32"):
        A(f"v_mov_b32 v{t}, v{v}")
        A("s_nop 1")
        A(f"v_permlane16_swap_b32 v{v}, v{t}")
        A("s_nop 1")
        A(f"{op} v{v}, v{v}, v{t}")
        A(f"v_mov_b32 v{t}, v{v}")
        A("s_nop 1")
        A(f"v_permlane32_swap_b32 v{v}, v{t}")
        A("s_nop 1")
        A(f"{op} v{v}, v{v}, v{t}")
    def xreduce2(v0_, v1_, t0, t1, op="v_add_f32"):
        for sw in ["v_permlane16_swap_b32", "v_permlane32_swap_b32"]:
            A(f"v_mov_b32 v{t0}, v{v0_}")
            A(f"v_mov_b32 v{t1}, v{v1_}")
            A("s_nop 0")
            A(f"{sw} v{v0_}, v{t0}")
            A(f"{sw} v{v1_}, v{t1}")
            A("s_nop 0")
            A(f"{op} v{v0_}, v{v0_}, v{t0}")
            A(f"{op} v{v1_}, v{v1_}, v{t1}")
    def allreduce(v, t, op="v_add_f32"):
        for mode in ["quad_perm:[1,0,3,2]", "quad_perm:[2,3,0,1]", "row_half_mirror", "row_mirror"]:
            A("s_nop 1")
            A(f"{op}_dpp v{v}, v{v}, v{v} {mode} row_mask:0xf bank_mask:0xf")
        xreduce(v, t, op)
    def lds_wait_ge(off, val, vt, sleep=2):
        l0 = g.lab("lw"); l1 = g.lab("lwx")
        A(f"v_mov_b32 v{vt}, {SY_LDS+off}")
        A(f"s_mov_b32 {sCNT}, 0")
        A(f"{l0}:")
        A(f"ds_read_b32 v{vt+1}, v{vt}")
        A(f"s_add_u32 {sCNT}, {sCNT}, 1")
        A(f"s_cmp_gt_u32 {sCNT}, {SPIN}")
        A(f"s_cbranch_scc1 {l1}")
        A("s_waitcnt lgkmcnt(0)")
        A(f"v_cmp_le_u32 vcc, {val}, v{vt+1}")
        A(f"s_cbranch_vccnz {l1}")
        if sleep: A(f"s_sleep {sleep}")
        A(f"s_branch {l0}")
        A(f"{l1}:")
        A("s_waitcnt lgkmcnt(0)")
    def lds_set(off, vt):
        A(f"v_mov_b32 v{vt}, {SY_LDS+off}")
        A(f"v_mov_b32 v{vt+1}, 1")
        A("s_waitcnt lgkmcnt(0)")
        A(f"ds_write_b32 v{vt}, v{vt+1}")
    def lds_inc(off, vt, ret=None):
        A(f"v_mov_b32 v{vt}, {SY_LDS+off}")
        A(f"v_mov_b32 v{vt+1}, 1")
        A("s_mov_b64 exec, 1")
        A("s_waitcnt lgkmcnt(0)")
        if ret:
            A(f"ds_add_rtn_u32 v{vt+1}, v{vt}, v{vt+1}")
            A("s_mov_b64 exec, -1")
            A("s_waitcnt lgkmcnt(0)")
            A(f"v_readfirstlane_b32 {ret}, v{vt+1}")
        else:
            A(f"ds_add_u32 v{vt}, v{vt+1}")
            A("s_mov_b64 exec, -1")

    SLOT = {"A": 128, "B": 192}
    IB = opts.get("ib", 8)
    def init_loads(sl, so):
        seq = []
        for i in range(8):
            d = SLOT[sl] + i*4
            seq.append(f"buffer_load_dwordx4 v[{d}:{d+3}], v1, {srd(K_)}, {so} offen offset:{i*64} {KF}")
        for i in range(8):
            d = SLOT[sl] + 32 + i*4
            seq.append(f"buffer_load_dwordx4 v[{d}:{d+3}], v2, {srd(V_)}, {so} offen offset:{(i//2)*512+(i%2)*256} {VF}")
        for i, x in enumerate(seq):
            A(x)
            if i % IB == IB-1: A("s_nop 0")
    DUP = opts.get("dup", 0)
    B16 = opts.get("b16", 1)
    def kloads(sl, so):
        if DUP:
            for i in range(8):
                d = SLOT[sl] + i*4
                A(f"buffer_load_dwordx4 v[{d}:{d+3}], v1, s[24:27], {so} offen offset:{i*64} {KF}")
        for i in range(8):
            d = SLOT[sl] + i*4
            A(f"buffer_load_dwordx4 v[{d}:{d+3}], v1, {srd(K_)}, {so} offen offset:{i*64} {KF}")
    def vloads(sl, so):
        if DUP:
            for i in range(8):
                d = SLOT[sl] + 32 + i*4
                A(f"buffer_load_dwordx4 v[{d}:{d+3}], v2, s[28:31], {so} offen offset:{(i//2)*512+(i%2)*256} {VF}")
        for i in range(8):
            d = SLOT[sl] + 32 + i*4
            A(f"buffer_load_dwordx4 v[{d}:{d+3}], v2, {srd(V_)}, {so} offen offset:{(i//2)*512+(i%2)*256} {VF}")

    A(f"s_cmp_ge_u32 {sWG}, 256")
    A("s_cbranch_scc1 L_end")
    A("s_setprio 3")
    A("s_load_dwordx16 s[64:79], s[0:1], 0")
    A("s_load_dwordx4 s[80:83], s[0:1], 64")
    A("s_load_dwordx2 s[84:85], s[0:1], 80")
    if TS:
        A("v_mov_b32 v15, 0")
        A("s_mov_b32 s41, 15")
        A("s_memrealtime s[62:63]")
    A("v_lshrrev_b32 v1, 6, v0")
    A("v_and_b32 v0, 63, v0")
    A(f"s_and_b32 {sHKV}, {sWG}, 7")
    A(f"v_readfirstlane_b32 {sWV}, v1")
    A(f"s_lshr_b32 {sIDX}, {sWG}, 3")
    A(f"s_and_b32 {sB}, {sIDX}, 7")
    A(f"s_lshr_b32 {sSPL}, {sIDX}, 3")
    A(f"s_lshl_b32 {sP}, {sHKV}, 5")
    A(f"s_add_u32 {sP}, {sP}, {sIDX}")
    if opts.get("xmap", 1):
        A(f"s_lshl_b32 {sT0}, {sSPL}, 1")
        A(f"s_sub_u32 {sHKV}, {sHKV}, {sT0}")
        A(f"s_and_b32 {sHKV}, {sHKV}, 7")
    A(f"s_lshl_b32 {sSLOT}, {sB}, 3")
    A(f"s_add_u32 {sSLOT}, {sSLOT}, {sHKV}")
    A(f"s_lshl_b32 {sSLOT}, {sSLOT}, 2")
    A(f"s_add_u32 {sSLOT}, {sSLOT}, {sSPL}")
    A(f"s_lshr_b32 {sT2}, {sSLOT}, 2")
    A(f"s_lshl_b32 {sT2}, {sT2}, 21")
    A(f"s_lshl_b32 {sLB}, {sSPL}, 6")
    A("v_and_b32 v7, 15, v0")
    A("v_lshrrev_b32 v8, 4, v0")
    A(f"s_cmp_lt_u32 {sWV}, 4")
    A("s_cbranch_scc0 L_front_s")
    A(f"s_mul_i32 {sT3}, {sWV}, 1792")
    A("v_lshrrev_b32 v9, 5, v0")
    A("v_mul_u32_u24 v9, 896, v9")
    A("v_and_b32 v10, 31, v0")
    A("v_lshl_add_u32 v9, v10, 5, v9")
    A(f"v_add_u32 v9, {sT3}, v9")
    A("v_cmp_gt_u32 vcc, 28, v10")
    A("v_mov_b32 v10, 0x7fffff00")
    A("v_lshrrev_b32 v11, 1, v0")
    A("v_lshlrev_b32 v11, 13, v11")
    A("v_cndmask_b32 v9, v10, v9, vcc")
    A("v_and_b32 v12, 1, v0")
    A("v_lshl_add_u32 v11, v12, 4, v11")
    A(f"s_lshl_b32 {sT0}, {sP}, 5")
    A(f"s_lshl_b32 s56, {sWV}, 20")
    A(f"s_add_u32 s57, s56, {1<<18}\ns_add_u32 s58, s56, {2<<18}\ns_add_u32 s59, s56, {3<<18}")
    A(f"s_mov_b32 s{X_+2}, 7168\ns_mov_b32 s{X_+3}, 0x20000")
    A(f"s_sub_u32 s{WQ_+2}, 3670016, {sT0}\ns_mov_b32 s{WQ_+3}, 0x20000")
    A(f"v_mov_b32 v20, {SY_LDS}\nv_mov_b32 v24, 0\nv_mov_b32 v25, 0\nv_mov_b32 v26, 0\nv_mov_b32 v27, 0\nv_mov_b32 v28, 8\nv_mov_b32 v29, 0\nv_mov_b32 v30, 0\nv_mov_b32 v31, 0")
    A("ds_write_b128 v20, v[24:27]")
    A("ds_write_b128 v20, v[28:31] offset:16")
    for o in (32, 64, 80): A(f"ds_write_b128 v20, v[24:27] offset:{o}")
    A("s_waitcnt lgkmcnt(0)")
    A(f"s_mov_b32 s{X_}, s64\ns_mov_b32 s{X_+1}, s65")
    A(f"s_add_u32 s{WQ_}, s70, {sT0}\ns_addc_u32 s{WQ_+1}, s71, 0")
    A(f"buffer_load_dwordx4 v[16:19], v9, {srd(X_)}, 0 offen")
    A(f"buffer_load_dwordx4 v[20:23], v9, {srd(X_)}, 0 offen offset:16")
    for i in range(4): A(f"buffer_load_dwordx4 v[{64+4*i}:{67+4*i}], v11, {srd(WQ_)}, s{56+i} offen {WF}")
    A(f"s_load_dwordx2 {sTAG}, s[84:85], {WS_EP}")
    A("s_barrier")
    A("s_branch L_front_h")
    A("L_front_s:")
    A("v_lshlrev_b32 v1, 9, v7")
    A("v_lshl_add_u32 v1, v8, 4, v1")
    A("v_lshlrev_b32 v2, 11, v8")
    A("v_lshl_add_u32 v2, v7, 4, v2")
    A(f"s_mov_b32 s{K_+2}, 0x200000\ns_mov_b32 s{K_+3}, 0x20000")
    A(f"s_mov_b32 s{V_+2}, 0x200000\ns_mov_b32 s{V_+3}, 0x20000")
    A(f"s_and_b32 {sT3}, {sWV}, 3")
    A(f"s_add_u32 {sT3}, {sT3}, {sLB}")
    A(f"s_lshl_b32 {sT3}, {sT3}, 13")
    A("s_setprio 1")
    A("s_waitcnt lgkmcnt(0)")
    A(f"s_add_u32 s{K_}, s66, {sT2}\ns_addc_u32 s{K_+1}, s67, 0")
    A(f"s_add_u32 s{V_}, s68, {sT2}\ns_addc_u32 s{V_+1}, s69, 0")
    if DUP:
        A(f"s_xor_b32 {sT0}, {sT2}, 0x4100000")
        A(f"s_add_u32 s24, s66, {sT0}\ns_addc_u32 s25, s67, 0\ns_mov_b32 s26, 0x100000\ns_mov_b32 s27, 0x20000")
        A(f"s_add_u32 s28, s68, {sT0}\ns_addc_u32 s29, s69, 0\ns_mov_b32 s30, 0x100000\ns_mov_b32 s31, 0x20000")
    if not opts.get("late1", 1): init_loads("A", sT3)
    A(f"s_load_dwordx2 {sTAG}, s[84:85], {WS_EP}")
    A(f"s_mov_b32 s{WS_}, s84\ns_mov_b32 s{WS_+1}, s85\ns_mov_b32 s{WS_+2}, {WS_SIZE}\ns_mov_b32 s{WS_+3}, 0x20000")
    A("s_barrier")
    A("s_branch L_stream")
    A("L_front_h:")
    A(f"s_lshr_b32 {sHS}, {sSLOT}, 2")
    A(f"s_and_b32 {sT0}, {sHS}, 3")
    A(f"s_cmp_eq_u32 {sT0}, {sSPL}")
    A(f"s_cselect_b32 {sFV}, 1, 0")
    A(f"s_cmp_lt_u32 {sHS}, {0 if opts.get('noffn') else 56}")
    A(f"s_cselect_b32 {sFV}, {sFV}, 0")
    A(f"s_cmp_ge_u32 {sHS}, 28")
    A(f"s_cselect_b32 {sT0}, 1, 0")
    A(f"s_lshl_b32 {sFV}, {sFV}, {sT0}")
    A(f"s_sub_u32 {sT1}, {sHS}, 28")
    A(f"s_and_b32 {sT1}, {sT1}, 31")
    A(f"s_mul_i32 {sT0}, {sT1}, 37")
    A(f"s_lshr_b32 {sKQ}, {sT0}, 8")
    A(f"s_mul_i32 {sT0}, {sKQ}, 7")
    A(f"s_sub_u32 {sFC}, {sT1}, {sT0}")
    A(f"s_lshl_b32 {sCS}, {sHKV}, 2")
    A(f"s_add_u32 {sCS}, {sCS}, {sSPL}")
    A(f"s_mov_b32 {sC}, 0x{f2u(CSC):08x}")
    A(f"s_lshl_b32 {sT0}, {sHS}, 7")
    A(f"s_mul_i32 {sT1}, {sKQ}, 401408")
    A(f"s_lshl_b32 s{W2_}, {sFC}, 7")
    A(f"s_add_u32 {sT1}, {sT1}, s{W2_}")
    A(f"s_cmp_eq_u32 {sFV}, 2")
    A(f"s_cselect_b32 {sT0}, {sT1}, {sT0}")
    A(f"s_cselect_b32 s{W2_}, s78, s76")
    A(f"s_cselect_b32 s{W2_+1}, s79, s77")
    A(f"s_movk_i32 {sSTR}, 3584")
    A(f"s_cselect_b32 {sSTR}, 896, {sSTR}")
    A(f"s_add_u32 s{W1_}, s{W2_}, {sT0}\ns_addc_u32 s{W1_+1}, s{W2_+1}, 0\ns_sub_u32 {sT1}, 1605632, {sT0}")
    A(f"s_cmp_eq_u32 {sFV}, 0\ns_cselect_b32 s{W1_+2}, 0, {sT1}\ns_mov_b32 s{W1_+3}, 0x20000")
    A(f"s_mul_i32 {sT0}, {sHKV}, 458752\ns_mul_i32 {sT1}, {sSPL}, 57344\ns_add_u32 {sT0}, {sT0}, {sT1}")
    A(f"s_add_u32 s{WO_}, s72, {sT0}\ns_addc_u32 s{WO_+1}, s73, 0\ns_sub_u32 s{WO_+2}, {0 if opts.get('nowo') else 3670016}, {0 if opts.get('nowo') else sT0}\ns_mov_b32 s{WO_+3}, 0x20000")
    A(f"s_mov_b32 s{WS_}, s84\ns_mov_b32 s{WS_+1}, s85\ns_mov_b32 s{WS_+2}, {WS_SIZE}\ns_mov_b32 s{WS_+3}, 0x20000")
    A(f"s_mov_b32 s{OUT_}, s80\ns_mov_b32 s{OUT_+1}, s81\ns_mov_b32 s{OUT_+2}, 7168\ns_mov_b32 s{OUT_+3}, 0x20000")
    A(f"s_waitcnt vmcnt(4)")
    stamp(0)
    for i in range(8):
        A(f"v_lshlrev_b32 v{24+2*i}, 16, v{16+i}")
        A(f"v_and_b32 v{25+2*i}, 0xffff0000, v{16+i}")
    for i in range(8): A(f"v_add_f32 v{40+i}, v{24+2*i}, v{25+2*i}")
    for i in range(4): A(f"v_add_f32 v{40+i}, v{40+i}, v{44+i}")
    A("v_add_f32 v40, v40, v42\nv_add_f32 v41, v41, v43\nv_add_f32 v40, v40, v41")
    def halfreduce(v, t, op="v_add_f32"):
        for mode in ["quad_perm:[1,0,3,2]", "quad_perm:[2,3,0,1]", "row_half_mirror", "row_mirror"]:
            A("s_nop 1")
            A(f"{op}_dpp v{v}, v{v}, v{v} {mode} row_mask:0xf bank_mask:0xf")
        A(f"v_mov_b32 v{t}, v{v}")
        A("s_nop 1")
        A(f"v_permlane16_swap_b32 v{v}, v{t}")
        A("s_nop 1")
        A(f"{op} v{v}, v{v}, v{t}")
    halfreduce(40, 41)
    A(f"v_mul_f32 v40, 0x{f2u(1.0/448):08x}, v40")
    for i in range(16): A(f"v_sub_f32 v{44+i}, v{24+i}, v40")
    A("v_mul_f32 v42, v44, v44")
    A("v_mul_f32 v43, v45, v45")
    for i in range(2, 16): A(f"v_fmac_f32 v{42+(i&1)}, v{44+i}, v{44+i}")
    A("s_mov_b32 s56, 0x0fffffff\ns_mov_b32 s57, 0x0fffffff")
    A("v_add_f32 v42, v42, v43")
    A("v_cndmask_b32 v42, 0, v42, s[56:57]")
    halfreduce(42, 41)
    A(f"v_mul_f32 v42, 0x{f2u(1.0/448):08x}, v42")
    A("v_cvt_pk_bf16_f32 v41, v40, v42")
    A("v_lshlrev_b32 v40, 16, v41")
    A("v_and_b32 v42, 0xffff0000, v41")
    A(f"v_add_f32 v42, 0x{f2u(1e-5):08x}, v42")
    A("v_cvt_pk_bf16_f32 v42, v42, v42")
    A("v_lshlrev_b32 v42, 16, v42")
    A("v_sqrt_f32 v42, v42")
    A("s_nop 0")
    A("v_cvt_pk_bf16_f32 v42, v42, v42")
    A("v_lshlrev_b32 v42, 16, v42")
    A("v_rcp_f32 v42, v42")
    for i in range(16): A(f"v_sub_f32 v{44+i}, v{24+i}, v40")
    for i in range(8): A(f"v_cvt_pk_bf16_f32 v{16+i}, v{44+2*i}, v{45+2*i}")
    for i in range(8):
        A(f"v_lshlrev_b32 v{44+2*i}, 16, v{16+i}")
        A(f"v_and_b32 v{45+2*i}, 0xffff0000, v{16+i}")
    for i in range(16): A(f"v_mul_f32 v{44+i}, v{44+i}, v42")
    for i in range(8): A(f"v_cvt_pk_bf16_f32 v{16+i}, v{44+2*i}, v{45+2*i}")
    A(f"s_mul_i32 {sT0}, {sWV}, {2*XN_STR}")
    A(f"s_add_u32 {sT0}, {sT0}, {XN_LDS}")
    A("v_lshrrev_b32 v9, 5, v0")
    A(f"v_mul_u32_u24 v9, {XN_STR}, v9")
    A("v_and_b32 v10, 31, v0")
    A("v_lshl_add_u32 v9, v10, 5, v9")
    A(f"v_add_u32 v9, {sT0}, v9")
    A("s_mov_b64 exec, s[56:57]")
    A("ds_write_b128 v9, v[16:19]")
    A("ds_write_b128 v9, v[20:23] offset:16")
    A("s_mov_b64 exec, -1")
    A("v_and_b32 v9, 7, v0")
    A(f"v_mul_u32_u24 v9, {XN_STR}, v9")
    A("v_lshl_add_u32 v9, v8, 4, v9")
    A(f"v_add_u32 v9, {XN_LDS}, v9")
    A("v_lshrrev_b32 v10, 2, v7")
    A("v_lshl_add_u32 v10, v8, 3, v10")
    A("v_and_b32 v12, 3, v7")
    A("v_lshlrev_b32 v12, 3, v12")
    A("v_lshl_add_u32 v11, v10, 7, v12")
    A(f"v_add_u32 v11, {CB_LDS}, v11")
    A("v_lshl_add_u32 v14, v10, 5, v12")
    A(f"v_add_u32 v14, {CB_LDS}, v14")
    A("v_mul_u32_u24 v10, 896, v10")
    A("v_add_u32 v10, v10, v12")
    A(f"s_lshl_b32 {sT0}, {sWV}, 12")
    A(f"s_add_u32 {sT0}, {sT0}, {CB_LDS}")
    A("v_lshlrev_b32 v13, 4, v0")
    A(f"v_add_u32 v13, {sT0}, v13")
    A(f"s_waitcnt vmcnt(0)")
    for i in range(4): A(f"ds_write_b128 v13, v[{64+4*i}:{67+4*i}] offset:{i*1024}")
    lds_inc(28, 12)
    A(f"s_add_u32 {sTAG0}, {sTAG0}, 1")
    stamp(1)
    A(f"s_cmp_eq_u32 {sWV}, 0")
    A("s_cbranch_scc1 L_svc")
    A("s_setprio 2")
    if opts.get("lateside", 0): lds_wait_ge(0, 1, 12, sleep=4)
    A(f"s_cmp_eq_u32 {sWV}, 1")
    A(f"s_cbranch_scc0 L_wostage")
    A(f"s_cmp_eq_u32 {sFV}, 0")
    A("s_cbranch_scc1 L_ffn_done")
    A("v_lshrrev_b32 v14, 3, v0")
    A("v_and_b32 v13, 7, v0")
    A("v_lshlrev_b32 v13, 4, v13")
    A(f"v_mul_u32_u24 v12, {sSTR}, v14")
    A("v_add_u32 v12, v12, v13")
    A("v_lshlrev_b32 v14, 4, v0")
    A(f"v_add_u32 v14, {CB_LDS}, v14")
    A(f"s_lshl_b32 {sSTR}, {sSTR}, 3")
    def wburst(lo, hi):
        for i in range(lo, hi):
            A(f"s_mul_i32 s{64+i-lo}, {sSTR}, {i}")
        for i in range(lo, hi):
            d = 96 + (i % 40)*4
            A(f"buffer_load_dwordx4 v[{d}:{d+3}], v12, {srd(W1_)}, s{64+i-lo} offen {WF}")
    wburst(0, 20); wburst(20, 40)
    stamp(2)
    A(f"s_cmp_eq_u32 {sFV}, 2")
    A("s_cbranch_scc0 L_ffn_act_ok")
    if opts.get("h2wait", 22): lds_wait_ge(16, opts.get("h2wait", 22), 72, sleep=16)
    A(f"s_mul_i32 {sT0}, {sKQ}, 1792")
    A(f"s_add_u32 {sT0}, {sT0}, {WS_H}")
    for b_ in range(8): A(f"s_add_u32 s{64+b_}, {sT0}, {b_*7168}")
    A("v_lshlrev_b32 v13, 4, v0")
    A(f"s_mov_b32 {sCNT}, 0")
    A("s_mov_b32 exec_hi, 0x00ffffff")
    A("L_hpoll:")
    for b_ in range(8):
        for hf in range(2):
            d = 16 + (b_*2+hf)*4
            A(f"buffer_load_dwordx4 v[{d}:{d+3}], v13, {srd(WS_)}, s{64+b_} offen offset:{hf*896} sc1")
    A(f"s_add_u32 {sCNT}, {sCNT}, 1")
    A(f"s_cmp_gt_u32 {sCNT}, {SPIN}")
    A("s_cbranch_scc1 L_hpoll_x")
    A("s_waitcnt vmcnt(0)")
    for i in range(16):
        d = 16 + i*4
        if i == 0: A(f"v_cmp_ne_u64 s[56:57], {sTAG}, v[{d+2}:{d+3}]")
        else:
            A(f"v_cmp_ne_u64 vcc, {sTAG}, v[{d+2}:{d+3}]")
            A("s_or_b64 s[56:57], s[56:57], vcc")
    A("s_and_b64 exec, exec, s[56:57]")
    A("s_cbranch_execz L_hpoll_x")
    A("s_sleep 16")
    A("s_branch L_hpoll")
    A("L_hpoll_x:")
    A("s_mov_b32 exec_lo, -1\ns_mov_b32 exec_hi, 0x00ffffff")
    A("s_waitcnt vmcnt(0)")
    A("v_lshlrev_b32 v13, 3, v0")
    A(f"v_add_u32 v13, {H2_LDS}, v13")
    for b_ in range(8):
        for hf in range(2):
            d = 16 + (b_*2+hf)*4
            A(f"ds_write_b64 v13, v[{d}:{d+1}] offset:{b_*XN_STR + hf*448}")
        if b_ % 4 == 3: A("s_waitcnt lgkmcnt(0)")
    A("s_mov_b64 exec, -1")
    A(f"v_add_u32 v9, {H2_LDS - XN_LDS}, v9")
    A("L_ffn_act_ok:")
    lds_wait_ge(4, 1, 72)
    def ffn_issue(t, tl):
        b = 32 + (t % 2)*20
        A(f"ds_read_b128 v[{b}:{b+3}], v9 offset:{t*64}")
        for ct in range(4):
            A(f"ds_read_b64_tr_b16 v[{b+4+ct*4}:{b+5+ct*4}], v11 offset:{tl*4096+ct*32}")
            A(f"ds_read_b64_tr_b16 v[{b+6+ct*4}:{b+7+ct*4}], v11 offset:{tl*4096+ct*32+512}")
    issued = 40
    for (lo, hi) in [(0,16),(16,32),(32,48),(48,56)]:
        A(f"s_waitcnt vmcnt({issued - hi})")
        for i in range(lo, hi):
            d = 96 + (i % 40)*4
            A(f"ds_write_b128 v14, v[{d}:{d+3}] offset:{(i-lo)*1024}")
            if (i-lo) % 8 == 7: A("s_waitcnt lgkmcnt(4)")
        A("s_waitcnt lgkmcnt(0)")
        nxt = min(56, hi + 40)
        if nxt > issued:
            wburst(issued, nxt); issued = nxt
        t0 = lo // 4; nt = (hi-lo)//4
        ffn_issue(t0, 0)
        for tl in range(nt):
            t = t0 + tl
            if tl+1 < nt:
                A("s_waitcnt lgkmcnt(4)")
                ffn_issue(t+1, tl+1)
                A("s_waitcnt lgkmcnt(9)")
            else:
                A("s_waitcnt lgkmcnt(0)")
            b = 32 + (t % 2)*20
            for ct in range(4):
                c = "0" if t == 0 else f"v[{16+ct*4}:{19+ct*4}]"
                A(f"v_mfma_f32_16x16x32_bf16 v[{16+ct*4}:{19+ct*4}], v[{b+4+ct*4}:{b+7+ct*4}], v[{b}:{b+3}], {c}")
    stamp(3)
    A(f"v_mov_b32 v92, {sTAG0}\nv_mov_b32 v93, {sTAG1}")
    A("v_and_b32 v12, 7, v0")
    A("v_bfe_u32 v13, v0, 3, 1")
    A("s_mov_b32 s58, 0xff00ff00\ns_mov_b32 s59, 0xff00ff00")
    A(f"s_cmp_eq_u32 {sFV}, 2")
    A("s_cbranch_scc1 L_ffn_out2")
    A("v_mul_u32_u24 v12, 7168, v12")
    A("v_lshl_add_u32 v12, v8, 4, v12")
    A("v_lshl_add_u32 v12, v13, 6, v12")
    A(f"s_lshl_b32 {sSO}, {sHS}, 8")
    A(f"s_add_u32 {sSO}, {sSO}, {WS_H}")
    for ct in range(4):
        for r in range(4): A(f"v_max_f32 v{16+ct*4+r}, 0, v{16+ct*4+r}")
        A(f"v_cvt_pk_bf16_f32 v{16+ct*4}, v{16+ct*4}, v{17+ct*4}")
        A(f"v_cvt_pk_bf16_f32 v{17+ct*4}, v{18+ct*4}, v{19+ct*4}")
    for cp in range(2):
        o = 96 + 4*cp
        A(f"v_cndmask_b32 v{o}, v{16+cp*8}, v{20+cp*8}, s[58:59]")
        A(f"v_cndmask_b32 v{o+1}, v{17+cp*8}, v{21+cp*8}, s[58:59]")
        A(f"v_mov_b32 v{o+2}, v92\nv_mov_b32 v{o+3}, v93")
    for cp in range(2):
        o = 96 + 4*cp
        A(f"buffer_store_dwordx4 v[{o}:{o+3}], v12, {srd(WS_)}, {sSO} offen offset:{cp*128} sc1")
    A("s_branch L_ffn_done")
    A("L_ffn_out2:")
    A("v_mul_u32_u24 v12, 3584, v12")
    A("v_lshl_add_u32 v12, v8, 5, v12")
    A("v_lshl_add_u32 v12, v13, 4, v12")
    A(f"s_mul_i32 {sSO}, {sKQ}, {8*3584}")
    A(f"s_lshl_b32 {sT0}, {sFC}, 9")
    A(f"s_add_u32 {sSO}, {sSO}, {sT0}")
    A(f"s_add_u32 {sSO}, {sSO}, {WS_FP}")
    for ct in range(4):
        d = 16 + 4*ct; o = 96 + 4*ct
        A(f"v_cndmask_b32 v{o}, v92, v{d+2}, s[58:59]")
        A(f"v_cndmask_b32 v{o+1}, v93, v{d+3}, s[58:59]")
        A(f"v_cndmask_b32 v{o+2}, v{d}, v92, s[58:59]")
        A(f"v_cndmask_b32 v{o+3}, v{d+1}, v93, s[58:59]")
    for ct in range(4):
        o = 96 + 4*ct
        A(f"buffer_store_dwordx4 v[{o}:{o+3}], v12, {srd(WS_)}, {sSO} offen offset:{ct*128} sc1")
    A("L_ffn_done:")
    lds_set(24, 12)
    stamp(4)
    A("s_branch L_helper_end")

    A("L_svc:")
    lds_wait_ge(28, 4, 12, sleep=0)
    def q_issue(t):
        b = 24 + (t % 5)*8
        A(f"ds_read_b128 v[{b}:{b+3}], v9 offset:{t*64}")
        A(f"ds_read_b64_tr_b16 v[{b+4}:{b+5}], v14 offset:{t*1024}")
        A(f"ds_read_b64_tr_b16 v[{b+6}:{b+7}], v14 offset:{t*1024+128}")
    for t in range(4): q_issue(t)
    for t in range(14):
        rem = min(13, t+3) - t
        A(f"s_waitcnt lgkmcnt({rem*3})")
        b = 24 + (t % 5)*8
        c = "0" if t == 0 else "v[16:19]"
        A(f"v_mfma_f32_16x16x32_bf16 v[16:19], v[{b+4}:{b+7}], v[{b}:{b+3}], {c}")
        if t+4 < 14: q_issue(t+4)
    A("v_lshlrev_b32 v12, 14, v7")
    A("v_lshl_add_u32 v12, v8, 4, v12")
    A(f"s_lshl_b32 {sSO}, {sP}, 6")
    A(f"s_add_u32 {sSO}, {sSO}, {WS_Q}")
    A("s_nop 3")
    A("v_cvt_pk_bf16_f32 v16, v16, v17")
    A("v_cvt_pk_bf16_f32 v17, v18, v19")
    A(f"v_mov_b32 v18, {sTAG0}\nv_mov_b32 v19, {sTAG1}")
    A("s_mov_b32 exec_lo, 0x00ff00ff\ns_mov_b32 exec_hi, 0x00ff00ff")
    A(f"buffer_store_dwordx4 v[16:19], v12, {srd(WS_)}, {sSO} offen sc1")
    A("s_mov_b64 exec, -1")
    lds_set(4, 20)
    stamp(2)
    A(f"s_lshl_b32 {sSO}, {sB}, 14")
    A(f"s_lshl_b32 {sT0}, {sHKV}, 11")
    A(f"s_add_u32 {sSO}, {sSO}, {sT0}")
    A(f"s_add_u32 {sSO}, {sSO}, {WS_Q}")
    A("v_lshlrev_b32 v12, 4, v0")
    A(f"s_mov_b32 {sCNT}, 0")
    A("L_qpoll:")
    A(f"buffer_load_dwordx4 v[24:27], v12, {srd(WS_)}, {sSO} offen sc1")
    A(f"buffer_load_dwordx4 v[28:31], v12, {srd(WS_)}, {sSO} offen offset:1024 sc1")
    A(f"s_add_u32 {sCNT}, {sCNT}, 1")
    A(f"s_cmp_gt_u32 {sCNT}, {SPIN}")
    A("s_cbranch_scc1 L_qpoll_x")
    A("s_waitcnt vmcnt(0)")
    A(f"v_cmp_ne_u64 vcc, {sTAG}, v[26:27]")
    A(f"v_cmp_ne_u64 s[56:57], {sTAG}, v[30:31]")
    A("s_or_b64 vcc, vcc, s[56:57]")
    A("s_and_b64 exec, exec, vcc")
    A("s_cbranch_execnz L_qpoll")
    A("L_qpoll_x:")
    A("s_mov_b64 exec, -1")
    A("s_waitcnt vmcnt(0)")
    stamp(4)
    A("v_lshlrev_b32 v12, 3, v0")
    A(f"v_add_u32 v12, {Q_LDS}, v12")
    A("ds_write_b64 v12, v[24:25]")
    A("ds_write_b64 v12, v[28:29] offset:512")
    lds_set(0, 12)
    A("s_branch L_helper_end")

    A("L_wostage:")
    A(f"s_cmp_eq_u32 {sWV}, 2")
    A("s_cbranch_scc0 L_nogc")
    A(f"s_cmp_eq_u32 {sSPL}, 0")
    A("s_cbranch_scc0 L_nogc")
    A(f"v_mov_b32 v16, 0\nv_mov_b32 v17, 0\nv_mov_b32 v18, {sTAG0}\nv_mov_b32 v19, {sTAG1}")
    A(f"s_lshl_b32 {sSO}, {sHS}, 7")
    A(f"s_add_u32 {sSO}, {sSO}, {WS_GC}")
    A("s_mov_b64 exec, 1")
    A(f"buffer_store_dwordx4 v[16:19], v16, {srd(WS_)}, {sSO} offen sc1")
    A("s_mov_b64 exec, -1")
    A("L_nogc:")
    A(f"s_sub_u32 {sT0}, {sWV}, 2")
    A(f"s_mul_i32 {sT1}, {sT0}, 57344")
    A(f"s_mul_i32 {sT0}, {sT0}, 229376")
    A("v_lshlrev_b32 v12, 4, v0")
    A(f"v_add_u32 v13, {sT1}, v12")
    for i in range(14): A(f"s_add_u32 s{64+i}, {sT0}, {i*4096}")
    for i in range(56):
        d = 32 + i*4
        A(f"buffer_load_dwordx4 v[{d}:{d+3}], v12, {srd(WO_)}, s{64+i//4} offen offset:{(i%4)*1024} {WOF}")
        if i % opts.get("woburst", 14) == opts.get("woburst", 14)-1: A("s_nop 0")
    stamp(2)
    for c in range(7):
        A(f"s_waitcnt vmcnt({48-8*c})")
        for i in range(8*c, 8*c+8):
            d = 32 + i*4
            A(f"ds_write_b128 v13, v[{d}:{d+3}] offset:{WO_LDS + i*1024}")
        A("s_waitcnt lgkmcnt(4)")
    lds_inc(20, 12)
    stamp(4)

    A("L_helper_end:")
    lds_wait_ge(20, 2, 12, sleep=8)
    A(f"s_mul_i32 {sT0}, {sWV}, 224")
    A(f"v_add_u32 v12, {sT0}, v10")
    A(f"v_add_u32 v13, 57344, v12")
    for tl in range(7):
        for t in range(4):
            b = 128 + (tl*4+t)*4
            va = 12 if t < 2 else 13
            off = WO_LDS + (t % 2)*32*896 + tl*32
            A(f"ds_read_b64_tr_b16 v[{b}:{b+1}], v{va} offset:{off}")
            A(f"ds_read_b64_tr_b16 v[{b+2}:{b+3}], v{va} offset:{off+4*896}")
        A("s_waitcnt lgkmcnt(4)")
    stamp(5)
    if opts.get("hprio") is not None: A(f"s_setprio {opts['hprio']}")
    if opts.get("stop") == 1: A("s_branch L_fin")
    if opts.get("stop") == 2:
        lds_wait_ge(16, THRESH, 12, sleep=8)
        lds_wait_ge(8, 4, 12, sleep=2)
        A("s_branch L_fin")
    A(f"s_lshl_b32 {sT0}, {sWV}, 2")
    A(f"s_add_u32 {sT0}, {sT0}, {SY_LDS+32}")
    A(f"v_mov_b32 v16, {sT0}")
    A(f"s_lshl_b32 {sT0}, {sWV}, 3")
    A(f"s_add_u32 {sT0}, {sT0}, {SY_LDS+64}")
    A(f"v_mov_b32 v17, {sT0}")
    A(f"v_mov_b32 v18, {SY_LDS+16}")
    A("v_mov_b32 v19, 0")
    A(f"s_lshl_b32 {sSO}, {sHS}, 7")
    A(f"s_add_u32 {sSO}, {sSO}, {WS_GC}")
    A(f"s_mov_b32 {sSEQ}, 0")
    A(f"s_mov_b32 {sMODE}, 0")
    A("s_mov_b64 exec, 1")
    A(f"s_mov_b32 {sCNT}, 0")
    A("L_serve_gt:")
    A(f"buffer_load_dwordx4 v[24:27], v19, {srd(WS_)}, {sSO} offen sc1")
    A(f"s_add_u32 {sCNT}, {sCNT}, 1")
    A(f"s_cmp_gt_u32 {sCNT}, {SPIN}")
    A("s_cbranch_scc1 L_serve")
    A("s_waitcnt vmcnt(0)")
    A(f"v_cmp_ne_u64 vcc, {sTAG}, v[26:27]")
    A("s_cbranch_vccnz L_serve_gt")
    A("L_serve:")
    A(f"s_add_u32 {sSEQ}, {sSEQ}, 1")
    A(f"s_mov_b32 {sCNT}, 0")
    A("L_serve_w:")
    A("ds_read_b32 v20, v16")
    A(f"s_add_u32 {sCNT}, {sCNT}, 1")
    A(f"s_cmp_gt_u32 {sCNT}, {SPIN}")
    A("s_cbranch_scc1 L_serve_x")
    A("s_waitcnt lgkmcnt(0)")
    A(f"v_cmp_le_u32 vcc, {sSEQ}, v20")
    A("s_cbranch_vccnz L_serve_go")
    A(f"s_sleep {opts.get('svsleep', 2)}")
    A("s_branch L_serve_w")
    A("L_serve_go:")
    A(f"s_cmp_eq_u32 {sMODE}, 0")
    A("s_cbranch_scc0 L_serve_g2")
    A("v_mov_b32 v28, 1")
    A("ds_add_rtn_u32 v28, v18, v28")
    A("s_waitcnt lgkmcnt(0)")
    A(f"v_readfirstlane_b32 {sT0}, v28")
    A(f"s_add_u32 {sT1}, {sT0}, {sLB}")
    A(f"s_cmp_lt_u32 {sT0}, {NLOC - opts.get('pfat', 4)}")
    A("s_cbranch_scc1 L_serve_resp")
    if opts.get("npool", 2) < 4:
        A(f"s_cmp_lt_u32 {sWV}, {opts.get('npool', 2)}")
        A("s_cbranch_scc1 L_serve_g0")
        A(f"s_cmp_lt_u32 {sT0}, {NLOC}")
        A(f"s_cselect_b32 {sT1}, {sT1}, 0xffff")
        A("s_branch L_serve_resp")
        A("L_serve_g0:")
    A(f"s_mov_b32 {sMODE}, 1")
    A("v_mov_b32 v21, 1")
    A(f"buffer_atomic_add v21, v19, {srd(WS_)}, {sSO} offen sc0 sc1")
    A(f"s_cmp_lt_u32 {sT0}, {NLOC}")
    A("s_cbranch_scc1 L_serve_resp")
    A("L_serve_g2:")
    A("s_waitcnt vmcnt(0)")
    A(f"v_readfirstlane_b32 {sT0}, v21")
    A(f"s_and_b32 {sT1}, {sT0}, 3")
    A(f"s_lshl_b32 {sT1}, {sT1}, 6")
    A(f"s_lshr_b32 {sT2}, {sT0}, 2")
    A(f"s_add_u32 {sT1}, {sT1}, {sT2}")
    A(f"s_add_u32 {sT1}, {sT1}, {NLOC}")
    A(f"s_cmp_lt_u32 {sT0}, {4*(64-NLOC)}")
    A("s_cbranch_scc0 L_serve_end")
    A("v_mov_b32 v21, 1")
    A(f"buffer_atomic_add v21, v19, {srd(WS_)}, {sSO} offen sc0 sc1")
    A("s_branch L_serve_resp")
    A("L_serve_end:")
    A("v_mov_b32 v28, 1")
    A("ds_add_rtn_u32 v28, v18, v28")
    A("s_waitcnt lgkmcnt(0)")
    A(f"v_readfirstlane_b32 {sT0}, v28")
    A(f"s_add_u32 {sT1}, {sT0}, {sLB}")
    A(f"s_cmp_lt_u32 {sT0}, {NLOC}")
    A(f"s_cselect_b32 {sT1}, {sT1}, 0xffff")
    A("L_serve_resp:")
    A(f"v_mov_b32 v22, {sSEQ}")
    A(f"v_mov_b32 v23, {sT1}")
    A("ds_write_b64 v17, v[22:23]")
    A(f"s_cmp_lt_u32 {sT1}, 256")
    A("s_cbranch_scc1 L_serve")
    A("L_serve_x:")
    A("s_mov_b64 exec, -1")
    A("s_waitcnt lgkmcnt(0)")
    stamp(7)
    def gather(prefix, nload, last_half, base_s, pstride, vb, sleep):
        A("v_lshrrev_b32 v20, 3, v0")
        A(f"v_mul_u32_u24 v20, {pstride}, v20")
        A("v_and_b32 v21, 7, v0")
        A("v_lshl_add_u32 v20, v21, 4, v20")
        for i in range(1, 4): A(f"v_add_u32 v{20+i}, {i*8*pstride}, v20")
        if last_half:
            A("v_cmp_gt_u32 vcc, 32, v0")
            A("s_nop 1")
            A("v_cndmask_b32 v23, v22, v23, vcc")
        A(f"s_mov_b32 {sCNT}, 0")
        A("s_mov_b32 s58, 0xaaaaaaaa\ns_mov_b32 s59, 0xaaaaaaaa")
        A(f"L_{prefix}poll:")
        for i in range(3): A(f"buffer_load_dwordx4 v[{vb+4*i}:{vb+3+4*i}], v{20+i}, {srd(WS_)}, {base_s} offen sc1")
        A(f"buffer_load_dwordx4 v[{vb+12}:{vb+15}], v23, {srd(WS_)}, {base_s} offen sc1")
        A(f"s_add_u32 {sCNT}, {sCNT}, 1")
        A(f"s_cmp_gt_u32 {sCNT}, {SPIN}")
        A(f"s_cbranch_scc1 L_{prefix}poll_x")
        for i in range(4):
            b = vb+4*i
            A(f"s_waitcnt vmcnt({3-i})")
            A(f"v_cndmask_b32 v40, v{b}, v{b+2}, s[58:59]")
            A(f"v_cndmask_b32 v41, v{b+1}, v{b+3}, s[58:59]")
            if i == 0: A(f"v_cmp_ne_u64 s[56:57], {sTAG}, v[40:41]")
            else:
                A(f"v_cmp_ne_u64 vcc, {sTAG}, v[40:41]")
                A("s_or_b64 s[56:57], s[56:57], vcc")
        A("s_and_b64 exec, exec, s[56:57]")
        A(f"s_cbranch_execz L_{prefix}poll_x")
        if sleep: A(f"s_sleep {sleep}")
        A(f"s_branch L_{prefix}poll")
        A(f"L_{prefix}poll_x:")
        A("s_mov_b64 exec, -1")
        A("s_waitcnt vmcnt(0)")
        for i in range(4):
            b = vb+4*i
            A(f"v_cndmask_b32 v{40+2*i}, v{b+2}, v{b}, s[58:59]")
            A(f"v_cndmask_b32 v{41+2*i}, v{b+3}, v{b+1}, s[58:59]")
        if last_half: A("v_cmp_gt_u32 vcc, 32, v0")
        A("v_add_f32 v40, v40, v42\nv_add_f32 v41, v41, v43")
        if last_half: A("v_cndmask_b32 v46, 0, v46, vcc\nv_cndmask_b32 v47, 0, v47, vcc")
        A("v_add_f32 v44, v44, v46\nv_add_f32 v45, v45, v47")
        A("v_add_f32 v40, v40, v44\nv_add_f32 v41, v41, v45")
        A("s_nop 1")
        A("v_add_f32_dpp v40, v40, v40 row_ror:8 row_mask:0xf bank_mask:0xf")
        A("v_add_f32_dpp v41, v41, v41 row_ror:8 row_mask:0xf bank_mask:0xf")
        xreduce2(40, 41, 42, 43)
    A(f"s_cmp_eq_u32 {sWV}, 3")
    A("s_cbranch_scc0 L_nofg")
    A(f"s_cmp_lt_u32 {sHKV}, 7")
    A("s_cbranch_scc0 L_nofg")
    A(f"s_mul_i32 {sSO2}, {sB}, 896")
    A(f"s_lshl_b32 {sT0}, {sCS}, 5")
    A(f"s_add_u32 {sSO2}, {sSO2}, {sT0}")
    A("v_and_b32 v14, 7, v0")
    A("v_lshlrev_b32 v14, 2, v14")
    A(f"buffer_load_dword v19, v14, {srd(X_)}, {sSO2} offen")
    if opts.get("touch", 0): A(f"buffer_load_dword v44, v14, {srd(OUT_)}, {sSO2} offen")
    A(f"s_mul_i32 {sSO}, {sB}, 3584")
    A(f"s_lshl_b32 {sT0}, {sCS}, 7")
    A(f"s_add_u32 {sSO}, {sSO}, {sT0}")
    A(f"s_add_u32 {sSO}, {sSO}, {WS_FP}")
    A("v_bfe_u32 v20, v0, 3, 2")
    A(f"v_mul_u32_u24 v20, {8*3584}, v20")
    A("v_and_b32 v21, 7, v0")
    A("v_lshl_add_u32 v20, v21, 4, v20")
    A(f"s_mov_b32 {sCNT}, 0")
    A("s_mov_b32 s58, 0xaaaaaaaa\ns_mov_b32 s59, 0xaaaaaaaa")
    A("L_fpoll:")
    A(f"buffer_load_dwordx4 v[24:27], v20, {srd(WS_)}, {sSO} offen sc1")
    A(f"s_add_u32 {sCNT}, {sCNT}, 1")
    A(f"s_cmp_gt_u32 {sCNT}, {SPIN}")
    A("s_cbranch_scc1 L_fpoll_x")
    A("s_waitcnt vmcnt(0)")
    A("v_cndmask_b32 v40, v24, v26, s[58:59]")
    A("v_cndmask_b32 v41, v25, v27, s[58:59]")
    A(f"v_cmp_ne_u64 vcc, {sTAG}, v[40:41]")
    A("s_cbranch_vccz L_fpoll_x")
    A("s_sleep 8")
    A("s_branch L_fpoll")
    A("L_fpoll_x:")
    A("s_waitcnt vmcnt(0)")
    A("v_cndmask_b32 v40, v26, v24, s[58:59]")
    A("v_cndmask_b32 v41, v27, v25, s[58:59]")
    A("s_nop 1")
    A("v_add_f32_dpp v40, v40, v40 row_ror:8 row_mask:0xf bank_mask:0xf")
    A("v_add_f32_dpp v41, v41, v41 row_ror:8 row_mask:0xf bank_mask:0xf")
    A("v_mov_b32 v42, v40\nv_mov_b32 v43, v41")
    A("s_nop 0")
    A("v_permlane16_swap_b32 v40, v42")
    A("v_permlane16_swap_b32 v41, v43")
    A("s_nop 0")
    A("v_add_f32 v40, v40, v42\nv_add_f32 v41, v41, v43")
    A("v_cvt_pk_bf16_f32 v42, v40, v41")
    A("v_lshlrev_b32 v40, 16, v42\nv_and_b32 v41, 0xffff0000, v42")
    for r in range(2): A(f"v_mul_f32 v{42+r}, 0x{f2u(-math.log2(math.e)):08x}, v{40+r}")
    for r in range(2): A(f"v_exp_f32 v{42+r}, v{42+r}")
    A("s_nop 0")
    for r in range(2): A(f"v_add_f32 v{42+r}, 1.0, v{42+r}")
    for r in range(2): A(f"v_rcp_f32 v{42+r}, v{42+r}")
    A("s_nop 0")
    for r in range(2): A(f"v_mul_f32 v{40+r}, v{40+r}, v{42+r}")
    A("v_cvt_pk_bf16_f32 v42, v40, v41")
    A("v_lshlrev_b32 v16, 16, v42\nv_and_b32 v17, 0xffff0000, v42")
    A("v_lshlrev_b32 v18, 16, v19\nv_and_b32 v19, 0xffff0000, v19")
    stamp(6)
    A("L_nofg:")
    A(f"s_lshl_b32 {sT0}, {sB}, 5")
    A(f"s_add_u32 {sT0}, {sT0}, {sCS}")
    A(f"s_mul_i32 {sSO2}, {sT0}, 3584")
    A(f"s_mul_i32 {sT0}, {sWV}, 896")
    A(f"s_add_u32 {sSO2}, {sSO2}, {sT0}")
    A(f"s_add_u32 {sSO2}, {sSO2}, {WS_SP}")
    A("v_and_b32 v11, 1, v0")
    A("v_lshlrev_b32 v11, 4, v11")
    A("v_lshl_add_u32 v11, v8, 5, v11")
    A(f"v_lshlrev_b32 v9, 4, v8")
    A(f"v_add_u32 v9, {O_LDS}, v9")
    A(f"s_cmp_eq_u32 {sWV}, 0")
    A("s_cbranch_scc0 L_wait_o")
    A("v_lshlrev_b32 v12, 10, v8")
    A("v_lshl_add_u32 v12, v7, 4, v12")
    A(f"s_lshl_b32 {sT0}, {sSPL}, 8")
    A(f"v_add_u32 v12, {sT0}, v12")
    A("v_lshlrev_b32 v13, 4, v8")
    A(f"s_and_b32 {sT0}, {sSLOT}, 0xfc")
    A(f"s_mul_i32 {sSO}, {sT0}, {OP_STR}")
    A(f"s_add_u32 {sSO}, {sSO}, {WS_OP}")
    for s_ in range(4): A(f"s_add_u32 s{64+s_}, {sSO}, {s_*OP_STR}")
    if opts.get("gwarm", 1):
        A("s_mov_b32 exec_hi, 0")
        for s_ in range(4): A(f"buffer_load_dwordx4 v[{48+4*s_}:{51+4*s_}], v12, {srd(WS_)}, s{64+s_} offen sc1")
        for s_ in range(4): A(f"buffer_load_dwordx4 v[{64+4*s_}:{67+4*s_}], v13, {srd(WS_)}, s{64+s_} offen offset:2048 sc1")
        A("s_mov_b32 exec_hi, -1")
        lds_wait_ge(8, 4, 82, sleep=1)
    A(f"s_mov_b32 {sCNT}, 0")
    A("s_mov_b32 exec_hi, 0")
    A("L_gpoll:")
    for s_ in range(4): A(f"buffer_load_dwordx4 v[{48+4*s_}:{51+4*s_}], v12, {srd(WS_)}, s{64+s_} offen sc1")
    for s_ in range(4): A(f"buffer_load_dwordx4 v[{64+4*s_}:{67+4*s_}], v13, {srd(WS_)}, s{64+s_} offen offset:2048 sc1")
    A(f"s_add_u32 {sCNT}, {sCNT}, 1")
    A(f"s_cmp_gt_u32 {sCNT}, {SPIN}")
    A("s_cbranch_scc1 L_gpoll_x")
    for i in range(8):
        A(f"s_waitcnt vmcnt({7-i})")
        if i == 0: A(f"v_cmp_ne_u64 s[56:57], {sTAG}, v[50:51]")
        else:
            A(f"v_cmp_ne_u64 vcc, {sTAG}, v[{50+4*i}:{51+4*i}]")
            A("s_or_b64 s[56:57], s[56:57], vcc")
    A("s_cmp_lg_u64 s[56:57], 0")
    A("s_cbranch_scc0 L_gpoll_x")
    if opts.get("gsleep", 1): A(f"s_sleep {opts.get('gsleep', 1)}")
    A("s_branch L_gpoll")
    A("L_gpoll_x:")
    A("s_waitcnt vmcnt(0)")
    stamp(8)
    A("v_max3_f32 v80, v64, v68, v72")
    A("v_max_f32 v80, v80, v76")
    for s_ in range(4): A(f"v_sub_f32 v{64+4*s_}, v{64+4*s_}, v80")
    for s_ in range(4): A(f"v_exp_f32 v{64+4*s_}, v{64+4*s_}")
    for s_ in range(4):
        A(f"v_lshlrev_b32 v{84+4*s_}, 16, v{48+4*s_}")
        A(f"v_and_b32 v{85+4*s_}, 0xffff0000, v{48+4*s_}")
        A(f"v_lshlrev_b32 v{86+4*s_}, 16, v{49+4*s_}")
        A(f"v_and_b32 v{87+4*s_}, 0xffff0000, v{49+4*s_}")
    A("v_mul_f32 v81, v64, v65")
    for s_ in range(1, 4): A(f"v_fmac_f32 v81, v{64+4*s_}, v{65+4*s_}")
    A("v_rcp_f32 v81, v81")
    for e in range(4): A(f"v_mul_f32 v{84+e}, v64, v{84+e}")
    for s_ in range(1, 4):
        for e in range(4): A(f"v_fmac_f32 v{84+e}, v{64+4*s_}, v{84+4*s_+e}")
    for e in range(4): A(f"v_mul_f32 v{84+e}, v{84+e}, v81")
    A("v_cvt_pk_bf16_f32 v84, v84, v85")
    A("v_cvt_pk_bf16_f32 v85, v86, v87")
    A("v_lshlrev_b32 v12, 3, v0")
    A(f"v_add_u32 v12, {O_LDS}, v12")
    A("ds_write_b64 v12, v[84:85]")
    A("s_mov_b64 exec, -1")
    lds_set(12, 12)
    A("s_branch L_gemv")
    A("L_wait_o:")
    lds_wait_ge(8, 4, 12, sleep=2)
    lds_wait_ge(12, 1, 12, sleep=opts.get("osleep", 1))
    A("L_gemv:")
    for t in range(4): A(f"ds_read_b128 v[{48+4*t}:{51+4*t}], v9 offset:{t*64}")
    A("s_mov_b32 s58, 0xaaaaaaaa\ns_mov_b32 s59, 0xaaaaaaaa")
    DB = 64
    A(f"v_mov_b32 v92, {sTAG0}\nv_mov_b32 v93, {sTAG1}")
    A("s_mov_b32 s56, 0x00030003\ns_mov_b32 s57, 0x00030003")
    A(f"s_waitcnt lgkmcnt(0)")
    def gstore(tl):
        d = DB + 4*tl; o = 96 + 4*tl
        A(f"v_cndmask_b32 v{o}, v92, v{d+2}, s[58:59]")
        A(f"v_cndmask_b32 v{o+1}, v93, v{d+3}, s[58:59]")
        A(f"v_cndmask_b32 v{o+2}, v{d}, v92, s[58:59]")
        A(f"v_cndmask_b32 v{o+3}, v{d+1}, v93, s[58:59]")
        A("s_mov_b64 exec, s[56:57]")
        A(f"buffer_store_dwordx4 v[{o}:{o+3}], v11, {srd(WS_)}, {sSO2} offen offset:{tl*128} sc1")
        A("s_mov_b64 exec, -1")
    for tl in range(7):
        for t in range(4):
            d = DB + 4*tl
            c = "0" if t == 0 else f"v[{d}:{d+3}]"
            b = 128 + (tl*4+t)*4
            A(f"v_mfma_f32_16x16x32_bf16 v[{d}:{d+3}], v[{b}:{b+3}], v[{48+4*t}:{51+4*t}], {c}")
        if tl >= 2: gstore(tl-2)
    gstore(5)
    A("s_nop 0")
    gstore(6)
    stamp(10)
    if opts.get("stop") == 3: A("s_branch L_fin")
    A(f"s_cmp_eq_u32 {sWV}, 3")
    A("s_cbranch_scc0 L_fin")
    A(f"s_cmp_lt_u32 {sHKV}, 7")
    A("s_cbranch_scc0 L_fin")
    A(f"s_mul_i32 {sSO}, {sB}, {32*3584}")
    A(f"s_lshl_b32 {sT0}, {sCS}, 7")
    A(f"s_add_u32 {sSO}, {sSO}, {sT0}")
    A(f"s_add_u32 {sSO}, {sSO}, {WS_SP}")
    A(f"s_mul_i32 {sSO2}, {sB}, 896")
    A(f"s_lshl_b32 {sT0}, {sCS}, 5")
    A(f"s_add_u32 {sSO2}, {sSO2}, {sT0}")
    gather("s", 4, False, sSO, 3584, 24, opts.get("ssleep", 1))
    stamp(12)
    A("v_cvt_pk_bf16_f32 v42, v40, v41")
    A("v_lshlrev_b32 v40, 16, v42\nv_and_b32 v41, 0xffff0000, v42")
    A("v_mul_f32 v40, v40, v16\nv_mul_f32 v41, v41, v17")
    A("v_cvt_pk_bf16_f32 v42, v40, v41")
    A("v_lshlrev_b32 v40, 16, v42\nv_and_b32 v41, 0xffff0000, v42")
    A("v_add_f32 v40, v18, v40\nv_add_f32 v41, v19, v41")
    A("v_cvt_pk_bf16_f32 v42, v40, v41")
    A("s_mov_b64 exec, 0xff")
    A(f"buffer_store_dword v42, v14, {srd(OUT_)}, {sSO2} offen {opts.get('oflags','')}")
    A("s_mov_b64 exec, -1")
    A(f"s_cmp_eq_u32 {sWG}, 0")
    A("s_cbranch_scc0 L_fin")
    A(f"v_mov_b32 v24, {sTAG0}\nv_mov_b32 v25, {sTAG1}\nv_mov_b32 v22, {WS_EP}")
    A("s_mov_b64 exec, 1")
    A(f"buffer_store_dwordx2 v[24:25], v22, {srd(WS_)}, 0 offen sc1")
    A("s_mov_b64 exec, -1")
    A("s_branch L_fin")

    A("L_stream:")
    A(f"s_add_u32 {sT2}, {sT3}, 32768")
    if opts.get("late1", 1): init_loads("A", sT3)
    init_loads("B", sT2)
    A(f"s_mov_b32 {sC}, 0x{f2u(CSC):08x}")
    A("s_mov_b32 s96, 0x00ff00ff\ns_mov_b32 s97, 0xff00ff00")
    A("v_and_b32 v9, 1, v0")
    A("v_lshlrev_b32 v9, 4, v9")
    A("v_mov_b32 v10, 0xffff")
    A("v_lshlrev_b32 v9, v9, v10")
    A("v_bfe_u32 v10, v0, 1, 2")
    for i in range(4):
        A(f"v_cmp_eq_u32 vcc, {i}, v10")
        A("s_nop 1")
        A(f"v_cndmask_b32 v{3+i}, 0, v9, vcc")
    A("s_waitcnt lgkmcnt(0)")
    A(f"s_add_u32 {sTAG0}, {sTAG0}, 1")
    A(f"s_mov_b32 {sMODE}, 0")
    A(f"s_mov_b32 {sSEQ}, 0")
    A(f"s_and_b32 {sT1}, {sWV}, 3")
    A(f"s_lshl_b32 {sT0}, {sT1}, 2")
    A(f"s_add_u32 {sT0}, {sT0}, {SY_LDS+32}")
    A(f"v_mov_b32 v80, {sT0}")
    A(f"s_lshl_b32 {sT0}, {sT1}, 3")
    A(f"s_add_u32 {sT0}, {sT0}, {SY_LDS+64}")
    A(f"v_mov_b32 v81, {sT0}")
    stamp(5)
    if not opts.get("noq"): lds_wait_ge(0, 1, 12)
    A("v_lshrrev_b32 v13, 3, v7")
    A("v_lshlrev_b32 v13, 9, v13")
    A("v_lshl_add_u32 v13, v8, 4, v13")
    A(f"v_add_u32 v13, {Q_LDS}, v13")
    for i in range(8):
        A(f"ds_read_b128 v[{16+4*i}:{19+4*i}], v13 offset:{i*64}")
    A(f"v_mov_b32 v74, {SY_LDS+16}")
    A("v_mov_b32 v75, 1")
    def post():
        A(f"s_add_u32 {sSEQ}, {sSEQ}, 1")
        A(f"v_mov_b32 v82, {sSEQ}")
        A("ds_write_b32 v80, v82")
    def grab():
        l1 = g.lab("gm"); l2 = g.lab("gd")
        A(f"s_cmp_eq_u32 {sMODE}, 0")
        A(f"s_cbranch_scc0 {l1}")
        A("s_mov_b64 exec, 1")
        A("ds_add_rtn_u32 v76, v74, v75")
        A("s_mov_b64 exec, -1")
        A(f"s_branch {l2}")
        A(f"{l1}:")
        post()
        A(f"{l2}:")
    def result(o):
        lm = g.lab("rm"); lw = g.lab("rw"); lh = g.lab("rh"); lx = g.lab("rx")
        A(f"s_cmp_eq_u32 {sMODE}, 0")
        A(f"s_cbranch_scc0 {lm}")
        A("s_waitcnt lgkmcnt(0)")
        A(f"v_readfirstlane_b32 {sT0}, v76")
        A(f"s_add_u32 {sNX}, {sT0}, {sLB}")
        A(f"s_cmp_lt_u32 {sT0}, {DLIM}")
        A(f"s_cbranch_scc1 {lh}")
        A(f"s_mov_b32 {sMODE}, 1")
        A(f"s_cmp_lt_u32 {sT0}, {NLOC}")
        A(f"s_cbranch_scc1 {lh}")
        post()
        A(f"{lm}:")
        A(f"s_mov_b32 {sCNT}, 0")
        A(f"s_mov_b32 {sNX}, 0xffff")
        A(f"{lw}:")
        A("ds_read_b64 v[76:77], v81")
        A(f"s_add_u32 {sCNT}, {sCNT}, 1")
        A(f"s_cmp_gt_u32 {sCNT}, {SPIN}")
        A(f"s_cbranch_scc1 {lx}")
        A("s_waitcnt lgkmcnt(0)")
        A(f"v_readfirstlane_b32 {sT0}, v76")
        A(f"v_readfirstlane_b32 {sNX}, v77")
        A(f"s_cmp_eq_u32 {sT0}, {sSEQ}")
        A(f"s_cbranch_scc1 {lx}")
        A(f"s_mov_b32 {sNX}, 0xffff")
        A("s_sleep 1")
        A(f"s_branch {lw}")
        A(f"{lx}:")
        A("s_waitcnt lgkmcnt(0)")
        A(f"s_cmp_lt_u32 {sNX}, 256")
        A(f"s_cbranch_scc0 L_noref_{o}")
        A(f"{lh}:")
    grab()
    A(f"v_mov_b32 v68, 0x{f2u(-1e30):08x}")
    A("v_mov_b32 v69, 0")
    for i in range(8): A(f"v_mov_b32 v{52+i}, 0")
    A("v_lshrrev_b32 v78, 1, v8")
    A("v_lshlrev_b32 v78, 10, v78")
    A("v_lshl_add_u32 v78, v7, 5, v78")
    A("v_and_b32 v79, 1, v8")
    A("v_lshl_add_u32 v78, v79, 4, v78")
    A(f"s_and_b32 {sT1}, {sWV}, 3")
    A(f"s_lshl_b32 {sT0}, {sT1}, 11")
    A(f"s_add_u32 {sT0}, {sT0}, {CB_LDS}")
    A(f"v_add_u32 v78, {sT0}, v78")
    A("v_lshrrev_b32 v79, 3, v7")
    A("v_lshlrev_b32 v79, 5, v79")
    A(f"s_lshl_b32 {sT0}, {sT1}, 3")
    A(f"s_add_u32 {sT0}, {sT0}, {ST_LDS}")
    A(f"v_add_u32 v79, {sT0}, v79")
    stamp(6)
    result("A")
    def ands(st, r):
        for i in range(4): A(f"v_and_b32 v{60+4*st+i}, v{48+r}, v{3+i}")
    def proc(sl, kind):
        o = "B" if sl == "A" else "A"
        base = SLOT[sl]
        A(f"L_{kind}_{sl}:")
        if kind == "full":
            A(f"s_lshl_b32 {sSO}, {sNX}, 13")
            grab()
        if kind == "noref":
            lds_wait_ge(24, 1, 70)
        A(f"s_waitcnt vmcnt({(8 if kind == 'last' else 24)*(2 if DUP else 1)})")
        if TS:
            A("s_memrealtime s[60:61]")
            A("s_add_u32 s41, s41, 1")
            A("s_waitcnt lgkmcnt(0)")
            A("s_mov_b32 m0, s41")
            A("s_nop 0")
            A("v_writelane_b32 v15, s60, m0")
        for i in range(8):
            c = "0" if i == 0 else "v[48:51]"
            A(f"v_mfma_f32_16x16x32_bf16 v[48:51], v[{base+4*i}:{base+4*i+3}], v[{16+4*i}:{19+4*i}], {c}")
        if kind == "full" and not B16: kloads(sl, sSO)
        else: A("s_nop 7")
        A("v_max3_f32 v70, v48, v49, v50")
        A("v_max_f32 v70, v70, v51")
        xreduce(70, 71, "v_max_f32")
        A(f"v_mul_f32 v70, {sC}, v70")
        A("v_max_f32 v70, v70, v68")
        A("v_sub_f32 v72, v68, v70")
        A("v_exp_f32 v72, v72")
        A("v_mov_b32 v68, v70")
        for r in range(4): A(f"v_fma_f32 v{48+r}, v{48+r}, {sC}, -v70")
        for r in range(4): A(f"v_exp_f32 v{48+r}, v{48+r}")
        A("v_mov_b32_dpp v73, v72 row_ror:8 row_mask:0xf bank_mask:0xf")
        A("v_mul_f32 v69, v69, v72")
        A(f"v_cndmask_b32 v73, v73, v72, {sAM}")
        for r in range(4):
            A(f"v_add_f32 v69, v69, v{48+r}")
            A(f"v_cvt_pk_bf16_f32 v{48+r}, v{48+r}, v{48+r}")
        for i in range(8): A(f"v_mul_f32 v{52+i}, v{52+i}, v73")
        ands(0, 0); ands(1, 1)
        if kind == "last":
            xreduce(69, 71, "v_add_f32")
            A("ds_write_b64 v79, v[68:69]")
        A(f"s_waitcnt vmcnt({ {'full':(16 if B16 else 24),'noref':16,'last':0}[kind]*(2 if DUP else 1) })")
        def pv(st, r):
            for hf in range(2):
                vb = base + 32 + (r*2+hf)*4
                A(f"v_mfma_f32_16x16x32_bf16 v[{52+4*hf}:{55+4*hf}], v[{60+4*st}:{63+4*st}], v[{vb}:{vb+3}], v[{52+4*hf}:{55+4*hf}]")
        pv(0, 0); ands(0, 2); pv(1, 1); ands(1, 3); pv(0, 2); pv(1, 3)
        if kind == "full":
            if B16: kloads(sl, sSO)
            vloads(sl, sSO)
            result(o)
            if sl == "B": A("s_branch L_full_A")
        elif kind == "last":
            if sl == "B": A("s_branch L_done")
    proc("A", "full"); proc("B", "full")
    proc("A", "noref"); proc("B", "last")
    proc("B", "noref"); proc("A", "last")
    A("L_done:")
    stamp(8)
    A("s_setprio 3")
    A(f"v_mov_b32 v20, {SY_LDS+8}")
    A("v_mov_b32 v21, 1")
    A("v_lshlrev_b32 v18, 4, v0")
    A(f"v_add_u32 v19, {CB_LDS}, v18")
    A(f"v_mov_b32 v17, {ST_LDS}")
    A("s_nop 2")
    A("ds_write_b128 v78, v[52:55]")
    A("ds_write_b128 v78, v[56:59] offset:512")
    A("s_mov_b64 exec, 1")
    A("s_waitcnt lgkmcnt(0)")
    A("ds_add_rtn_u32 v21, v20, v21")
    A("s_mov_b64 exec, -1")
    A(f"s_mul_i32 {sSO}, {sSLOT}, {OP_STR}")
    A(f"s_add_u32 {sSO}, {sSO}, {WS_OP}")
    A(f"v_mov_b32 v46, {sTAG0}\nv_mov_b32 v47, {sTAG1}\nv_mov_b32 v50, {sTAG0}\nv_mov_b32 v51, {sTAG1}")
    A(f"v_mov_b32 v54, {sTAG0}\nv_mov_b32 v55, {sTAG1}")
    A("s_waitcnt lgkmcnt(0)")
    A(f"v_readfirstlane_b32 {sARR}, v21")
    A(f"s_cmp_eq_u32 {sARR}, 3")
    A("s_cbranch_scc0 L_fin")
    for i in range(4): A(f"ds_read_b128 v[{20+4*i}:{23+4*i}], v17 offset:{16*i}")
    CBR = 96
    for w in range(4):
        A(f"ds_read_b128 v[{CBR+8*w}:{CBR+8*w+3}], v19 offset:{2048*w}")
        A(f"ds_read_b128 v[{CBR+8*w+4}:{CBR+8*w+7}], v19 offset:{2048*w+1024}")
    A("s_waitcnt lgkmcnt(8)")
    A("v_max3_f32 v60, v20, v22, v24")
    A("v_max3_f32 v62, v28, v30, v32")
    A("v_max_f32 v60, v60, v26")
    A("v_max_f32 v62, v62, v34")
    for w in range(4):
        A(f"v_sub_f32 v{20+2*w}, v{20+2*w}, v60")
        A(f"v_sub_f32 v{28+2*w}, v{28+2*w}, v62")
    for w in range(8): A(f"v_exp_f32 v{20+2*w}, v{20+2*w}")
    A("v_cmp_eq_u32 vcc, 1, v0")
    A("v_mul_f32 v61, v20, v21")
    A("v_mul_f32 v63, v28, v29")
    for w in range(1, 4):
        A(f"v_fmac_f32 v61, v{20+2*w}, v{21+2*w}")
        A(f"v_fmac_f32 v63, v{28+2*w}, v{29+2*w}")
    A("v_cndmask_b32 v52, v60, v62, vcc")
    A("v_cndmask_b32 v53, v61, v63, vcc")
    A("s_mov_b64 exec, 3")
    A(f"buffer_store_dwordx4 v[52:55], v18, {srd(WS_)}, {sSO} offen offset:2048 sc1")
    A("s_mov_b64 exec, -1")
    for w in range(4):
        A(f"s_waitcnt lgkmcnt({2*(3-w)})")
        for e in range(8):
            sc = 20 + 2*w + (8 if e >= 4 else 0)
            if w == 0: A(f"v_mul_f32 v{36+e}, v{sc}, v{CBR+e}")
            else: A(f"v_fmac_f32 v{36+e}, v{sc}, v{CBR+8*w+e}")
    A("v_cvt_pk_bf16_f32 v44, v36, v37")
    A("v_cvt_pk_bf16_f32 v45, v38, v39")
    A("v_cvt_pk_bf16_f32 v48, v40, v41")
    A("v_cvt_pk_bf16_f32 v49, v42, v43")
    A(f"buffer_store_dwordx4 v[44:47], v18, {srd(WS_)}, {sSO} offen sc1")
    A(f"buffer_store_dwordx4 v[48:51], v18, {srd(WS_)}, {sSO} offen offset:1024 sc1")
    stamp(9)
    A("L_fin:")
    if TS:
        stamp(14)
        A(f"v_writelane_b32 v15, s62, 15")
        A(f"s_lshl_b32 {sT0}, {sWG}, 3")
        A(f"s_add_u32 {sT0}, {sT0}, {sWV}")
        A(f"s_lshl_b32 {sSO}, {sT0}, 8")
        A(f"s_add_u32 {sSO}, {sSO}, {WS_TS}")
        A("v_lshlrev_b32 v21, 2, v0")
        A(f"buffer_store_dword v15, v21, {srd(WS_)}, {sSO} offen")
    A("L_end:")
    A("s_endpgm")

    hdr = open("recurrent_scan__gqa_block_cached__dense_activation_relu__decode.s.ref").read().split("; Override launch geometry")[0]
    out = hdr
    out += f"; @launch grid=(256,1,1) block=(512,1,1) lds={LDS_TOTAL}\n"
    out += '.amdgcn_target "amdgcn-amd-amdhsa--gfx950"\n.text\n'
    out += f".globl {NAME}\n.p2align 8\n.type {NAME},@function\n{NAME}:\n"
    out += "\n".join(g.L) + "\n"
    out += f""".section .rodata,"a"
.p2align 6
.amdhsa_kernel {NAME}
  .amdhsa_next_free_vgpr 256
  .amdhsa_next_free_sgpr 102
  .amdhsa_accum_offset 256
  .amdhsa_group_segment_fixed_size 0
  .amdhsa_kernarg_size 88
  .amdhsa_user_sgpr_count 2
  .amdhsa_user_sgpr_kernarg_segment_ptr 1
  .amdhsa_system_sgpr_workgroup_id_x 1
.end_amdhsa_kernel
"""
    return out, LDS_TOTAL

if __name__ == "__main__":
    opts = {}
    outp = "recurrent_scan__gqa_block_cached__dense_activation_relu__decode.s"
    for a in sys.argv[1:]:
        if a.startswith("-o="): outp = a[3:]
        else:
            k, v = a.split("=")
            opts[k] = int(v) if v.lstrip("-").isdigit() else v.replace("_", " ")
    s, lds = build(opts)
    open(outp, "w").write(s)
    print("wrote", outp, "lds", lds)
```

```python
import sys, math, struct

NAME = "recurrent_scan__gqa_block_cached__dense_activation_relu__decode_kernel"
def f2u(f): return struct.unpack("<I", struct.pack("<f", f))[0]

class Gen:
    def __init__(self):
        self.L = []; self.uid = 0
    def A(self, s):
        for line in s.split("\n"):
            t = line.strip()
            self.L.append(t if t.endswith(":") else "  " + t)
    def lab(self, p):
        self.uid += 1
        return f"L_{p}_{self.uid}"

def build(opts):
    TS = opts.get("ts", 0)
    KVF = opts.get("kvflags", "nt")
    KF = opts.get("kflags", KVF); VF = opts.get("vflags", KVF)
    WF = opts.get("wflags", "nt")
    WOF = opts.get("woflags", WF)
    SPIN = opts.get("spin", 200000)
    NPRE = opts.get("npre", 1)
    THRESH = opts.get("thresh", 66)
    g = Gen(); A = g.A

    WO_LDS = 0
    XN_LDS = 114688
    XN_STR = 912
    Q_LDS = XN_LDS + 8*XN_STR
    H_LDS = Q_LDS + 1024
    H_STR = 144
    ST_LDS = H_LDS + 2304
    O_LDS = ST_LDS + 128
    SY_LDS = O_LDS + 256
    CB_LDS = SY_LDS + 128
    H2_LDS = CB_LDS + 16384
    LDS_TOTAL = H2_LDS + 8*XN_STR
    assert LDS_TOTAL <= 163840 and CB_LDS % 16 == 0
    WS_EP = 0
    WS_Q = 0x1000
    WS_FP = 0x40000
    WS_H = 0x80000
    WS_OP = 0x110000
    OP_STR = 2176
    WS_SP = 0x1A0000
    WS_GC = 0x290000
    WS_TS = 0x300000
    WS_SIZE = 0x400000

    CSC = math.log2(math.e) / 16.0
    sWG, sWV, sHKV, sIDX, sB, sSPL = "s2", "s3", "s4", "s5", "s6", "s7"
    K_, V_, X_, WQ_, W1_, W2_, WO_, WS_, OUT_ = 8, 12, 16, 20, 24, 28, 32, 36, 44
    def srd(n): return f"s[{n}:{n+3}]"
    sP, sHS, sFC, sFV, sCS, sSLOT, sC = "s86", "s87", "s88", "s89", "s90", "s91", "s93"
    sTAG = "s[94:95]"; sTAG0, sTAG1 = "s94", "s95"
    sT0, sT1, sT2, sT3 = "s48", "s49", "s50", "s51"
    sSO = "s52"; sSO2 = "s53"; sCNT = "s54"; sNX = "s55"; sARR = "s92"
    sAM = "s[96:97]"
    sKQ = "s98"; sSTR = "s99"
    sMODE = "s100"; sSEQ = "s101"; sLB = "s40"
    NLOC = opts.get("nloc", 56); DLIM = opts.get("dlim", 44)

    def stamp(i):
        if not TS: return
        A(f"s_memrealtime s[60:61]")
        A("s_waitcnt lgkmcnt(0)")
        A(f"v_writelane_b32 v15, s60, {i}")
    def xreduce(v, t, op="v_add_f32"):
        A(f"v_mov_b32 v{t}, v{v}")
        A("s_nop 1")
        A(f"v_permlane16_swap_b32 v{v}, v{t}")
        A("s_nop 1")
        A(f"{op} v{v}, v{v}, v{t}")
        A(f"v_mov_b32 v{t}, v{v}")
        A("s_nop 1")
        A(f"v_permlane32_swap_b32 v{v}, v{t}")
        A("s_nop 1")
        A(f"{op} v{v}, v{v}, v{t}")
    def xreduce2(v0_, v1_, t0, t1, op="v_add_f32"):
        for sw in ["v_permlane16_swap_b32", "v_permlane32_swap_b32"]:
            A(f"v_mov_b32 v{t0}, v{v0_}")
            A(f"v_mov_b32 v{t1}, v{v1_}")
            A("s_nop 0")
            A(f"{sw} v{v0_}, v{t0}")
            A(f"{sw} v{v1_}, v{t1}")
            A("s_nop 0")
            A(f"{op} v{v0_}, v{v0_}, v{t0}")
            A(f"{op} v{v1_}, v{v1_}, v{t1}")
    def allreduce(v, t, op="v_add_f32"):
        for mode in ["quad_perm:[1,0,3,2]", "quad_perm:[2,3,0,1]", "row_half_mirror", "row_mirror"]:
            A("s_nop 1")
            A(f"{op}_dpp v{v}, v{v}, v{v} {mode} row_mask:0xf bank_mask:0xf")
        xreduce(v, t, op)
    def lds_wait_ge(off, val, vt, sleep=2):
        l0 = g.lab("lw"); l1 = g.lab("lwx")
        A(f"v_mov_b32 v{vt}, {SY_LDS+off}")
        A(f"s_mov_b32 {sCNT}, 0")
        A(f"{l0}:")
        A(f"ds_read_b32 v{vt+1}, v{vt}")
        A(f"s_add_u32 {sCNT}, {sCNT}, 1")
        A(f"s_cmp_gt_u32 {sCNT}, {SPIN}")
        A(f"s_cbranch_scc1 {l1}")
        A("s_waitcnt lgkmcnt(0)")
        A(f"v_cmp_le_u32 vcc, {val}, v{vt+1}")
        A(f"s_cbranch_vccnz {l1}")
        if sleep: A(f"s_sleep {sleep}")
        A(f"s_branch {l0}")
        A(f"{l1}:")
        A("s_waitcnt lgkmcnt(0)")
    def lds_set(off, vt):
        A(f"v_mov_b32 v{vt}, {SY_LDS+off}")
        A(f"v_mov_b32 v{vt+1}, 1")
        A("s_waitcnt lgkmcnt(0)")
        A(f"ds_write_b32 v{vt}, v{vt+1}")
    def lds_inc(off, vt, ret=None):
        A(f"v_mov_b32 v{vt}, {SY_LDS+off}")
        A(f"v_mov_b32 v{vt+1}, 1")
        A("s_mov_b64 exec, 1")
        A("s_waitcnt lgkmcnt(0)")
        if ret:
            A(f"ds_add_rtn_u32 v{vt+1}, v{vt}, v{vt+1}")
            A("s_mov_b64 exec, -1")
            A("s_waitcnt lgkmcnt(0)")
            A(f"v_readfirstlane_b32 {ret}, v{vt+1}")
        else:
            A(f"ds_add_u32 v{vt}, v{vt+1}")
            A("s_mov_b64 exec, -1")

    SLOT = {"A": 128, "B": 192}
    IB = opts.get("ib", 8)
    def init_loads(sl, so):
        seq = []
        for i in range(8):
            d = SLOT[sl] + i*4
            seq.append(f"buffer_load_dwordx4 v[{d}:{d+3}], v1, {srd(K_)}, {so} offen offset:{i*64} {KF}")
        for i in range(8):
            d = SLOT[sl] + 32 + i*4
            seq.append(f"buffer_load_dwordx4 v[{d}:{d+3}], v2, {srd(V_)}, {so} offen offset:{(i//2)*512+(i%2)*256} {VF}")
        for i, x in enumerate(seq):
            A(x)
            if i % IB == IB-1: A("s_nop 0")
    DUP = opts.get("dup", 0)
    B16 = opts.get("b16", 1)
    def kloads(sl, so):
        if DUP:
            for i in range(8):
                d = SLOT[sl] + i*4
                A(f"buffer_load_dwordx4 v[{d}:{d+3}], v1, s[24:27], {so} offen offset:{i*64} {KF}")
        for i in range(8):
            d = SLOT[sl] + i*4
            A(f"buffer_load_dwordx4 v[{d}:{d+3}], v1, {srd(K_)}, {so} offen offset:{i*64} {KF}")
    def vloads(sl, so):
        if DUP:
            for i in range(8):
                d = SLOT[sl] + 32 + i*4
                A(f"buffer_load_dwordx4 v[{d}:{d+3}], v2, s[28:31], {so} offen offset:{(i//2)*512+(i%2)*256} {VF}")
        for i in range(8):
            d = SLOT[sl] + 32 + i*4
            A(f"buffer_load_dwordx4 v[{d}:{d+3}], v2, {srd(V_)}, {so} offen offset:{(i//2)*512+(i%2)*256} {VF}")

    A(f"s_cmp_ge_u32 {sWG}, 256")
    A("s_cbranch_scc1 L_end")
    A("s_setprio 3")
    A("s_load_dwordx16 s[64:79], s[0:1], 0")
    A("s_load_dwordx4 s[80:83], s[0:1], 64")
    A("s_load_dwordx2 s[84:85], s[0:1], 80")
    if TS:
        A("v_mov_b32 v15, 0")
        A("s_mov_b32 s41, 15")
        A("s_memrealtime s[62:63]")
    A("v_lshrrev_b32 v1, 6, v0")
    A("v_and_b32 v0, 63, v0")
    A(f"s_and_b32 {sHKV}, {sWG}, 7")
    A(f"v_readfirstlane_b32 {sWV}, v1")
    A(f"s_lshr_b32 {sIDX}, {sWG}, 3")
    A(f"s_and_b32 {sB}, {sIDX}, 7")
    A(f"s_lshr_b32 {sSPL}, {sIDX}, 3")
    A(f"s_lshl_b32 {sP}, {sHKV}, 5")
    A(f"s_add_u32 {sP}, {sP}, {sIDX}")
    if opts.get("xmap", 1):
        A(f"s_lshl_b32 {sT0}, {sSPL}, 1")
        A(f"s_sub_u32 {sHKV}, {sHKV}, {sT0}")
        A(f"s_and_b32 {sHKV}, {sHKV}, 7")
    A(f"s_lshl_b32 {sSLOT}, {sB}, 3")
    A(f"s_add_u32 {sSLOT}, {sSLOT}, {sHKV}")
    A(f"s_lshl_b32 {sSLOT}, {sSLOT}, 2")
    A(f"s_add_u32 {sSLOT}, {sSLOT}, {sSPL}")
    A(f"s_lshr_b32 {sT2}, {sSLOT}, 2")
    A(f"s_lshl_b32 {sT2}, {sT2}, 21")
    A(f"s_lshl_b32 {sLB}, {sSPL}, 6")
    A("v_and_b32 v7, 15, v0")
    A("v_lshrrev_b32 v8, 4, v0")
    A(f"s_cmp_lt_u32 {sWV}, 4")
    A("s_cbranch_scc0 L_front_s")
    A(f"s_mul_i32 {sT3}, {sWV}, 1792")
    A("v_lshrrev_b32 v9, 5, v0")
    A("v_mul_u32_u24 v9, 896, v9")
    A("v_and_b32 v10, 31, v0")
    A("v_lshl_add_u32 v9, v10, 5, v9")
    A(f"v_add_u32 v9, {sT3}, v9")
    A("v_cmp_gt_u32 vcc, 28, v10")
    A("v_mov_b32 v10, 0x7fffff00")
    A("v_lshrrev_b32 v11, 1, v0")
    A("v_lshlrev_b32 v11, 13, v11")
    A("v_cndmask_b32 v9, v10, v9, vcc")
    A("v_and_b32 v12, 1, v0")
    A("v_lshl_add_u32 v11, v12, 4, v11")
    A(f"s_lshl_b32 {sT0}, {sP}, 5")
    A(f"s_lshl_b32 s56, {sWV}, 20")
    A(f"s_add_u32 s57, s56, {1<<18}\ns_add_u32 s58, s56, {2<<18}\ns_add_u32 s59, s56, {3<<18}")
    A(f"s_mov_b32 s{X_+2}, 7168\ns_mov_b32 s{X_+3}, 0x20000")
    A(f"s_sub_u32 s{WQ_+2}, 3670016, {sT0}\ns_mov_b32 s{WQ_+3}, 0x20000")
    A(f"v_mov_b32 v20, {SY_LDS}\nv_mov_b32 v24, 0\nv_mov_b32 v25, 0\nv_mov_b32 v26, 0\nv_mov_b32 v27, 0\nv_mov_b32 v28, 8\nv_mov_b32 v29, 0\nv_mov_b32 v30, 0\nv_mov_b32 v31, 0")
    A("ds_write_b128 v20, v[24:27]")
    A("ds_write_b128 v20, v[28:31] offset:16")
    for o in (32, 64, 80): A(f"ds_write_b128 v20, v[24:27] offset:{o}")
    A("s_waitcnt lgkmcnt(0)")
    A(f"s_mov_b32 s{X_}, s64\ns_mov_b32 s{X_+1}, s65")
    A(f"s_add_u32 s{WQ_}, s70, {sT0}\ns_addc_u32 s{WQ_+1}, s71, 0")
    A(f"buffer_load_dwordx4 v[16:19], v9, {srd(X_)}, 0 offen")
    A(f"buffer_load_dwordx4 v[20:23], v9, {srd(X_)}, 0 offen offset:16")
    for i in range(4): A(f"buffer_load_dwordx4 v[{64+4*i}:{67+4*i}], v11, {srd(WQ_)}, s{56+i} offen {WF}")
    A(f"s_load_dwordx2 {sTAG}, s[84:85], {WS_EP}")
    A("s_barrier")
    A("s_branch L_front_h")
    A("L_front_s:")
    A("v_lshlrev_b32 v1, 9, v7")
    A("v_lshl_add_u32 v1, v8, 4, v1")
    A("v_lshlrev_b32 v2, 11, v8")
    A("v_lshl_add_u32 v2, v7, 4, v2")
    A(f"s_mov_b32 s{K_+2}, 0x200000\ns_mov_b32 s{K_+3}, 0x20000")
    A(f"s_mov_b32 s{V_+2}, 0x200000\ns_mov_b32 s{V_+3}, 0x20000")
    A(f"s_and_b32 {sT3}, {sWV}, 3")
    A(f"s_add_u32 {sT3}, {sT3}, {sLB}")
    A(f"s_lshl_b32 {sT3}, {sT3}, 13")
    A("s_setprio 1")
    A("s_waitcnt lgkmcnt(0)")
    A(f"s_add_u32 s{K_}, s66, {sT2}\ns_addc_u32 s{K_+1}, s67, 0")
    A(f"s_add_u32 s{V_}, s68, {sT2}\ns_addc_u32 s{V_+1}, s69, 0")
    if DUP:
        A(f"s_xor_b32 {sT0}, {sT2}, 0x4100000")
        A(f"s_add_u32 s24, s66, {sT0}\ns_addc_u32 s25, s67, 0\ns_mov_b32 s26, 0x100000\ns_mov_b32 s27, 0x20000")
        A(f"s_add_u32 s28, s68, {sT0}\ns_addc_u32 s29, s69, 0\ns_mov_b32 s30, 0x100000\ns_mov_b32 s31, 0x20000")
    if not opts.get("late1", 1): init_loads("A", sT3)
    A(f"s_load_dwordx2 {sTAG}, s[84:85], {WS_EP}")
    A(f"s_mov_b32 s{WS_}, s84\ns_mov_b32 s{WS_+1}, s85\ns_mov_b32 s{WS_+2}, {WS_SIZE}\ns_mov_b32 s{WS_+3}, 0x20000")
    A("s_barrier")
    A("s_branch L_stream")
    A("L_front_h:")
    if opts.get("nohelp"): A("s_branch L_end")
    A(f"s_lshr_b32 {sHS}, {sSLOT}, 2")
    A(f"s_and_b32 {sT0}, {sHS}, 3")
    A(f"s_cmp_eq_u32 {sT0}, {sSPL}")
    A(f"s_cselect_b32 {sFV}, 1, 0")
    A(f"s_cmp_lt_u32 {sHS}, {0 if opts.get('noffn') else 56}")
    A(f"s_cselect_b32 {sFV}, {sFV}, 0")
    A(f"s_cmp_ge_u32 {sHS}, 28")
    A(f"s_cselect_b32 {sT0}, 1, 0")
    A(f"s_lshl_b32 {sFV}, {sFV}, {sT0}")
    A(f"s_sub_u32 {sT1}, {sHS}, 28")
    A(f"s_and_b32 {sT1}, {sT1}, 31")
    A(f"s_mul_i32 {sT0}, {sT1}, 37")
    A(f"s_lshr_b32 {sKQ}, {sT0}, 8")
    A(f"s_mul_i32 {sT0}, {sKQ}, 7")
    A(f"s_sub_u32 {sFC}, {sT1}, {sT0}")
    A(f"s_lshl_b32 {sCS}, {sHKV}, 2")
    A(f"s_add_u32 {sCS}, {sCS}, {sSPL}")
    A(f"s_mov_b32 {sC}, 0x{f2u(CSC):08x}")
    A(f"s_lshl_b32 {sT0}, {sHS}, 7")
    A(f"s_mul_i32 {sT1}, {sKQ}, 401408")
    A(f"s_lshl_b32 s{W2_}, {sFC}, 7")
    A(f"s_add_u32 {sT1}, {sT1}, s{W2_}")
    A(f"s_cmp_eq_u32 {sFV}, 2")
    A(f"s_cselect_b32 {sT0}, {sT1}, {sT0}")
    A(f"s_cselect_b32 s{W2_}, s78, s76")
    A(f"s_cselect_b32 s{W2_+1}, s79, s77")
    A(f"s_movk_i32 {sSTR}, 3584")
    A(f"s_cselect_b32 {sSTR}, 896, {sSTR}")
    A(f"s_add_u32 s{W1_}, s{W2_}, {sT0}\ns_addc_u32 s{W1_+1}, s{W2_+1}, 0\ns_sub_u32 {sT1}, 1605632, {sT0}")
    A(f"s_cmp_eq_u32 {sFV}, 0\ns_cselect_b32 s{W1_+2}, 0, {sT1}\ns_mov_b32 s{W1_+3}, 0x20000")
    A(f"s_mul_i32 {sT0}, {sHKV}, 458752\ns_mul_i32 {sT1}, {sSPL}, 57344\ns_add_u32 {sT0}, {sT0}, {sT1}")
    A(f"s_add_u32 s{WO_}, s72, {sT0}\ns_addc_u32 s{WO_+1}, s73, 0\ns_sub_u32 s{WO_+2}, {0 if opts.get('nowo') else 3670016}, {0 if opts.get('nowo') else sT0}\ns_mov_b32 s{WO_+3}, 0x20000")
    A(f"s_mov_b32 s{WS_}, s84\ns_mov_b32 s{WS_+1}, s85\ns_mov_b32 s{WS_+2}, {WS_SIZE}\ns_mov_b32 s{WS_+3}, 0x20000")
    A(f"s_mov_b32 s{OUT_}, s80\ns_mov_b32 s{OUT_+1}, s81\ns_mov_b32 s{OUT_+2}, 7168\ns_mov_b32 s{OUT_+3}, 0x20000")
    A(f"s_waitcnt vmcnt(4)")
    stamp(0)
    for i in range(8):
        A(f"v_lshlrev_b32 v{24+2*i}, 16, v{16+i}")
        A(f"v_and_b32 v{25+2*i}, 0xffff0000, v{16+i}")
    for i in range(8): A(f"v_add_f32 v{40+i}, v{24+2*i}, v{25+2*i}")
    for i in range(4): A(f"v_add_f32 v{40+i}, v{40+i}, v{44+i}")
    A("v_add_f32 v40, v40, v42\nv_add_f32 v41, v41, v43\nv_add_f32 v40, v40, v41")
    def halfreduce(v, t, op="v_add_f32"):
        for mode in ["quad_perm:[1,0,3,2]", "quad_perm:[2,3,0,1]", "row_half_mirror", "row_mirror"]:
            A("s_nop 1")
            A(f"{op}_dpp v{v}, v{v}, v{v} {mode} row_mask:0xf bank_mask:0xf")
        A(f"v_mov_b32 v{t}, v{v}")
        A("s_nop 1")
        A(f"v_permlane16_swap_b32 v{v}, v{t}")
        A("s_nop 1")
        A(f"{op} v{v}, v{v}, v{t}")
    halfreduce(40, 41)
    A(f"v_mul_f32 v40, 0x{f2u(1.0/448):08x}, v40")
    for i in range(16): A(f"v_sub_f32 v{44+i}, v{24+i}, v40")
    A("v_mul_f32 v42, v44, v44")
    A("v_mul_f32 v43, v45, v45")
    for i in range(2, 16): A(f"v_fmac_f32 v{42+(i&1)}, v{44+i}, v{44+i}")
    A("s_mov_b32 s56, 0x0fffffff\ns_mov_b32 s57, 0x0fffffff")
    A("v_add_f32 v42, v42, v43")
    A("v_cndmask_b32 v42, 0, v42, s[56:57]")
    halfreduce(42, 41)
    A(f"v_mul_f32 v42, 0x{f2u(1.0/448):08x}, v42")
    A("v_cvt_pk_bf16_f32 v41, v40, v42")
    A("v_lshlrev_b32 v40, 16, v41")
    A("v_and_b32 v42, 0xffff0000, v41")
    A(f"v_add_f32 v42, 0x{f2u(1e-5):08x}, v42")
    A("v_cvt_pk_bf16_f32 v42, v42, v42")
    A("v_lshlrev_b32 v42, 16, v42")
    A("v_sqrt_f32 v42, v42")
    A("s_nop 0")
    A("v_cvt_pk_bf16_f32 v42, v42, v42")
    A("v_lshlrev_b32 v42, 16, v42")
    A("v_rcp_f32 v42, v42")
    for i in range(16): A(f"v_sub_f32 v{44+i}, v{24+i}, v40")
    for i in range(8): A(f"v_cvt_pk_bf16_f32 v{16+i}, v{44+2*i}, v{45+2*i}")
    for i in range(8):
        A(f"v_lshlrev_b32 v{44+2*i}, 16, v{16+i}")
        A(f"v_and_b32 v{45+2*i}, 0xffff0000, v{16+i}")
    for i in range(16): A(f"v_mul_f32 v{44+i}, v{44+i}, v42")
    for i in range(8): A(f"v_cvt_pk_bf16_f32 v{16+i}, v{44+2*i}, v{45+2*i}")
    A(f"s_mul_i32 {sT0}, {sWV}, {2*XN_STR}")
    A(f"s_add_u32 {sT0}, {sT0}, {XN_LDS}")
    A("v_lshrrev_b32 v9, 5, v0")
    A(f"v_mul_u32_u24 v9, {XN_STR}, v9")
    A("v_and_b32 v10, 31, v0")
    A("v_lshl_add_u32 v9, v10, 5, v9")
    A(f"v_add_u32 v9, {sT0}, v9")
    A("s_mov_b64 exec, s[56:57]")
    A("ds_write_b128 v9, v[16:19]")
    A("ds_write_b128 v9, v[20:23] offset:16")
    A("s_mov_b64 exec, -1")
    A("v_and_b32 v9, 7, v0")
    A(f"v_mul_u32_u24 v9, {XN_STR}, v9")
    A("v_lshl_add_u32 v9, v8, 4, v9")
    A(f"v_add_u32 v9, {XN_LDS}, v9")
    A("v_lshrrev_b32 v10, 2, v7")
    A("v_lshl_add_u32 v10, v8, 3, v10")
    A("v_and_b32 v12, 3, v7")
    A("v_lshlrev_b32 v12, 3, v12")
    A("v_lshl_add_u32 v11, v10, 7, v12")
    A(f"v_add_u32 v11, {CB_LDS}, v11")
    A("v_lshl_add_u32 v14, v10, 5, v12")
    A(f"v_add_u32 v14, {CB_LDS}, v14")
    A("v_mul_u32_u24 v10, 896, v10")
    A("v_add_u32 v10, v10, v12")
    A(f"s_lshl_b32 {sT0}, {sWV}, 12")
    A(f"s_add_u32 {sT0}, {sT0}, {CB_LDS}")
    A("v_lshlrev_b32 v13, 4, v0")
    A(f"v_add_u32 v13, {sT0}, v13")
    A(f"s_waitcnt vmcnt(0)")
    for i in range(4): A(f"ds_write_b128 v13, v[{64+4*i}:{67+4*i}] offset:{i*1024}")
    lds_inc(28, 12)
    A(f"s_add_u32 {sTAG0}, {sTAG0}, 1")
    stamp(1)
    A(f"s_cmp_eq_u32 {sWV}, 0")
    A("s_cbranch_scc1 L_svc")
    A("s_setprio 2")
    if opts.get("lateside", 0): lds_wait_ge(0, 1, 12, sleep=4)
    A(f"s_cmp_eq_u32 {sWV}, 1")
    A(f"s_cbranch_scc0 L_wostage")
    A(f"s_cmp_eq_u32 {sFV}, 0")
    A("s_cbranch_scc1 L_ffn_done")
    A("v_lshrrev_b32 v14, 3, v0")
    A("v_and_b32 v13, 7, v0")
    A("v_lshlrev_b32 v13, 4, v13")
    A(f"v_mul_u32_u24 v12, {sSTR}, v14")
    A("v_add_u32 v12, v12, v13")
    A("v_lshlrev_b32 v14, 4, v0")
    A(f"v_add_u32 v14, {CB_LDS}, v14")
    A(f"s_lshl_b32 {sSTR}, {sSTR}, 3")
    def wburst(lo, hi):
        for i in range(lo, hi):
            A(f"s_mul_i32 s{64+i-lo}, {sSTR}, {i}")
        for i in range(lo, hi):
            d = 96 + (i % 40)*4
            A(f"buffer_load_dwordx4 v[{d}:{d+3}], v12, {srd(W1_)}, s{64+i-lo} offen {WF}")
    wburst(0, 20); wburst(20, 40)
    stamp(2)
    A(f"s_cmp_eq_u32 {sFV}, 2")
    A("s_cbranch_scc0 L_ffn_act_ok")
    if opts.get("h2wait", 22): lds_wait_ge(16, opts.get("h2wait", 22), 72, sleep=16)
    A(f"s_mul_i32 {sT0}, {sKQ}, 1792")
    A(f"s_add_u32 {sT0}, {sT0}, {WS_H}")
    for b_ in range(8): A(f"s_add_u32 s{64+b_}, {sT0}, {b_*7168}")
    A("v_lshlrev_b32 v13, 4, v0")
    A(f"s_mov_b32 {sCNT}, 0")
    A("s_mov_b32 exec_hi, 0x00ffffff")
    A("L_hpoll:")
    for b_ in range(8):
        for hf in range(2):
            d = 16 + (b_*2+hf)*4
            A(f"buffer_load_dwordx4 v[{d}:{d+3}], v13, {srd(WS_)}, s{64+b_} offen offset:{hf*896} sc1")
    A(f"s_add_u32 {sCNT}, {sCNT}, 1")
    A(f"s_cmp_gt_u32 {sCNT}, {SPIN}")
    A("s_cbranch_scc1 L_hpoll_x")
    A("s_waitcnt vmcnt(0)")
    for i in range(16):
        d = 16 + i*4
        if i == 0: A(f"v_cmp_ne_u64 s[56:57], {sTAG}, v[{d+2}:{d+3}]")
        else:
            A(f"v_cmp_ne_u64 vcc, {sTAG}, v[{d+2}:{d+3}]")
            A("s_or_b64 s[56:57], s[56:57], vcc")
    A("s_and_b64 exec, exec, s[56:57]")
    A("s_cbranch_execz L_hpoll_x")
    A("s_sleep 16")
    A("s_branch L_hpoll")
    A("L_hpoll_x:")
    A("s_mov_b32 exec_lo, -1\ns_mov_b32 exec_hi, 0x00ffffff")
    A("s_waitcnt vmcnt(0)")
    A("v_lshlrev_b32 v13, 3, v0")
    A(f"v_add_u32 v13, {H2_LDS}, v13")
    for b_ in range(8):
        for hf in range(2):
            d = 16 + (b_*2+hf)*4
            A(f"ds_write_b64 v13, v[{d}:{d+1}] offset:{b_*XN_STR + hf*448}")
        if b_ % 4 == 3: A("s_waitcnt lgkmcnt(0)")
    A("s_mov_b64 exec, -1")
    A(f"v_add_u32 v9, {H2_LDS - XN_LDS}, v9")
    A("L_ffn_act_ok:")
    lds_wait_ge(4, 1, 72)
    def ffn_issue(t, tl):
        b = 32 + (t % 2)*20
        A(f"ds_read_b128 v[{b}:{b+3}], v9 offset:{t*64}")
        for ct in range(4):
            A(f"ds_read_b64_tr_b16 v[{b+4+ct*4}:{b+5+ct*4}], v11 offset:{tl*4096+ct*32}")
            A(f"ds_read_b64_tr_b16 v[{b+6+ct*4}:{b+7+ct*4}], v11 offset:{tl*4096+ct*32+512}")
    issued = 40
    for (lo, hi) in [(0,16),(16,32),(32,48),(48,56)]:
        A(f"s_waitcnt vmcnt({issued - hi})")
        for i in range(lo, hi):
            d = 96 + (i % 40)*4
            A(f"ds_write_b128 v14, v[{d}:{d+3}] offset:{(i-lo)*1024}")
            if (i-lo) % 8 == 7: A("s_waitcnt lgkmcnt(4)")
        A("s_waitcnt lgkmcnt(0)")
        nxt = min(56, hi + 40)
        if nxt > issued:
            wburst(issued, nxt); issued = nxt
        t0 = lo // 4; nt = (hi-lo)//4
        ffn_issue(t0, 0)
        for tl in range(nt):
            t = t0 + tl
            if tl+1 < nt:
                A("s_waitcnt lgkmcnt(4)")
                ffn_issue(t+1, tl+1)
                A("s_waitcnt lgkmcnt(9)")
            else:
                A("s_waitcnt lgkmcnt(0)")
            b = 32 + (t % 2)*20
            for ct in range(4):
                c = "0" if t == 0 else f"v[{16+ct*4}:{19+ct*4}]"
                A(f"v_mfma_f32_16x16x32_bf16 v[{16+ct*4}:{19+ct*4}], v[{b+4+ct*4}:{b+7+ct*4}], v[{b}:{b+3}], {c}")
    stamp(3)
    A(f"v_mov_b32 v92, {sTAG0}\nv_mov_b32 v93, {sTAG1}")
    A("v_and_b32 v12, 7, v0")
    A("v_bfe_u32 v13, v0, 3, 1")
    A("s_mov_b32 s58, 0xff00ff00\ns_mov_b32 s59, 0xff00ff00")
    A(f"s_cmp_eq_u32 {sFV}, 2")
    A("s_cbranch_scc1 L_ffn_out2")
    A("v_mul_u32_u24 v12, 7168, v12")
    A("v_lshl_add_u32 v12, v8, 4, v12")
    A("v_lshl_add_u32 v12, v13, 6, v12")
    A(f"s_lshl_b32 {sSO}, {sHS}, 8")
    A(f"s_add_u32 {sSO}, {sSO}, {WS_H}")
    for ct in range(4):
        for r in range(4): A(f"v_max_f32 v{16+ct*4+r}, 0, v{16+ct*4+r}")
        A(f"v_cvt_pk_bf16_f32 v{16+ct*4}, v{16+ct*4}, v{17+ct*4}")
        A(f"v_cvt_pk_bf16_f32 v{17+ct*4}, v{18+ct*4}, v{19+ct*4}")
    for cp in range(2):
        o = 96 + 4*cp
        A(f"v_cndmask_b32 v{o}, v{16+cp*8}, v{20+cp*8}, s[58:59]")
        A(f"v_cndmask_b32 v{o+1}, v{17+cp*8}, v{21+cp*8}, s[58:59]")
        A(f"v_mov_b32 v{o+2}, v92\nv_mov_b32 v{o+3}, v93")
    for cp in range(2):
        o = 96 + 4*cp
        A(f"buffer_store_dwordx4 v[{o}:{o+3}], v12, {srd(WS_)}, {sSO} offen offset:{cp*128} sc1")
    A("s_branch L_ffn_done")
    A("L_ffn_out2:")
    A("v_mul_u32_u24 v12, 3584, v12")
    A("v_lshl_add_u32 v12, v8, 5, v12")
    A("v_lshl_add_u32 v12, v13, 4, v12")
    A(f"s_mul_i32 {sSO}, {sKQ}, {8*3584}")
    A(f"s_lshl_b32 {sT0}, {sFC}, 9")
    A(f"s_add_u32 {sSO}, {sSO}, {sT0}")
    A(f"s_add_u32 {sSO}, {sSO}, {WS_FP}")
    for ct in range(4):
        d = 16 + 4*ct; o = 96 + 4*ct
        A(f"v_cndmask_b32 v{o}, v92, v{d+2}, s[58:59]")
        A(f"v_cndmask_b32 v{o+1}, v93, v{d+3}, s[58:59]")
        A(f"v_cndmask_b32 v{o+2}, v{d}, v92, s[58:59]")
        A(f"v_cndmask_b32 v{o+3}, v{d+1}, v93, s[58:59]")
    for ct in range(4):
        o = 96 + 4*ct
        A(f"buffer_store_dwordx4 v[{o}:{o+3}], v12, {srd(WS_)}, {sSO} offen offset:{ct*128} sc1")
    A("L_ffn_done:")
    lds_set(24, 12)
    stamp(4)
    A("s_branch L_helper_end")

    A("L_svc:")
    lds_wait_ge(28, 4, 12, sleep=0)
    def q_issue(t):
        b = 24 + (t % 5)*8
        A(f"ds_read_b128 v[{b}:{b+3}], v9 offset:{t*64}")
        A(f"ds_read_b64_tr_b16 v[{b+4}:{b+5}], v14 offset:{t*1024}")
        A(f"ds_read_b64_tr_b16 v[{b+6}:{b+7}], v14 offset:{t*1024+128}")
    for t in range(4): q_issue(t)
    for t in range(14):
        rem = min(13, t+3) - t
        A(f"s_waitcnt lgkmcnt({rem*3})")
        b = 24 + (t % 5)*8
        c = "0" if t == 0 else "v[16:19]"
        A(f"v_mfma_f32_16x16x32_bf16 v[16:19], v[{b+4}:{b+7}], v[{b}:{b+3}], {c}")
        if t+4 < 14: q_issue(t+4)
    A("v_lshlrev_b32 v12, 14, v7")
    A("v_lshl_add_u32 v12, v8, 4, v12")
    A(f"s_lshl_b32 {sSO}, {sP}, 6")
    A(f"s_add_u32 {sSO}, {sSO}, {WS_Q}")
    A("s_nop 3")
    A("v_cvt_pk_bf16_f32 v16, v16, v17")
    A("v_cvt_pk_bf16_f32 v17, v18, v19")
    A(f"v_mov_b32 v18, {sTAG0}\nv_mov_b32 v19, {sTAG1}")
    A("s_mov_b32 exec_lo, 0x00ff00ff\ns_mov_b32 exec_hi, 0x00ff00ff")
    if not opts.get("noqst"): A(f"buffer_store_dwordx4 v[16:19], v12, {srd(WS_)}, {sSO} offen sc1")
    A("s_mov_b64 exec, -1")
    lds_set(4, 20)
    stamp(2)
    A(f"s_lshl_b32 {sSO}, {sB}, 14")
    A(f"s_lshl_b32 {sT0}, {sHKV}, 11")
    A(f"s_add_u32 {sSO}, {sSO}, {sT0}")
    A(f"s_add_u32 {sSO}, {sSO}, {WS_Q}")
    A("v_lshlrev_b32 v12, 4, v0")
    A(f"s_mov_b32 {sCNT}, 0")
    if opts.get("noqpoll"): A("s_branch L_qpoll_x")
    A("L_qpoll:")
    A(f"s_sleep {opts.get('qb', 64)}")
    A(f"buffer_load_dwordx4 v[24:27], v12, {srd(WS_)}, {sSO} offen sc1")
    A(f"buffer_load_dwordx4 v[28:31], v12, {srd(WS_)}, {sSO} offen offset:1024 sc1")
    A(f"s_add_u32 {sCNT}, {sCNT}, 1")
    A(f"s_cmp_gt_u32 {sCNT}, {SPIN}")
    A("s_cbranch_scc1 L_qpoll_x")
    A("s_waitcnt vmcnt(0)")
    A(f"v_cmp_ne_u64 vcc, {sTAG}, v[26:27]")
    A(f"v_cmp_ne_u64 s[56:57], {sTAG}, v[30:31]")
    A("s_or_b64 vcc, vcc, s[56:57]")
    A("s_and_b64 exec, exec, vcc")
    A("s_cbranch_execnz L_qpoll")
    A("L_qpoll_x:")
    A("s_mov_b64 exec, -1")
    A("s_waitcnt vmcnt(0)")
    stamp(4)
    A("v_lshlrev_b32 v12, 3, v0")
    A(f"v_add_u32 v12, {Q_LDS}, v12")
    A("ds_write_b64 v12, v[24:25]")
    A("ds_write_b64 v12, v[28:29] offset:512")
    lds_set(0, 12)
    A("s_branch L_helper_end")

    A("L_wostage:")
    A(f"s_cmp_eq_u32 {sWV}, 2")
    A("s_cbranch_scc0 L_nogc")
    A(f"s_cmp_eq_u32 {sSPL}, 0")
    A("s_cbranch_scc0 L_nogc")
    A(f"v_mov_b32 v16, 0\nv_mov_b32 v17, 0\nv_mov_b32 v18, {sTAG0}\nv_mov_b32 v19, {sTAG1}")
    A(f"s_lshl_b32 {sSO}, {sHS}, 7")
    A(f"s_add_u32 {sSO}, {sSO}, {WS_GC}")
    A("s_mov_b64 exec, 1")
    A(f"buffer_store_dwordx4 v[16:19], v16, {srd(WS_)}, {sSO} offen sc1")
    A("s_mov_b64 exec, -1")
    A("L_nogc:")
    A(f"s_sub_u32 {sT0}, {sWV}, 2")
    A(f"s_mul_i32 {sT1}, {sT0}, 57344")
    A(f"s_mul_i32 {sT0}, {sT0}, 229376")
    A("v_lshlrev_b32 v12, 4, v0")
    A(f"v_add_u32 v13, {sT1}, v12")
    for i in range(14): A(f"s_add_u32 s{64+i}, {sT0}, {i*4096}")
    for i in range(56):
        d = 32 + i*4
        A(f"buffer_load_dwordx4 v[{d}:{d+3}], v12, {srd(WO_)}, s{64+i//4} offen offset:{(i%4)*1024} {WOF}")
        if i % opts.get("woburst", 14) == opts.get("woburst", 14)-1: A("s_nop 0")
    stamp(2)
    for c in range(7):
        A(f"s_waitcnt vmcnt({48-8*c})")
        for i in range(8*c, 8*c+8):
            d = 32 + i*4
            A(f"ds_write_b128 v13, v[{d}:{d+3}] offset:{WO_LDS + i*1024}")
        A("s_waitcnt lgkmcnt(4)")
    lds_inc(20, 12)
    stamp(4)

    A("L_helper_end:")
    lds_wait_ge(20, 2, 12, sleep=8)
    A(f"s_mul_i32 {sT0}, {sWV}, 224")
    A(f"v_add_u32 v12, {sT0}, v10")
    A(f"v_add_u32 v13, 57344, v12")
    for tl in range(7):
        for t in range(4):
            b = 128 + (tl*4+t)*4
            va = 12 if t < 2 else 13
            off = WO_LDS + (t % 2)*32*896 + tl*32
            A(f"ds_read_b64_tr_b16 v[{b}:{b+1}], v{va} offset:{off}")
            A(f"ds_read_b64_tr_b16 v[{b+2}:{b+3}], v{va} offset:{off+4*896}")
        A("s_waitcnt lgkmcnt(4)")
    stamp(5)
    if opts.get("hprio") is not None: A(f"s_setprio {opts['hprio']}")
    if opts.get("stop") == 1: A("s_branch L_fin")
    if opts.get("stop") == 2:
        lds_wait_ge(16, THRESH, 12, sleep=8)
        lds_wait_ge(8, 4, 12, sleep=2)
        A("s_branch L_fin")
    if opts.get("presleep", 0):
        A("s_setprio 0")
        lds_wait_ge(16, DLIM - 6, 12, sleep=opts.get("presl", 32))
        A(f"s_setprio {opts.get('svprio', 2)}")
    A(f"s_lshl_b32 {sT0}, {sWV}, 2")
    A(f"s_add_u32 {sT0}, {sT0}, {SY_LDS+32}")
    A(f"v_mov_b32 v16, {sT0}")
    A(f"s_lshl_b32 {sT0}, {sWV}, 3")
    A(f"s_add_u32 {sT0}, {sT0}, {SY_LDS+64}")
    A(f"v_mov_b32 v17, {sT0}")
    A(f"v_mov_b32 v18, {SY_LDS+16}")
    A("v_mov_b32 v19, 0")
    A(f"s_lshl_b32 {sSO}, {sHS}, 7")
    A(f"s_add_u32 {sSO}, {sSO}, {WS_GC}")
    A(f"s_mov_b32 {sSEQ}, 0")
    A(f"s_mov_b32 {sMODE}, 0")
    A("s_mov_b64 exec, 1")
    A(f"s_mov_b32 {sCNT}, 0")
    A("L_serve_gt:")
    A(f"buffer_load_dwordx4 v[24:27], v19, {srd(WS_)}, {sSO} offen sc1")
    A(f"s_add_u32 {sCNT}, {sCNT}, 1")
    A(f"s_cmp_gt_u32 {sCNT}, {SPIN}")
    A("s_cbranch_scc1 L_serve")
    A("s_waitcnt vmcnt(0)")
    A(f"v_cmp_ne_u64 vcc, {sTAG}, v[26:27]")
    A("s_cbranch_vccnz L_serve_gt")
    A("L_serve:")
    A(f"s_add_u32 {sSEQ}, {sSEQ}, 1")
    A(f"s_mov_b32 {sCNT}, 0")
    A("L_serve_w:")
    A("ds_read_b32 v20, v16")
    A(f"s_add_u32 {sCNT}, {sCNT}, 1")
    A(f"s_cmp_gt_u32 {sCNT}, {SPIN}")
    A("s_cbranch_scc1 L_serve_x")
    A("s_waitcnt lgkmcnt(0)")
    A(f"v_cmp_le_u32 vcc, {sSEQ}, v20")
    A("s_cbranch_vccnz L_serve_go")
    A(f"s_sleep {opts.get('svsleep', 2)}")
    A("s_branch L_serve_w")
    A("L_serve_go:")
    A(f"s_cmp_eq_u32 {sMODE}, 0")
    A("s_cbranch_scc0 L_serve_g2")
    A("v_mov_b32 v28, 1")
    A("ds_add_rtn_u32 v28, v18, v28")
    A("s_waitcnt lgkmcnt(0)")
    A(f"v_readfirstlane_b32 {sT0}, v28")
    A(f"s_add_u32 {sT1}, {sT0}, {sLB}")
    A(f"s_cmp_lt_u32 {sT0}, {NLOC - opts.get('pfat', 4)}")
    A("s_cbranch_scc1 L_serve_resp")
    if opts.get("npool", 2) < 4:
        A(f"s_cmp_lt_u32 {sWV}, {opts.get('npool', 2)}")
        A("s_cbranch_scc1 L_serve_g0")
        A(f"s_cmp_lt_u32 {sT0}, {NLOC}")
        A(f"s_cselect_b32 {sT1}, {sT1}, 0xffff")
        A("s_branch L_serve_resp")
        A("L_serve_g0:")
    A(f"s_mov_b32 {sMODE}, 1")
    A("v_mov_b32 v21, 1")
    A(f"buffer_atomic_add v21, v19, {srd(WS_)}, {sSO} offen sc0 sc1")
    A(f"s_cmp_lt_u32 {sT0}, {NLOC}")
    A("s_cbranch_scc1 L_serve_resp")
    A("L_serve_g2:")
    A("s_waitcnt vmcnt(0)")
    A(f"v_readfirstlane_b32 {sT0}, v21")
    A(f"s_and_b32 {sT1}, {sT0}, 3")
    A(f"s_lshl_b32 {sT1}, {sT1}, 6")
    A(f"s_lshr_b32 {sT2}, {sT0}, 2")
    A(f"s_add_u32 {sT1}, {sT1}, {sT2}")
    A(f"s_add_u32 {sT1}, {sT1}, {NLOC}")
    A(f"s_cmp_lt_u32 {sT0}, {4*(64-NLOC)}")
    A("s_cbranch_scc0 L_serve_end")
    A("v_mov_b32 v21, 1")
    A(f"buffer_atomic_add v21, v19, {srd(WS_)}, {sSO} offen sc0 sc1")
    A("s_branch L_serve_resp")
    A("L_serve_end:")
    A("v_mov_b32 v28, 1")
    A("ds_add_rtn_u32 v28, v18, v28")
    A("s_waitcnt lgkmcnt(0)")
    A(f"v_readfirstlane_b32 {sT0}, v28")
    A(f"s_add_u32 {sT1}, {sT0}, {sLB}")
    A(f"s_cmp_lt_u32 {sT0}, {NLOC}")
    A(f"s_cselect_b32 {sT1}, {sT1}, 0xffff")
    A("L_serve_resp:")
    A(f"v_mov_b32 v22, {sSEQ}")
    A(f"v_mov_b32 v23, {sT1}")
    A("ds_write_b64 v17, v[22:23]")
    A(f"s_cmp_lt_u32 {sT1}, 256")
    A("s_cbranch_scc1 L_serve")
    A("L_serve_x:")
    A("s_mov_b64 exec, -1")
    A("s_waitcnt lgkmcnt(0)")
    stamp(7)
    if opts.get("notail"): A("s_branch L_fin")
    def gather(prefix, nload, last_half, base_s, pstride, vb, sleep):
        A("v_lshrrev_b32 v20, 3, v0")
        A(f"v_mul_u32_u24 v20, {pstride}, v20")
        A("v_and_b32 v21, 7, v0")
        A("v_lshl_add_u32 v20, v21, 4, v20")
        for i in range(1, 4): A(f"v_add_u32 v{20+i}, {i*8*pstride}, v20")
        if last_half:
            A("v_cmp_gt_u32 vcc, 32, v0")
            A("s_nop 1")
            A("v_cndmask_b32 v23, v22, v23, vcc")
        A(f"s_mov_b32 {sCNT}, 0")
        A("s_mov_b32 s58, 0xaaaaaaaa\ns_mov_b32 s59, 0xaaaaaaaa")
        A(f"L_{prefix}poll:")
        for i in range(3): A(f"buffer_load_dwordx4 v[{vb+4*i}:{vb+3+4*i}], v{20+i}, {srd(WS_)}, {base_s} offen sc1")
        A(f"buffer_load_dwordx4 v[{vb+12}:{vb+15}], v23, {srd(WS_)}, {base_s} offen sc1")
        A(f"s_add_u32 {sCNT}, {sCNT}, 1")
        A(f"s_cmp_gt_u32 {sCNT}, {SPIN}")
        A(f"s_cbranch_scc1 L_{prefix}poll_x")
        for i in range(4):
            b = vb+4*i
            A(f"s_waitcnt vmcnt({3-i})")
            A(f"v_cndmask_b32 v40, v{b}, v{b+2}, s[58:59]")
            A(f"v_cndmask_b32 v41, v{b+1}, v{b+3}, s[58:59]")
            if i == 0: A(f"v_cmp_ne_u64 s[56:57], {sTAG}, v[40:41]")
            else:
                A(f"v_cmp_ne_u64 vcc, {sTAG}, v[40:41]")
                A("s_or_b64 s[56:57], s[56:57], vcc")
        A("s_and_b64 exec, exec, s[56:57]")
        A(f"s_cbranch_execz L_{prefix}poll_x")
        if sleep: A(f"s_sleep {sleep}")
        A(f"s_branch L_{prefix}poll")
        A(f"L_{prefix}poll_x:")
        A("s_mov_b64 exec, -1")
        A("s_waitcnt vmcnt(0)")
        for i in range(4):
            b = vb+4*i
            A(f"v_cndmask_b32 v{40+2*i}, v{b+2}, v{b}, s[58:59]")
            A(f"v_cndmask_b32 v{41+2*i}, v{b+3}, v{b+1}, s[58:59]")
        if last_half: A("v_cmp_gt_u32 vcc, 32, v0")
        A("v_add_f32 v40, v40, v42\nv_add_f32 v41, v41, v43")
        if last_half: A("v_cndmask_b32 v46, 0, v46, vcc\nv_cndmask_b32 v47, 0, v47, vcc")
        A("v_add_f32 v44, v44, v46\nv_add_f32 v45, v45, v47")
        A("v_add_f32 v40, v40, v44\nv_add_f32 v41, v41, v45")
        A("s_nop 1")
        A("v_add_f32_dpp v40, v40, v40 row_ror:8 row_mask:0xf bank_mask:0xf")
        A("v_add_f32_dpp v41, v41, v41 row_ror:8 row_mask:0xf bank_mask:0xf")
        xreduce2(40, 41, 42, 43)
    A(f"s_cmp_eq_u32 {sWV}, 3")
    A("s_cbranch_scc0 L_nofg")
    A(f"s_cmp_lt_u32 {sHKV}, 7")
    A("s_cbranch_scc0 L_nofg")
    A(f"s_mul_i32 {sSO2}, {sB}, 896")
    A(f"s_lshl_b32 {sT0}, {sCS}, 5")
    A(f"s_add_u32 {sSO2}, {sSO2}, {sT0}")
    A("v_and_b32 v14, 7, v0")
    A("v_lshlrev_b32 v14, 2, v14")
    A(f"buffer_load_dword v19, v14, {srd(X_)}, {sSO2} offen")
    if opts.get("touch", 0): A(f"buffer_load_dword v44, v14, {srd(OUT_)}, {sSO2} offen")
    A(f"s_mul_i32 {sSO}, {sB}, 3584")
    A(f"s_lshl_b32 {sT0}, {sCS}, 7")
    A(f"s_add_u32 {sSO}, {sSO}, {sT0}")
    A(f"s_add_u32 {sSO}, {sSO}, {WS_FP}")
    A("v_bfe_u32 v20, v0, 3, 2")
    A(f"v_mul_u32_u24 v20, {8*3584}, v20")
    A("v_and_b32 v21, 7, v0")
    A("v_lshl_add_u32 v20, v21, 4, v20")
    A(f"s_mov_b32 {sCNT}, 0")
    A("s_mov_b32 s58, 0xaaaaaaaa\ns_mov_b32 s59, 0xaaaaaaaa")
    A("L_fpoll:")
    A(f"buffer_load_dwordx4 v[24:27], v20, {srd(WS_)}, {sSO} offen sc1")
    A(f"s_add_u32 {sCNT}, {sCNT}, 1")
    A(f"s_cmp_gt_u32 {sCNT}, {SPIN}")
    A("s_cbranch_scc1 L_fpoll_x")
    A("s_waitcnt vmcnt(0)")
    A("v_cndmask_b32 v40, v24, v26, s[58:59]")
    A("v_cndmask_b32 v41, v25, v27, s[58:59]")
    A(f"v_cmp_ne_u64 vcc, {sTAG}, v[40:41]")
    A("s_cbranch_vccz L_fpoll_x")
    A("s_sleep 8")
    A("s_branch L_fpoll")
    A("L_fpoll_x:")
    A("s_waitcnt vmcnt(0)")
    A("v_cndmask_b32 v40, v26, v24, s[58:59]")
    A("v_cndmask_b32 v41, v27, v25, s[58:59]")
    A("s_nop 1")
    A("v_add_f32_dpp v40, v40, v40 row_ror:8 row_mask:0xf bank_mask:0xf")
    A("v_add_f32_dpp v41, v41, v41 row_ror:8 row_mask:0xf bank_mask:0xf")
    A("v_mov_b32 v42, v40\nv_mov_b32 v43, v41")
    A("s_nop 0")
    A("v_permlane16_swap_b32 v40, v42")
    A("v_permlane16_swap_b32 v41, v43")
    A("s_nop 0")
    A("v_add_f32 v40, v40, v42\nv_add_f32 v41, v41, v43")
    A("v_cvt_pk_bf16_f32 v42, v40, v41")
    A("v_lshlrev_b32 v40, 16, v42\nv_and_b32 v41, 0xffff0000, v42")
    for r in range(2): A(f"v_mul_f32 v{42+r}, 0x{f2u(-math.log2(math.e)):08x}, v{40+r}")
    for r in range(2): A(f"v_exp_f32 v{42+r}, v{42+r}")
    A("s_nop 0")
    for r in range(2): A(f"v_add_f32 v{42+r}, 1.0, v{42+r}")
    for r in range(2): A(f"v_rcp_f32 v{42+r}, v{42+r}")
    A("s_nop 0")
    for r in range(2): A(f"v_mul_f32 v{40+r}, v{40+r}, v{42+r}")
    A("v_cvt_pk_bf16_f32 v42, v40, v41")
    A("v_lshlrev_b32 v16, 16, v42\nv_and_b32 v17, 0xffff0000, v42")
    A("v_lshlrev_b32 v18, 16, v19\nv_and_b32 v19, 0xffff0000, v19")
    stamp(6)
    A("L_nofg:")
    A(f"s_lshl_b32 {sT0}, {sB}, 5")
    A(f"s_add_u32 {sT0}, {sT0}, {sCS}")
    A(f"s_mul_i32 {sSO2}, {sT0}, 3584")
    A(f"s_mul_i32 {sT0}, {sWV}, 896")
    A(f"s_add_u32 {sSO2}, {sSO2}, {sT0}")
    A(f"s_add_u32 {sSO2}, {sSO2}, {WS_SP}")
    A("v_and_b32 v11, 1, v0")
    A("v_lshlrev_b32 v11, 4, v11")
    A("v_lshl_add_u32 v11, v8, 5, v11")
    A(f"v_lshlrev_b32 v9, 4, v8")
    A(f"v_add_u32 v9, {O_LDS}, v9")
    A(f"s_cmp_eq_u32 {sWV}, 0")
    A("s_cbranch_scc0 L_wait_o")
    A("v_lshlrev_b32 v12, 10, v8")
    A("v_lshl_add_u32 v12, v7, 4, v12")
    A(f"s_lshl_b32 {sT0}, {sSPL}, 8")
    A(f"v_add_u32 v12, {sT0}, v12")
    A("v_lshlrev_b32 v13, 4, v8")
    A(f"s_and_b32 {sT0}, {sSLOT}, 0xfc")
    A(f"s_mul_i32 {sSO}, {sT0}, {OP_STR}")
    A(f"s_add_u32 {sSO}, {sSO}, {WS_OP}")
    for s_ in range(4): A(f"s_add_u32 s{64+s_}, {sSO}, {s_*OP_STR}")
    if opts.get("gwarm", 1):
        A("s_mov_b32 exec_hi, 0")
        for s_ in range(4): A(f"buffer_load_dwordx4 v[{48+4*s_}:{51+4*s_}], v12, {srd(WS_)}, s{64+s_} offen sc1")
        for s_ in range(4): A(f"buffer_load_dwordx4 v[{64+4*s_}:{67+4*s_}], v13, {srd(WS_)}, s{64+s_} offen offset:2048 sc1")
        A("s_mov_b32 exec_hi, -1")
        lds_wait_ge(8, 4, 82, sleep=1)
    A(f"s_mov_b32 {sCNT}, 0")
    A("s_mov_b32 exec_hi, 0")
    A("L_gpoll:")
    for s_ in range(4): A(f"buffer_load_dwordx4 v[{48+4*s_}:{51+4*s_}], v12, {srd(WS_)}, s{64+s_} offen sc1")
    for s_ in range(4): A(f"buffer_load_dwordx4 v[{64+4*s_}:{67+4*s_}], v13, {srd(WS_)}, s{64+s_} offen offset:2048 sc1")
    A(f"s_add_u32 {sCNT}, {sCNT}, 1")
    A(f"s_cmp_gt_u32 {sCNT}, {SPIN}")
    A("s_cbranch_scc1 L_gpoll_x")
    for i in range(8):
        A(f"s_waitcnt vmcnt({7-i})")
        if i == 0: A(f"v_cmp_ne_u64 s[56:57], {sTAG}, v[50:51]")
        else:
            A(f"v_cmp_ne_u64 vcc, {sTAG}, v[{50+4*i}:{51+4*i}]")
            A("s_or_b64 s[56:57], s[56:57], vcc")
    A("s_cmp_lg_u64 s[56:57], 0")
    A("s_cbranch_scc0 L_gpoll_x")
    if opts.get("gsleep", 1): A(f"s_sleep {opts.get('gsleep', 1)}")
    A("s_branch L_gpoll")
    A("L_gpoll_x:")
    A("s_waitcnt vmcnt(0)")
    stamp(8)
    A("v_max3_f32 v80, v64, v68, v72")
    A("v_max_f32 v80, v80, v76")
    for s_ in range(4): A(f"v_sub_f32 v{64+4*s_}, v{64+4*s_}, v80")
    for s_ in range(4): A(f"v_exp_f32 v{64+4*s_}, v{64+4*s_}")
    for s_ in range(4):
        A(f"v_lshlrev_b32 v{84+4*s_}, 16, v{48+4*s_}")
        A(f"v_and_b32 v{85+4*s_}, 0xffff0000, v{48+4*s_}")
        A(f"v_lshlrev_b32 v{86+4*s_}, 16, v{49+4*s_}")
        A(f"v_and_b32 v{87+4*s_}, 0xffff0000, v{49+4*s_}")
    A("v_mul_f32 v81, v64, v65")
    for s_ in range(1, 4): A(f"v_fmac_f32 v81, v{64+4*s_}, v{65+4*s_}")
    A("v_rcp_f32 v81, v81")
    for e in range(4): A(f"v_mul_f32 v{84+e}, v64, v{84+e}")
    for s_ in range(1, 4):
        for e in range(4): A(f"v_fmac_f32 v{84+e}, v{64+4*s_}, v{84+4*s_+e}")
    for e in range(4): A(f"v_mul_f32 v{84+e}, v{84+e}, v81")
    A("v_cvt_pk_bf16_f32 v84, v84, v85")
    A("v_cvt_pk_bf16_f32 v85, v86, v87")
    A("v_lshlrev_b32 v12, 3, v0")
    A(f"v_add_u32 v12, {O_LDS}, v12")
    A("ds_write_b64 v12, v[84:85]")
    A("s_mov_b64 exec, -1")
    lds_set(12, 12)
    A("s_branch L_gemv")
    A("L_wait_o:")
    lds_wait_ge(8, 4, 12, sleep=2)
    lds_wait_ge(12, 1, 12, sleep=opts.get("osleep", 1))
    A("L_gemv:")
    for t in range(4): A(f"ds_read_b128 v[{48+4*t}:{51+4*t}], v9 offset:{t*64}")
    A("s_mov_b32 s58, 0xaaaaaaaa\ns_mov_b32 s59, 0xaaaaaaaa")
    DB = 64
    A(f"v_mov_b32 v92, {sTAG0}\nv_mov_b32 v93, {sTAG1}")
    A("s_mov_b32 s56, 0x00030003\ns_mov_b32 s57, 0x00030003")
    A(f"s_waitcnt lgkmcnt(0)")
    def gstore(tl):
        d = DB + 4*tl; o = 96 + 4*tl
        A(f"v_cndmask_b32 v{o}, v92, v{d+2}, s[58:59]")
        A(f"v_cndmask_b32 v{o+1}, v93, v{d+3}, s[58:59]")
        A(f"v_cndmask_b32 v{o+2}, v{d}, v92, s[58:59]")
        A(f"v_cndmask_b32 v{o+3}, v{d+1}, v93, s[58:59]")
        A("s_mov_b64 exec, s[56:57]")
        A(f"buffer_store_dwordx4 v[{o}:{o+3}], v11, {srd(WS_)}, {sSO2} offen offset:{tl*128} sc1")
        A("s_mov_b64 exec, -1")
    for tl in range(7):
        for t in range(4):
            d = DB + 4*tl
            c = "0" if t == 0 else f"v[{d}:{d+3}]"
            b = 128 + (tl*4+t)*4
            A(f"v_mfma_f32_16x16x32_bf16 v[{d}:{d+3}], v[{b}:{b+3}], v[{48+4*t}:{51+4*t}], {c}")
        if tl >= 2: gstore(tl-2)
    gstore(5)
    A("s_nop 0")
    gstore(6)
    stamp(10)
    if opts.get("stop") == 3: A("s_branch L_fin")
    A(f"s_cmp_eq_u32 {sWV}, 3")
    A("s_cbranch_scc0 L_fin")
    A(f"s_cmp_lt_u32 {sHKV}, 7")
    A("s_cbranch_scc0 L_fin")
    A(f"s_mul_i32 {sSO}, {sB}, {32*3584}")
    A(f"s_lshl_b32 {sT0}, {sCS}, 7")
    A(f"s_add_u32 {sSO}, {sSO}, {sT0}")
    A(f"s_add_u32 {sSO}, {sSO}, {WS_SP}")
    A(f"s_mul_i32 {sSO2}, {sB}, 896")
    A(f"s_lshl_b32 {sT0}, {sCS}, 5")
    A(f"s_add_u32 {sSO2}, {sSO2}, {sT0}")
    gather("s", 4, False, sSO, 3584, 24, opts.get("ssleep", 1))
    stamp(12)
    A("v_cvt_pk_bf16_f32 v42, v40, v41")
    A("v_lshlrev_b32 v40, 16, v42\nv_and_b32 v41, 0xffff0000, v42")
    A("v_mul_f32 v40, v40, v16\nv_mul_f32 v41, v41, v17")
    A("v_cvt_pk_bf16_f32 v42, v40, v41")
    A("v_lshlrev_b32 v40, 16, v42\nv_and_b32 v41, 0xffff0000, v42")
    A("v_add_f32 v40, v18, v40\nv_add_f32 v41, v19, v41")
    A("v_cvt_pk_bf16_f32 v42, v40, v41")
    A("s_mov_b64 exec, 0xff")
    A(f"buffer_store_dword v42, v14, {srd(OUT_)}, {sSO2} offen {opts.get('oflags','')}")
    A("s_mov_b64 exec, -1")
    A(f"s_cmp_eq_u32 {sWG}, 0")
    A("s_cbranch_scc0 L_fin")
    A(f"v_mov_b32 v24, {sTAG0}\nv_mov_b32 v25, {sTAG1}\nv_mov_b32 v22, {WS_EP}")
    A("s_mov_b64 exec, 1")
    A(f"buffer_store_dwordx2 v[24:25], v22, {srd(WS_)}, 0 offen sc1")
    A("s_mov_b64 exec, -1")
    A("s_branch L_fin")

    A("L_stream:")
    A(f"s_add_u32 {sT2}, {sT3}, 32768")
    if opts.get("late1", 1): init_loads("A", sT3)
    init_loads("B", sT2)
    A(f"s_mov_b32 {sC}, 0x{f2u(CSC):08x}")
    A("s_mov_b32 s96, 0x00ff00ff\ns_mov_b32 s97, 0xff00ff00")
    A("v_and_b32 v9, 1, v0")
    A("v_lshlrev_b32 v9, 4, v9")
    A("v_mov_b32 v10, 0xffff")
    A("v_lshlrev_b32 v9, v9, v10")
    A("v_bfe_u32 v10, v0, 1, 2")
    for i in range(4):
        A(f"v_cmp_eq_u32 vcc, {i}, v10")
        A("s_nop 1")
        A(f"v_cndmask_b32 v{3+i}, 0, v9, vcc")
    A("s_waitcnt lgkmcnt(0)")
    A(f"s_add_u32 {sTAG0}, {sTAG0}, 1")
    A(f"s_mov_b32 {sMODE}, 0")
    A(f"s_mov_b32 {sSEQ}, 0")
    A(f"s_and_b32 {sT1}, {sWV}, 3")
    A(f"s_lshl_b32 {sT0}, {sT1}, 2")
    A(f"s_add_u32 {sT0}, {sT0}, {SY_LDS+32}")
    A(f"v_mov_b32 v80, {sT0}")
    A(f"s_lshl_b32 {sT0}, {sT1}, 3")
    A(f"s_add_u32 {sT0}, {sT0}, {SY_LDS+64}")
    A(f"v_mov_b32 v81, {sT0}")
    stamp(5)
    if not opts.get("noq"): lds_wait_ge(0, 1, 12)
    A("v_lshrrev_b32 v13, 3, v7")
    A("v_lshlrev_b32 v13, 9, v13")
    A("v_lshl_add_u32 v13, v8, 4, v13")
    A(f"v_add_u32 v13, {Q_LDS}, v13")
    for i in range(8):
        A(f"ds_read_b128 v[{16+4*i}:{19+4*i}], v13 offset:{i*64}")
    A(f"v_mov_b32 v74, {SY_LDS+16}")
    A("v_mov_b32 v75, 1")
    def post():
        A(f"s_add_u32 {sSEQ}, {sSEQ}, 1")
        A(f"v_mov_b32 v82, {sSEQ}")
        A("ds_write_b32 v80, v82")
    def grab():
        l1 = g.lab("gm"); l2 = g.lab("gd")
        A(f"s_cmp_eq_u32 {sMODE}, 0")
        A(f"s_cbranch_scc0 {l1}")
        A("s_mov_b64 exec, 1")
        A("ds_add_rtn_u32 v76, v74, v75")
        A("s_mov_b64 exec, -1")
        A(f"s_branch {l2}")
        A(f"{l1}:")
        post()
        A(f"{l2}:")
    def result(o):
        lm = g.lab("rm"); lw = g.lab("rw"); lh = g.lab("rh"); lx = g.lab("rx")
        A(f"s_cmp_eq_u32 {sMODE}, 0")
        A(f"s_cbranch_scc0 {lm}")
        A("s_waitcnt lgkmcnt(0)")
        A(f"v_readfirstlane_b32 {sT0}, v76")
        A(f"s_add_u32 {sNX}, {sT0}, {sLB}")
        A(f"s_cmp_lt_u32 {sT0}, {DLIM}")
        A(f"s_cbranch_scc1 {lh}")
        A(f"s_mov_b32 {sMODE}, 1")
        A(f"s_cmp_lt_u32 {sT0}, {NLOC}")
        A(f"s_cbranch_scc1 {lh}")
        if opts.get("nohelp"): A(f"s_branch L_noref_{o}")
        post()
        A(f"{lm}:")
        A(f"s_mov_b32 {sCNT}, 0")
        A(f"s_mov_b32 {sNX}, 0xffff")
        A(f"{lw}:")
        A("ds_read_b64 v[76:77], v81")
        A(f"s_add_u32 {sCNT}, {sCNT}, 1")
        A(f"s_cmp_gt_u32 {sCNT}, {SPIN}")
        A(f"s_cbranch_scc1 {lx}")
        A("s_waitcnt lgkmcnt(0)")
        A(f"v_readfirstlane_b32 {sT0}, v76")
        A(f"v_readfirstlane_b32 {sNX}, v77")
        A(f"s_cmp_eq_u32 {sT0}, {sSEQ}")
        A(f"s_cbranch_scc1 {lx}")
        A(f"s_mov_b32 {sNX}, 0xffff")
        A("s_sleep 1")
        A(f"s_branch {lw}")
        A(f"{lx}:")
        A("s_waitcnt lgkmcnt(0)")
        A(f"s_cmp_lt_u32 {sNX}, 256")
        A(f"s_cbranch_scc0 L_noref_{o}")
        A(f"{lh}:")
    grab()
    A(f"v_mov_b32 v68, 0x{f2u(-1e30):08x}")
    A("v_mov_b32 v69, 0")
    for i in range(8): A(f"v_mov_b32 v{52+i}, 0")
    A("v_lshrrev_b32 v78, 1, v8")
    A("v_lshlrev_b32 v78, 10, v78")
    A("v_lshl_add_u32 v78, v7, 5, v78")
    A("v_and_b32 v79, 1, v8")
    A("v_lshl_add_u32 v78, v79, 4, v78")
    A(f"s_and_b32 {sT1}, {sWV}, 3")
    A(f"s_lshl_b32 {sT0}, {sT1}, 11")
    A(f"s_add_u32 {sT0}, {sT0}, {CB_LDS}")
    A(f"v_add_u32 v78, {sT0}, v78")
    A("v_lshrrev_b32 v79, 3, v7")
    A("v_lshlrev_b32 v79, 5, v79")
    A(f"s_lshl_b32 {sT0}, {sT1}, 3")
    A(f"s_add_u32 {sT0}, {sT0}, {ST_LDS}")
    A(f"v_add_u32 v79, {sT0}, v79")
    stamp(6)
    result("A")
    def ands(st, r):
        for i in range(4): A(f"v_and_b32 v{60+4*st+i}, v{48+r}, v{3+i}")
    def proc(sl, kind):
        o = "B" if sl == "A" else "A"
        base = SLOT[sl]
        A(f"L_{kind}_{sl}:")
        if kind == "full":
            A(f"s_lshl_b32 {sSO}, {sNX}, 13")
            grab()
        if kind == "noref":
            if not opts.get("nohelp"): lds_wait_ge(24, 1, 70)
        A(f"s_waitcnt vmcnt({(8 if kind == 'last' else 24)*(2 if DUP else 1)})")
        if TS:
            A("s_memrealtime s[60:61]")
            A("s_add_u32 s41, s41, 1")
            A("s_waitcnt lgkmcnt(0)")
            A("s_mov_b32 m0, s41")
            A("s_nop 0")
            A("v_writelane_b32 v15, s60, m0")
        NC = opts.get("nocomp", 0)
        lsk = g.lab("sk"); lsk2 = g.lab("sk2")
        if NC: A(f"s_branch {lsk}")
        for i in range(8):
            c = "0" if i == 0 else "v[48:51]"
            A(f"v_mfma_f32_16x16x32_bf16 v[48:51], v[{base+4*i}:{base+4*i+3}], v[{16+4*i}:{19+4*i}], {c}")
        if kind == "full" and not B16: kloads(sl, sSO)
        else: A("s_nop 7")
        A("v_max3_f32 v70, v48, v49, v50")
        A("v_max_f32 v70, v70, v51")
        xreduce(70, 71, "v_max_f32")
        A(f"v_mul_f32 v70, {sC}, v70")
        A("v_max_f32 v70, v70, v68")
        A("v_sub_f32 v72, v68, v70")
        A("v_exp_f32 v72, v72")
        A("v_mov_b32 v68, v70")
        for r in range(4): A(f"v_fma_f32 v{48+r}, v{48+r}, {sC}, -v70")
        for r in range(4): A(f"v_exp_f32 v{48+r}, v{48+r}")
        A("v_mov_b32_dpp v73, v72 row_ror:8 row_mask:0xf bank_mask:0xf")
        A("v_mul_f32 v69, v69, v72")
        A(f"v_cndmask_b32 v73, v73, v72, {sAM}")
        for r in range(4):
            A(f"v_add_f32 v69, v69, v{48+r}")
            A(f"v_cvt_pk_bf16_f32 v{48+r}, v{48+r}, v{48+r}")
        for i in range(8): A(f"v_mul_f32 v{52+i}, v{52+i}, v73")
        ands(0, 0); ands(1, 1)
        if NC: A(f"{lsk}:")
        if kind == "last":
            xreduce(69, 71, "v_add_f32")
            A("ds_write_b64 v79, v[68:69]")
        A(f"s_waitcnt vmcnt({ {'full':(16 if B16 else 24),'noref':16,'last':0}[kind]*(2 if DUP else 1) })")
        def pv(st, r):
            for hf in range(2):
                vb = base + 32 + (r*2+hf)*4
                A(f"v_mfma_f32_16x16x32_bf16 v[{52+4*hf}:{55+4*hf}], v[{60+4*st}:{63+4*st}], v[{vb}:{vb+3}], v[{52+4*hf}:{55+4*hf}]")
        if not NC:
            pv(0, 0); ands(0, 2); pv(1, 1); ands(1, 3); pv(0, 2); pv(1, 3)
        if kind == "full":
            if B16: kloads(sl, sSO)
            vloads(sl, sSO)
            result(o)
            if sl == "B": A("s_branch L_full_A")
        elif kind == "last":
            if sl == "B": A("s_branch L_done")
    proc("A", "full"); proc("B", "full")
    proc("A", "noref"); proc("B", "last")
    proc("B", "noref"); proc("A", "last")
    A("L_done:")
    stamp(8)
    A("s_setprio 3")
    A(f"v_mov_b32 v20, {SY_LDS+8}")
    A("v_mov_b32 v21, 1")
    A("v_lshlrev_b32 v18, 4, v0")
    A(f"v_add_u32 v19, {CB_LDS}, v18")
    A(f"v_mov_b32 v17, {ST_LDS}")
    A("s_nop 2")
    A("ds_write_b128 v78, v[52:55]")
    A("ds_write_b128 v78, v[56:59] offset:512")
    A("s_mov_b64 exec, 1")
    A("s_waitcnt lgkmcnt(0)")
    A("ds_add_rtn_u32 v21, v20, v21")
    A("s_mov_b64 exec, -1")
    A(f"s_mul_i32 {sSO}, {sSLOT}, {OP_STR}")
    A(f"s_add_u32 {sSO}, {sSO}, {WS_OP}")
    A(f"v_mov_b32 v46, {sTAG0}\nv_mov_b32 v47, {sTAG1}\nv_mov_b32 v50, {sTAG0}\nv_mov_b32 v51, {sTAG1}")
    A(f"v_mov_b32 v54, {sTAG0}\nv_mov_b32 v55, {sTAG1}")
    A("s_waitcnt lgkmcnt(0)")
    A(f"v_readfirstlane_b32 {sARR}, v21")
    A(f"s_cmp_eq_u32 {sARR}, 3")
    A("s_cbranch_scc0 L_fin")
    for i in range(4): A(f"ds_read_b128 v[{20+4*i}:{23+4*i}], v17 offset:{16*i}")
    CBR = 96
    for w in range(4):
        A(f"ds_read_b128 v[{CBR+8*w}:{CBR+8*w+3}], v19 offset:{2048*w}")
        A(f"ds_read_b128 v[{CBR+8*w+4}:{CBR+8*w+7}], v19 offset:{2048*w+1024}")
    A("s_waitcnt lgkmcnt(8)")
    A("v_max3_f32 v60, v20, v22, v24")
    A("v_max3_f32 v62, v28, v30, v32")
    A("v_max_f32 v60, v60, v26")
    A("v_max_f32 v62, v62, v34")
    for w in range(4):
        A(f"v_sub_f32 v{20+2*w}, v{20+2*w}, v60")
        A(f"v_sub_f32 v{28+2*w}, v{28+2*w}, v62")
    for w in range(8): A(f"v_exp_f32 v{20+2*w}, v{20+2*w}")
    A("v_cmp_eq_u32 vcc, 1, v0")
    A("v_mul_f32 v61, v20, v21")
    A("v_mul_f32 v63, v28, v29")
    for w in range(1, 4):
        A(f"v_fmac_f32 v61, v{20+2*w}, v{21+2*w}")
        A(f"v_fmac_f32 v63, v{28+2*w}, v{29+2*w}")
    A("v_cndmask_b32 v52, v60, v62, vcc")
    A("v_cndmask_b32 v53, v61, v63, vcc")
    A("s_mov_b64 exec, 3")
    A(f"buffer_store_dwordx4 v[52:55], v18, {srd(WS_)}, {sSO} offen offset:2048 sc1")
    A("s_mov_b64 exec, -1")
    for w in range(4):
        A(f"s_waitcnt lgkmcnt({2*(3-w)})")
        for e in range(8):
            sc = 20 + 2*w + (8 if e >= 4 else 0)
            if w == 0: A(f"v_mul_f32 v{36+e}, v{sc}, v{CBR+e}")
            else: A(f"v_fmac_f32 v{36+e}, v{sc}, v{CBR+8*w+e}")
    A("v_cvt_pk_bf16_f32 v44, v36, v37")
    A("v_cvt_pk_bf16_f32 v45, v38, v39")
    A("v_cvt_pk_bf16_f32 v48, v40, v41")
    A("v_cvt_pk_bf16_f32 v49, v42, v43")
    A(f"buffer_store_dwordx4 v[44:47], v18, {srd(WS_)}, {sSO} offen sc1")
    A(f"buffer_store_dwordx4 v[48:51], v18, {srd(WS_)}, {sSO} offen offset:1024 sc1")
    stamp(9)
    A("L_fin:")
    if TS:
        stamp(14)
        A(f"v_writelane_b32 v15, s62, 15")
        A(f"s_lshl_b32 {sT0}, {sWG}, 3")
        A(f"s_add_u32 {sT0}, {sT0}, {sWV}")
        A(f"s_lshl_b32 {sSO}, {sT0}, 8")
        A(f"s_add_u32 {sSO}, {sSO}, {WS_TS}")
        A("v_lshlrev_b32 v21, 2, v0")
        A(f"buffer_store_dword v15, v21, {srd(WS_)}, {sSO} offen")
    A("L_end:")
    A("s_endpgm")

    hdr = open("recurrent_scan__gqa_block_cached__dense_activation_relu__decode.s.ref").read().split("; Override launch geometry")[0]
    out = hdr
    out += f"; @launch grid=(256,1,1) block=(512,1,1) lds={LDS_TOTAL}\n"
    out += '.amdgcn_target "amdgcn-amd-amdhsa--gfx950"\n.text\n'
    out += f".globl {NAME}\n.p2align 8\n.type {NAME},@function\n{NAME}:\n"
    out += "\n".join(g.L) + "\n"
    out += f""".section .rodata,"a"
.p2align 6
.amdhsa_kernel {NAME}
  .amdhsa_next_free_vgpr 256
  .amdhsa_next_free_sgpr 102
  .amdhsa_accum_offset 256
  .amdhsa_group_segment_fixed_size 0
  .amdhsa_kernarg_size 88
  .amdhsa_user_sgpr_count 2
  .amdhsa_user_sgpr_kernarg_segment_ptr 1
  .amdhsa_system_sgpr_workgroup_id_x 1
.end_amdhsa_kernel
"""
    return out, LDS_TOTAL

if __name__ == "__main__":
    opts = {}
    outp = "recurrent_scan__gqa_block_cached__dense_activation_relu__decode.s"
    for a in sys.argv[1:]:
        if a.startswith("-o="): outp = a[3:]
        else:
            k, v = a.split("=")
            opts[k] = int(v) if v.lstrip("-").isdigit() else v.replace("_", " ")
    s, lds = build(opts)
    open(outp, "w").write(s)
    print("wrote", outp, "lds", lds)
```
